```python
import torch

def _softmax(x, axis=-1):
    return torch.softmax(x, dim=axis)
def _gelu(x):
    return torch.nn.functional.gelu(x, approximate="tanh")
def _silu(x):
    return torch.nn.functional.silu(x)
def _sigmoid(x):
    return torch.sigmoid(x)
def _layernorm(x, axis=-1, eps=1e-5):
    m = x.mean(dim=axis, keepdim=True)
    v = x.var(dim=axis, keepdim=True, unbiased=False)
    return (x - m) / torch.sqrt(v + eps)
def _scatter_add(tgt, idx, src, axis=0):
    return tgt.clone().index_add_(axis, idx, src)
def _segment_sum(src, seg, n):
    out = torch.zeros((n,) + src.shape[1:], dtype=src.dtype)
    return out.index_add_(0, seg, src)
def _pad(x, pw):
    flat = tuple(v for pair in reversed(pw) for v in pair)
    return torch.nn.functional.pad(x, flat)

kernel_name = 'gather_scatter__hybrid_graph_tf_nagphormer__graph'

def setup_inputs():

    _w = (lambda a: (lambda t: t.to(torch.bfloat16) if t.is_floating_point() else t)(torch.as_tensor(a)))
    N, deg, D = 25000, 16, 128
    E = N * deg
    src = (lambda lo, hi, *s: torch.randint(lo, hi, s))(0, N, E).to(torch.int64)
    dst = (lambda lo, hi, *s: torch.randint(lo, hi, s))(0, N, E).to(torch.int64)
    deg_cnt = torch.bincount(dst, minlength=N).to(float) + 1.0
    sc = 1.0 / D ** 0.5
    return {
        "x": _w((lambda *s: torch.randn(*s, dtype=torch.bfloat16) * 0.1)(N, D)),
        "src": _w(src),
        "dst": _w(dst),
        "deg_inv_sqrt": _w(1.0 / (lambda _x: torch.sqrt(torch.as_tensor(_x)))(deg_cnt)),
        "wq": _w((lambda *s: torch.randn(*s, dtype=torch.bfloat16) * 1.6)(D, D) * sc),
        "wk": _w((lambda *s: torch.randn(*s, dtype=torch.bfloat16) * 1.6)(D, D) * sc),
        "wv": _w((lambda *s: torch.randn(*s, dtype=torch.bfloat16) * 0.1)(D, D) * sc),
        "wo": _w((lambda *s: torch.randn(*s, dtype=torch.bfloat16) * 0.1)(D, D) * sc),
        "w_r": _w((lambda *s: torch.randn(*s, dtype=torch.bfloat16) * 0.1)(D)),
    }

def reference(x, src, dst, deg_inv_sqrt, wq, wk, wv, wo, w_r):
    N, D = x.shape[0], x.shape[1]
    K = 7
    h = x
    toks = [x]
    for _ in range(K):
        msg = h[src] * deg_inv_sqrt[src, None] * deg_inv_sqrt[dst, None]
        h = _segment_sum(msg, dst, N)
        toks.append(h)
    tok = torch.stack(toks, axis=1)
    t = _layernorm(tok, axis=-1)
    q   = torch.einsum('nkd,de->nke', t, wq)
    key = torch.einsum('nkd,de->nke', t, wk)
    v   = torch.einsum('nkd,de->nke', t, wv)
    scale = 1.0 / (D ** 0.5)
    attn = _softmax(torch.einsum('nkd,nld->nkl', q, key) * scale, axis=-1)
    o = torch.einsum('nkl,nld->nkd', attn, v)
    o = tok + torch.einsum('nkd,de->nke', o, wo)
    r = _layernorm(o, axis=-1)
    alpha = _softmax(torch.einsum('nkd,d->nk', r, w_r), axis=-1)
    return torch.einsum('nk,nkd->nd', alpha, o)
```

```python
NAME='gather_scatter__hybrid_graph_tf_nagphormer__graph'
class E:
    def __init__(s): s.l=[]; s.uid=0
    def __call__(s, x=''):
        for ln in x.split('\n'):
            ln=ln.rstrip()
            if ln.strip()=='' : continue
            if ln.strip().endswith(':') and not ln.strip().startswith(';'): s.l.append(ln.strip())
            else: s.l.append('  '+ln.strip())
    def lab(s,base='L'):
        s.uid+=1; return f'{base}_{s.uid}'
    def text(s): return '\n'.join(s.l)+'\n'

def kernel_text(name, body, vgpr, sgpr, agpr=0):
    acc=(vgpr+3)//4*4
    nfv = acc+agpr if agpr else vgpr
    return f""".text
.globl {name}
.p2align 8
.type {name},@function
{name}:
{body}  s_endpgm
.section .rodata,"a"
.p2align 6
.amdhsa_kernel {name}
  .amdhsa_next_free_vgpr {nfv}
  .amdhsa_next_free_sgpr {sgpr}
  .amdhsa_accum_offset {acc}
  .amdhsa_group_segment_fixed_size 0
  .amdhsa_kernarg_size 96
  .amdhsa_user_sgpr_count 2
  .amdhsa_user_sgpr_kernarg_segment_ptr 1
  .amdhsa_system_sgpr_workgroup_id_x 1
  .amdhsa_float_denorm_mode_32 3
.end_amdhsa_kernel
"""
def file_text(launches, kernels):
    h='; generated by dev/gen scripts (hand-written generator)\n'
    for k,g,b,l in launches:
        h+=f'; @launch kernel={k} grid=({g},1,1) block=({b},1,1) lds={l}\n'
    h+='.amdgcn_target "amdgcn-amd-amdhsa--gfx950"\n'
    return h+''.join(kernels)

N=25000; EDG=400000
HSZ=N*256
OFF_H=0
OFF_CH  =52*1024*1024
OFF_OFFS=54*1024*1024
OFF_OVF =55*1024*1024
OFF_W   =59*1024*1024
OFF_BAR =60*1024*1024
OFF_IMG =61*1024*1024
```

```python
import re
TRANS=('v_exp_f32','v_log_f32','v_rcp_f32','v_rsq_f32','v_sqrt_f32','v_sin_f32','v_cos_f32','v_rcp_iflag_f32')
def regs(tok):
    tok=tok.strip()
    neg=tok.lstrip('-')
    m=re.fullmatch(r'abs\((.*)\)',neg)
    if m: neg=m.group(1)
    neg=neg.strip('|')
    m=re.fullmatch(r'([vsa])(\d+)',neg)
    if m: return [(m.group(1),int(m.group(2)))]
    m=re.fullmatch(r'([vsa])\[(\d+):(\d+)\]',neg)
    if m: return [(m.group(1),i) for i in range(int(m.group(2)),int(m.group(3))+1)]
    if neg in('vcc','vcc_lo','vcc_hi'): return [('vcc',0)]
    if neg in('exec','exec_lo','exec_hi'): return [('exec',0)]
    if neg=='m0': return [('m0',0)]
    return []
def parse(line):
    s=line.split(';')[0].strip()
    if not s or s.endswith(':') or s.startswith('.'): return None
    parts=s.split(None,1)
    mn=parts[0]; ops=[]
    rest=parts[1] if len(parts)>1 else ''
    raw=[x.strip() for x in rest.split(',')] if rest else []
    joined=[];depth=0;cur=''
    for ch in rest:
        if ch=='[': depth+=1
        if ch==']': depth-=1
        if ch==',' and depth==0: joined.append(cur.strip()); cur=''
        else: cur+=ch
    if cur.strip(): joined.append(cur.strip())
    mods=''
    if joined:
        last=joined[-1].split(None,1)
        joined[-1]=last[0]
        if len(last)>1: mods=last[1]
    return mn,joined,mods
def classify(mn,ops,mods):
    d=dict(mn=mn,w=set(),r=set(),kind='other',passes=0,dpp=False,trans=False,srcC=set(),srcAB=set(),stdata=set())
    R=lambda i: set(regs(ops[i])) if i<len(ops) else set()
    base=mn.replace('_e32','').replace('_e64','')
    if mn.startswith('v_mfma'):
        d['kind']='mfma'; d['passes']=8 if '32x32' in mn else 4
        if '32x32x2_f32' in mn: d['passes']=16
        d['w']=R(0); d['srcAB']=R(1)|R(2); d['srcC']=R(3); d['r']=d['srcAB']|d['srcC']; return d
    if mn.startswith('v_'):
        d['kind']='valu'
        d['dpp']=('_dpp' in mn) or ('row_' in mods) or ('quad_perm' in mods)
        d['sdwa']='_sdwa' in mn
        d['trans']=base in TRANS
        if base.startswith('v_cmp'):
            if base.startswith('v_cmpx'): d['w']=R(0)|{('exec',0)}
            else: d['w']=R(0)
            d['r']=R(1)|R(2)
        elif base in('v_readlane_b32','v_readfirstlane_b32'):
            d['w']=R(0); d['r']=R(1)|R(2); d['rl']=True
        elif base=='v_writelane_b32':
            d['w']=R(0); d['r']=R(1)|R(2)|R(0); d['wl']=True
        elif base.startswith('v_permlane') and 'swap' in base:
            d['w']=R(0)|R(1); d['r']=R(0)|R(1); d['perml']=True
        elif base in('v_add_co_u32','v_sub_co_u32','v_subrev_co_u32'):
            d['w']=R(0)|R(1); d['r']=R(2)|R(3)
        elif base in('v_addc_co_u32','v_subb_co_u32'):
            d['w']=R(0)|R(1); d['r']=R(2)|R(3)|R(4)
        elif base=='v_cndmask_b32':
            d['w']=R(0); d['r']=R(1)|R(2)|(R(3) if len(ops)>3 else {('vcc',0)})
        else:
            d['w']=R(0)
            for i in range(1,len(ops)): d['r']|=R(i)
            if base in('v_fmac_f32','v_dot2c_f32_bf16','v_mac_f32','v_pk_fmac_f16') or d['dpp'] or (d.get('sdwa') and 'UNUSED_PRESERVE' in mods): d['r']|=R(0)
        return d
    if mn.startswith('s_'):
        d['kind']='salu'
        if mn in('s_waitcnt','s_nop','s_barrier','s_endpgm','s_setprio','s_sleep') or mn.startswith('s_cbranch') or mn=='s_branch':
            d['kind']='sspec'
            if mn=='s_nop': d['nop']=int(ops[0],0)+1
            if mn in('s_cbranch_vccz','s_cbranch_vccnz'): d['r']={('vcc',0)}
            if mn in('s_cbranch_execz','s_cbranch_execnz'): d['r']={('exec',0)}
            return d
        if mn.startswith('s_load') or mn.startswith('s_buffer_load') or mn in('s_memtime','s_memrealtime'):
            d['kind']='smem'; d['w']=R(0)
            for i in range(1,len(ops)): d['r']|=R(i)
            return d
        if mn.startswith('s_cmp') or mn.startswith('s_bitcmp'):
            for i in range(len(ops)): d['r']|=R(i)
            return d
        if mn.startswith('s_set_gpr_idx'):
            d['w']={('m0',0)}; d['r']=R(0); return d
        d['w']=R(0)
        for i in range(1,len(ops)): d['r']|=R(i)
        if 'saveexec' in mn: d['w']|={('exec',0)}; d['r']|={('exec',0)}
        return d
    if mn.startswith('ds_'):
        d['kind']='ds'
        if mn.startswith('ds_read') or 'rtn' in mn or mn.startswith('ds_bpermute') or mn.startswith('ds_swizzle') or mn.startswith('ds_permute'):
            d['w']=R(0)
            for i in range(1,len(ops)): d['r']|=R(i)
        else:
            for i in range(len(ops)): d['r']|=R(i)
        return d
    if mn.startswith('buffer_') or mn.startswith('global_') or mn.startswith('flat_'):
        d['kind']='vmem'
        lds=' lds' in (' '+mods) or '_lds_' in mn
        d['lds']=lds
        isload='load' in mn
        if isload and not lds:
            d['w']=R(0)
            for i in range(1,len(ops)): d['r']|=R(i)
        elif 'atomic' in mn and ('sc0' in mods):
            d['w']=R(0)
            for i in range(1,len(ops)): d['r']|=R(i)
        else:
            for i in range(len(ops)): d['r']|=R(i)
            if 'store' in mn:
                di=0 if mn.startswith('buffer_') else 1
                dd=R(di)
                if len(dd)>=3: d['stdata']=dd
        if lds: d['r']|={('m0',0)}
        return d
    return d
def fix(text, insert=True, verbose=False):
    out=[]; hist=[]
    nins=0
    def dist_scan(pred,need):
        dist=0
        for info in reversed(hist):
            if info is None: continue
            if pred(info): return max(0,need-dist)
            dist+=info.get('nop',1)
            if dist>=need: return 0
        return 0
    for line in text.split('\n'):
        p=parse(line)
        if p is None:
            out.append(line); continue
        d=classify(*p)
        need=0
        vr={x for x in d['r'] if x[0] in 'va'}; vw={x for x in d['w'] if x[0] in 'va'}
        sr={x for x in d['r'] if x[0] in('s','vcc')}
        isvalu=lambda i:i['kind']=='valu'
        if d['kind']=='valu':
            if d.get('rl'):
                need=max(need,dist_scan(lambda i:isvalu(i) and (i['w']&vr),1))
                need=max(need,dist_scan(lambda i:isvalu(i) and (i['w']&sr),4))
            if sr: need=max(need,dist_scan(lambda i:isvalu(i) and (i['w']&sr),2))
            if d['dpp']:
                need=max(need,dist_scan(lambda i:isvalu(i) and (i['w']&vr),2))
                need=max(need,dist_scan(lambda i:isvalu(i) and (('exec',0) in i['w']),5))
            if d.get('perml'): need=max(need,dist_scan(lambda i:isvalu(i) and (i['w']&vr),2))
            if not d['trans']: need=max(need,dist_scan(lambda i:isvalu(i) and i['trans'] and (i['w']&vr),1))
            need=max(need,dist_scan(lambda i:isvalu(i) and i.get('sdwa') and False,1))
            if not d['mn'].startswith('v_dot'):
                need=max(need,dist_scan(lambda i:isvalu(i) and i['mn'].startswith('v_dot') and (i['w']&(vr|vw)),3))
            else:
                srcs=set(vr)-set(vw)
                need=max(need,dist_scan(lambda i:isvalu(i) and i['mn'].startswith('v_dot') and (i['w']&srcs),3))
            need=max(need,dist_scan(lambda i:i['kind']=='vmem' and (i['stdata']&vw),2))
            need=max(need,dist_scan(lambda i:i['kind']=='mfma' and i['passes']==4 and (i['srcC']&vw),3))
            need=max(need,dist_scan(lambda i:i['kind']=='mfma' and i['passes']==8 and (i['srcC']&vw),7))
        if d['kind'] in('vmem','ds','mfma'):
            need=max(need,dist_scan(lambda i:isvalu(i) and i['mn'].startswith('v_dot') and (i['w']&vr),3))
        if d['kind'] in('valu','vmem','ds'):
            touch=vr|vw
            for ps,n in((4,8),(8,12),(16,20)):
                need=max(need,dist_scan(lambda i:i['kind']=='mfma' and i['passes']==ps and (i['w']&touch),n))
        if d['kind']=='vmem':
            need=max(need,dist_scan(lambda i:isvalu(i) and (i['w']&sr),5))
            if d.get('lds'): need=max(need,dist_scan(lambda i:i['kind']=='salu' and (('m0',0) in i['w']),1))
        if d['kind']=='mfma':
            need=max(need,dist_scan(lambda i:isvalu(i) and (i['w']&vr),2))
            need=max(need,dist_scan(lambda i:isvalu(i) and (('exec',0) in i['w']),4))
            for ps,nab,nc in((4,8,6),(8,12,10)):
                need=max(need,dist_scan(lambda i:i['kind']=='mfma' and i['passes']==ps and (i['w']&d['srcAB']),nab))
                need=max(need,dist_scan(lambda i:i['kind']=='mfma' and i['passes']==ps and (i['w']&d['srcC']) and not (i['w']==d['srcC'] and i['passes']==d['passes']),nc))
        if need>0:
            nins+=1
            if verbose: print('hazard: need',need,'before',line.strip())
            if insert:
                k=need
                while k>0:
                    n=min(k,16); out.append(f'  s_nop {n-1}'); hist.append(dict(kind='sspec',w=set(),r=set(),nop=n,trans=False,stdata=set(),srcC=set(),passes=0)); k-=n
        out.append(line); hist.append(d)
        if len(hist)>40: hist.pop(0)
    return '\n'.join(out), nins
if __name__=='__main__':
    import sys
    t,n=fix(open(sys.argv[1]).read(),insert=False,verbose=True); print(n,'hazards')
```

```python
from glib import E
from layout import *
K1_XWG0=103; K1_XWGS=98; K1_GRID=K1_XWG0+K1_XWGS
K1_LDS=36*1024
def wave_scan(e,v,tmp):
    for sh in (1,2,4,8):
        e(f"v_add_u32_dpp v{v}, v{v}, v{v} row_shr:{sh} row_mask:0xf bank_mask:0xf bound_ctrl:0")
    e(f"v_add_u32_dpp v{v}, v{v}, v{v} row_bcast:15 row_mask:0xa bank_mask:0xf")
    e(f"v_add_u32_dpp v{v}, v{v}, v{v} row_bcast:31 row_mask:0xc bank_mask:0xf")
def allred32_f32(e,v,tmp):
    e(f"v_add_f32_dpp v{v}, v{v}, v{v} quad_perm:[1,0,3,2] row_mask:0xf bank_mask:0xf")
    e(f"v_add_f32_dpp v{v}, v{v}, v{v} quad_perm:[2,3,0,1] row_mask:0xf bank_mask:0xf")
    e(f"v_add_f32_dpp v{v}, v{v}, v{v} row_half_mirror row_mask:0xf bank_mask:0xf")
    e(f"v_add_f32_dpp v{v}, v{v}, v{v} row_mirror row_mask:0xf bank_mask:0xf")
    e(f"v_mov_b32 v{tmp}, v{v}\nv_permlane16_swap_b32 v{v}, v{tmp}\nv_add_f32 v{v}, v{v}, v{tmp}")
def gen_k1():
    e=E()
    e(f"""
    s_cmp_ge_u32 s2, {K1_GRID}
    s_cbranch_scc1 K1_END
    s_load_dwordx2 s[4:5], s[0:1], 88      ; ws
    v_lshrrev_b32 v2, 6, v0
    v_and_b32 v1, 63, v0
    s_nop 0
    v_readfirstlane_b32 s22, v2
    s_cmp_ge_u32 s2, {K1_XWG0}
    s_cbranch_scc1 K1_X
    s_cmp_eq_u32 s2, 100
    s_cbranch_scc1 K1_WM
    s_cmp_eq_u32 s2, 101
    s_cbranch_scc1 K1_WU
    s_cmp_eq_u32 s2, 102
    s_cbranch_scc1 K1_SW
    """)
    e(f"""
    s_load_dwordx4 s[8:11], s[0:1], 8
    s_mul_i32 s3, s2, {CHE*4}
    v_lshlrev_b32 v2, 4, v0
    v_add_u32 v2, s3, v2
    v_mov_b32 v3, 0
    v_lshlrev_b32 v4, 2, v0
    v_cmp_gt_u32 vcc, 128, v0
    s_and_saveexec_b64 s[30:31], vcc
    ds_write_b32 v4, v3
    s_mov_b64 exec, s[30:31]
    s_waitcnt lgkmcnt(0)
    s_mov_b32 s12, s8
    s_mov_b32 s13, s9
    s_mov_b32 s14, {EDG*4}
    s_mov_b32 s15, 0x20000
    s_mov_b32 s16, s10
    s_mov_b32 s17, s11
    s_mov_b32 s18, {EDG*4}
    s_mov_b32 s19, 0x20000
    v_cmp_gt_u32 vcc, {CHE//4}, v0
    s_and_saveexec_b64 s[30:31], vcc
    s_cbranch_execz K1_C1
    buffer_load_dwordx4 v[8:11], v2, s[16:19], 0 offen     ; dst
    buffer_load_dwordx4 v[12:15], v2, s[12:15], 0 offen    ; src
    K1_C1:
    s_mov_b64 exec, s[30:31]
    s_barrier
    s_mov_b32 s20, 21913099
    s_movk_i32 s21, 196
    s_and_saveexec_b64 s[30:31], vcc
    s_cbranch_execz K1_C2
    s_waitcnt vmcnt(1)
    v_mov_b32 v3, 1
    """)
    for i in range(4):
        e(f"""v_mul_hi_u32 v{16+i}, v{8+i}, s20
        v_mul_lo_u32 v{20+i}, v{16+i}, s21
        v_sub_u32 v{20+i}, v{8+i}, v{20+i}       ; low
        v_lshlrev_b32 v{16+i}, 2, v{16+i}        ; bin*4
        ds_add_rtn_u32 v{24+i}, v{16+i}, v3""")
    e(f"""
    K1_C2:
    s_mov_b64 exec, s[30:31]
    s_waitcnt lgkmcnt(0)
    s_barrier
    s_cmp_lg_u32 s22, 0
    s_cbranch_scc1 K1_C3
    v_lshlrev_b32 v4, 3, v1
    ds_read_b64 v[6:7], v4
    s_waitcnt lgkmcnt(0)
    v_add_u32 v5, v6, v7
    v_mov_b32 v28, v5
    """)
    wave_scan(e,28,29)
    e(f"""
    v_sub_u32 v28, v28, v5          ; exclusive
    v_add_u32 v29, v28, v6
    ds_write_b64 v4, v[28:29] offset:1024
    v_mul_u32_u24 v5, {2*NCH*4}, v1
    s_lshl_b32 s3, s2, 2
    s_add_u32 s3, s3, {OFF_OFFS}
    v_add_u32 v5, s3, v5
    global_store_dword v5, v28, s[4:5]
    global_store_dword v5, v29, s[4:5] offset:{NCH*4}
    v_mov_b32 v6, {CHE}
    v_mov_b32 v5, s3
    v_add_u32 v5, {128*NCH*4}, v5
    v_cmp_eq_u32 vcc, 0, v1
    s_and_saveexec_b64 s[32:33], vcc
    global_store_dword v5, v6, s[4:5]
    s_mov_b64 exec, s[32:33]
    K1_C3:
    s_waitcnt lgkmcnt(0)
    s_barrier
    v_cmp_gt_u32 vcc, {CHE//4}, v0
    s_and_saveexec_b64 s[30:31], vcc
    s_cbranch_execz K1_END
    """)
    for i in range(4): e(f"ds_read_b32 v{28+i}, v{16+i} offset:1024")
    e(f"s_mul_i32 s3, s2, {CHE*4}\ns_add_u32 s3, s3, {OFF_CH}\ns_waitcnt vmcnt(0) lgkmcnt(0)")
    for i in range(4):
        e(f"""v_add_u32 v{28+i}, v{28+i}, v{24+i}
        v_lshlrev_b32 v{28+i}, 2, v{28+i}
        v_add_u32 v{28+i}, s3, v{28+i}
        v_lshl_or_b32 v{12+i}, v{20+i}, 16, v{12+i}
        global_store_dword v{28+i}, v{12+i}, s[4:5]""")
    e("s_endpgm")
    e(f"""
    K1_X:
    s_load_dwordx2 s[8:9], s[0:1], 0        ; x
    s_load_dwordx2 s[12:13], s[0:1], 24     ; dis
    s_sub_u32 s3, s2, {K1_XWG0}
    s_lshl_b32 s3, s3, 4
    s_add_u32 s3, s3, s22                   ; task
    s_cmp_ge_u32 s3, 1563
    s_cbranch_scc1 K1_END
    s_lshl_b32 s20, s3, 4                   ; n0
    v_and_b32 v2, 15, v1
    v_add_u32 v2, s20, v2                   ; node
    v_lshrrev_b32 v3, 4, v1                 ; c4
    v_lshlrev_b32 v4, 8, v2
    v_lshl_add_u32 v4, v3, 4, v4            ; node*256 + c4*16
    v_lshlrev_b32 v5, 1, v2
    s_waitcnt lgkmcnt(0)
    s_mov_b32 s10, {N*256}
    s_mov_b32 s11, 0x20000
    s_mov_b32 s14, {N*2}
    s_mov_b32 s15, 0x20000
    """)
    for i in range(4): e(f"buffer_load_dwordx4 v[{8+4*i}:{11+4*i}], v4, s[8:11], 0 offen offset:{64*i}")
    e(f"""
    buffer_load_ushort v6, v5, s[12:15], 0 offen
    s_add_u32 s16, s4, {OFF_T}
    s_addc_u32 s17, s5, 0
    s_mov_b32 s18, {32*TS_STRIDE}
    s_mov_b32 s19, 0x20000
    s_add_u32 s24, s4, {OFF_G}
    s_addc_u32 s25, s5, 0
    s_mov_b32 s26, {32*TS_STRIDE}
    s_mov_b32 s27, 0x20000
    s_mov_b32 s21, {2*TS_STRIDE}
    v_mul_lo_u32 v7, v3, s21
    v_lshl_add_u32 v7, v2, 3, v7
    s_mov_b32 s28, 0xffff0000
    s_waitcnt vmcnt(0)
    v_lshlrev_b32 v6, 16, v6
    """)
    for i in range(4):
        b=8+4*i
        e(f"s_mov_b32 s3, {8*i*TS_STRIDE}\ns_mov_b32 s29, {(8*i+1)*TS_STRIDE}")
        e(f"buffer_store_dwordx2 v[{b}:{b+1}], v7, s[16:19], s3 offen\nbuffer_store_dwordx2 v[{b+2}:{b+3}], v7, s[16:19], s29 offen")
        for r in range(4):
            e(f"v_lshlrev_b32 v{24+2*r}, 16, v{b+r}\nv_and_b32 v{25+2*r}, s28, v{b+r}\nv_mul_f32 v{24+2*r}, v{24+2*r}, v6\nv_mul_f32 v{25+2*r}, v{25+2*r}, v6\nv_cvt_pk_bf16_f32 v{32+4*i+r}, v{24+2*r}, v{25+2*r}")
        g=32+4*i
        e(f"buffer_store_dwordx2 v[{g}:{g+1}], v7, s[24:27], s3 offen\nbuffer_store_dwordx2 v[{g+2}:{g+3}], v7, s[24:27], s29 offen")
    e("s_endpgm")
    ACC=64
    def finish(center_right, scale, woff, tag):
        for mt in range(4):
            a=ACC+16*mt
            e(f"v_add_f32 v{8+mt}, v{a}, v{a+1}")
            for r in range(2,16): e(f"v_add_f32 v{8+mt}, v{8+mt}, v{a+r}")
            e(f"v_mov_b32 v12, v{8+mt}\nv_permlane32_swap_b32 v{8+mt}, v12\nv_add_f32 v{8+mt}, v{8+mt}, v12")
        e(f"v_and_b32 v13, 31, v1\nv_lshlrev_b32 v13, 2, v13\ns_lshl_b32 s3, s22, 9\nv_add_u32 v14, s3, v13")
        for mt in range(4): e(f"ds_write_b32 v14, v{8+mt} offset:{32768+128*mt}")
        e("s_waitcnt lgkmcnt(0)\ns_barrier")
        for mt in range(4):
            for it in range(4): e(f"ds_read_b32 v{16+4*mt+it}, v13 offset:{32768+512*it+128*mt}")
        e("s_waitcnt lgkmcnt(0)\ns_mov_b32 s3, 0x3c000000")
        for mt in range(4):
            e(f"v_add_f32 v{8+mt}, v{16+4*mt}, v{17+4*mt}\nv_add_f32 v{16+4*mt}, v{18+4*mt}, v{19+4*mt}\nv_add_f32 v{8+mt}, v{8+mt}, v{16+4*mt}\nv_mul_f32 v{8+mt}, s3, v{8+mt}")
        if center_right:
            e("v_add_f32 v12, v8, v9\nv_add_f32 v15, v10, v11\nv_add_f32 v12, v12, v15")
            allred32_f32(e,12,15)
            e("v_mul_f32 v12, s3, v12")
            for mt in range(4): e(f"v_sub_f32 v{8+mt}, v{8+mt}, v12")
            for r in range(16):
                e(f"v_add_f32 v{16+r}, v{ACC+r}, v{ACC+16+r}\nv_add_f32 v32, v{ACC+32+r}, v{ACC+48+r}\nv_add_f32 v{16+r}, v{16+r}, v32")
            for r in range(16): allred32_f32(e,16+r,32)
            for r in range(16): e(f"v_mul_f32 v{16+r}, s3, v{16+r}")
        e(f"s_mov_b32 s3, {scale:#x}")
        for mt in range(4):
            for r in range(16):
                a=ACC+16*mt+r
                e(f"v_sub_f32 v{a}, v{a}, v{8+mt}")
                if center_right: e(f"v_sub_f32 v{a}, v{a}, v{16+r}")
                if scale!=0x3f800000: e(f"v_mul_f32 v{a}, s3, v{a}")
        e(f"s_lshl_b32 s3, s22, 11\ns_add_u32 s3, s3, {OFF_W+woff}\nv_lshlrev_b32 v13, 4, v1\nv_add_u32 v13, s3, v13")
        for mt in range(4):
            for ee in range(2):
                for i in range(4): e(f"v_cvt_pk_bf16_f32 v{32+i}, v{ACC+16*mt+8*ee+2*i}, v{ACC+16*mt+8*ee+2*i+1}")
                e(f"v_add_u32 v14, {mt*8192+ee*1024}, v13\nglobal_store_dwordx4 v14, v[32:35], s[4:5]\ns_nop 1")
        e("s_endpgm")
    def rowaddr():
        e("""v_and_b32 v2, 0x13, v1
        v_bfe_u32 v3, v1, 2, 1
        v_lshl_or_b32 v2, v3, 3, v2
        v_bfe_u32 v3, v1, 3, 1
        v_lshl_or_b32 v2, v3, 2, v2          ; swap23(i)
        v_lshlrev_b32 v3, 8, v2
        v_lshrrev_b32 v4, 5, v1
        v_lshl_add_u32 v3, v4, 4, v3""")
    e(f"""
    K1_WM:
    s_cmp_ge_u32 s22, 4
    s_cbranch_scc1 K1_END
    s_load_dwordx4 s[8:11], s[0:1], 32
    s_waitcnt lgkmcnt(0)
    s_mov_b32 s12, s8
    s_mov_b32 s13, s9
    s_mov_b32 s14, 32768
    s_mov_b32 s15, 0x20000
    s_mov_b32 s16, s10
    s_mov_b32 s17, s11
    s_mov_b32 s18, 32768
    s_mov_b32 s19, 0x20000
    """)
    rowaddr()
    e("s_lshl_b32 s20, s22, 13")
    for es in range(8): e(f"buffer_load_dwordx4 v[{8+4*es}:{11+4*es}], v3, s[12:15], s20 offen offset:{32*es}")
    for mt in range(4):
        e(f"s_mov_b32 s21, {mt*8192}")
        for es in range(8): e(f"buffer_load_dwordx4 v[{40-0+0}:{43}], v3, s[16:19], s21 offen offset:0" if False else f"buffer_load_dwordx4 v[{128+0}:{131}], v3, s[16:19], s21 offen offset:0") if False else None
    for mt in range(4):
        e(f"s_mov_b32 s21, {mt*8192}")
        for half in range(2):
            for q in range(4):
                es=4*half+q
                e(f"buffer_load_dwordx4 v[{40+4*q}:{43+4*q}], v3, s[16:19], s21 offen offset:{32*es}")
            e("s_waitcnt vmcnt(0)")
            for q in range(4):
                es=4*half+q
                c="0" if es==0 else f"v[{ACC+16*mt}:{ACC+16*mt+15}]"
                e(f"v_mfma_f32_32x32x16_bf16 v[{ACC+16*mt}:{ACC+16*mt+15}], v[{8+4*es}:{11+4*es}], v[{40+4*q}:{43+4*q}], {c}")
            e("s_nop 7")
    import struct
    sc=struct.unpack('<I',struct.pack('<f',1.4426950408889634/128**0.5))[0]
    finish(True,sc,0,'wm')
    e(f"""
    K1_WU:
    s_load_dwordx4 s[8:11], s[0:1], 48
    s_waitcnt lgkmcnt(0)
    s_mov_b32 s12, s8
    s_mov_b32 s13, s9
    s_mov_b32 s14, 32768
    s_mov_b32 s15, 0x20000
    s_mov_b32 s16, s10
    s_mov_b32 s17, s11
    s_mov_b32 s18, 32768
    s_mov_b32 s19, 0x20000
    v_lshlrev_b32 v2, 4, v0
    buffer_load_dwordx4 v[8:11], v2, s[16:19], 0 offen
    v_add_u32 v3, 16384, v2
    buffer_load_dwordx4 v[12:15], v3, s[16:19], 0 offen
    s_waitcnt vmcnt(0)
    ds_write_b128 v2, v[8:11]
    ds_write_b128 v3, v[12:15]
    s_waitcnt lgkmcnt(0)
    s_barrier
    s_cmp_ge_u32 s22, 4
    s_cbranch_scc1 K1_END
    """)
    rowaddr()
    e("s_lshl_b32 s20, s22, 13")
    for es in range(8): e(f"buffer_load_dwordx4 v[{8+4*es}:{11+4*es}], v3, s[12:15], s20 offen offset:{32*es}")
    e("""
    v_lshrrev_b32 v5, 5, v1
    v_lshlrev_b32 v5, 3, v5
    v_bfe_u32 v6, v1, 2, 2
    v_add_u32 v5, v5, v6
    v_lshlrev_b32 v5, 8, v5            ; (8h+r)*256
    v_bfe_u32 v6, v1, 4, 1
    v_lshlrev_b32 v6, 4, v6
    v_and_b32 v7, 1, v1
    v_lshl_add_u32 v6, v7, 3, v6
    v_bfe_u32 v7, v1, 1, 1
    v_lshl_add_u32 v6, v7, 2, v6
    v_lshl_add_u32 v5, v6, 1, v5
    s_waitcnt vmcnt(0)
    """)
    for mt in range(4):
        for half in range(2):
            for q in range(4):
                es=4*half+q
                for jj in range(2):
                    e(f"ds_read_b64_tr_b16 v[{40+4*q+2*jj}:{41+4*q+2*jj}], v5 offset:{(16*es+4*jj)*256+64*mt}")
            e("s_waitcnt lgkmcnt(0)")
            for q in range(4):
                es=4*half+q
                c="0" if es==0 else f"v[{ACC+16*mt}:{ACC+16*mt+15}]"
                e(f"v_mfma_f32_32x32x16_bf16 v[{ACC+16*mt}:{ACC+16*mt+15}], v[{8+4*es}:{11+4*es}], v[{40+4*q}:{43+4*q}], {c}")
            e("s_nop 7")
    e("s_barrier")
    finish(False,0x3f800000,32768,'wu')
    lg=struct.unpack('<I',struct.pack('<f',1.4426950408889634))[0]
    e(f"""
    K1_SW:
    s_load_dwordx2 s[8:9], s[0:1], 64       ; w_r
    v_mov_b32 v8, 0
    v_mov_b32 v9, 0
    v_mov_b32 v10, 0
    v_mov_b32 v11, 0
    v_lshlrev_b32 v2, 4, v0
    v_add_u32 v2, {OFF_FL}, v2
    s_waitcnt lgkmcnt(0)
    global_store_dwordx4 v2, v[8:11], s[4:5]
    s_cmp_lg_u32 s22, 0
    s_cbranch_scc1 K1_SW2
    v_lshlrev_b32 v3, 2, v1
    global_load_dword v4, v3, s[8:9]
    s_waitcnt vmcnt(0)
    v_lshlrev_b32 v5, 16, v4
    v_and_b32 v6, 0xffff0000, v4
    v_add_f32 v7, v5, v6
    """)
    allred32_f32(e,7,12)
    e(f"""
    v_mov_b32 v12, v7
    v_permlane32_swap_b32 v7, v12
    v_add_f32 v7, v7, v12
    v_mul_f32 v7, 0x3c000000, v7
    v_sub_f32 v5, v5, v7
    v_sub_f32 v6, v6, v7
    v_mul_f32 v5, {lg:#x}, v5
    v_mul_f32 v6, {lg:#x}, v6
    v_cvt_pk_bf16_f32 v12, v5, v6
    v_lshlrev_b32 v13, 16, v12
    v_and_b32 v14, 0xffff0000, v12
    v_sub_f32 v5, v5, v13
    v_sub_f32 v6, v6, v14
    v_cvt_pk_bf16_f32 v13, v5, v6
    ds_write_b32 v3, v12 offset:256
    ds_write_b32 v3, v13 offset:512        ; coef[2]
    v_mov_b32 v12, 0x3f803f80
    v_mov_b32 v13, 0
    ds_write_b32 v3, v12
    ds_write_b32 v3, v13 offset:768
    K1_SW2:
    s_waitcnt lgkmcnt(0)
    s_barrier
    s_cmp_ge_u32 s22, 8
    s_cbranch_scc1 K1_END
    v_and_b32 v2, 3, v1
    v_lshlrev_b32 v2, 8, v2
    v_lshrrev_b32 v3, 5, v1
    v_lshl_add_u32 v2, v3, 4, v2
    s_lshl_b32 s3, s22, 5
    v_add_u32 v2, s3, v2
    ds_read_b128 v[8:11], v2
    v_bfe_u32 v3, v1, 4, 1
    v_bfe_u32 v4, v1, 2, 1
    v_cmp_eq_u32 vcc, v3, v4
    s_waitcnt lgkmcnt(0)
    v_cndmask_b32 v8, 0, v8, vcc
    v_cndmask_b32 v9, 0, v9, vcc
    v_cndmask_b32 v10, 0, v10, vcc
    v_cndmask_b32 v11, 0, v11, vcc
    s_lshl_b32 s3, s22, 10
    s_add_u32 s3, s3, {OFF_W+65536}
    v_lshlrev_b32 v2, 4, v1
    v_add_u32 v2, s3, v2
    global_store_dwordx4 v2, v[8:11], s[4:5]
    K1_END:
    """)
    return e.text(),128,40
```

```python
from glib import E
from layout import *
from k1 import wave_scan
RXS=[14,18,24]; RB=[0,14,32]; RT=56
ASG=[15, 3, 0, 13, 9, 6, 9, 4, 4, 10, 7, 4, 8, 0, 0, 13, 8, 5, 1, 11, 12, 14, 2, 5, 6, 1, 14, 14, 2, 5, 10, 15, 12, 11, 15, 11, 1, 0, 12, 3, 2, 4, 3, 10, 9, 6, 8, 13, 7]
BUF0=0; BUF1=69632; ZS=135168; DUMP=ZS+16; STG=BUF1
ECAP=122880; SA=122880; SB=SA+12544; HIST=SB+12544; MISC=HIST+4096
DP=MISC+128
SLOWF=MISC+132
K3_LDS=MISC+256
ZSI=16896
FL_XC=OFF_FL+8192
def gen_k3(NH=7, TS=False, PD=2, FORCE_SLOW=False, FORCE_SLOWSYNC=False, DBG=False):
    e=E()
    vL=2; vD=6; v16=10; vC=11; ACC=12; AC=28; DAT=32; TMP=56; CD=64; CO=68; IDX=72; NV=128
    ool=[]
    def stamp(idx):
        if not TS: return
        e(f"s_memtime s[62:63]\ns_waitcnt lgkmcnt(0)\ns_sub_u32 s{76+idx}, s62, s60")
    e(f"""
    s_cmp_ge_u32 s2, 256
    s_cbranch_scc1 K3_END
    s_load_dwordx2 s[4:5], s[0:1], 88
    s_load_dwordx2 s[6:7], s[0:1], 24
    s_memtime s[60:61]
    s_and_b32 s20, s2, 7
    s_lshl_b32 s20, s20, 2
    s_lshr_b32 s3, s2, 3
    s_and_b32 s3, s3, 3
    s_add_u32 s20, s20, s3          ; g
    s_lshr_b32 s21, s2, 5           ; p
    v_lshrrev_b32 v{TMP}, 6, v0
    v_and_b32 v1, 63, v0
    s_getreg_b32 s44, hwreg(HW_REG_XCC_ID, 0, 4)
    v_readfirstlane_b32 s22, v{TMP}   ; wave
    s_mul_i32 s41, s21, {PN}
    s_waitcnt lgkmcnt(0)
    s_lshl_b32 s3, s20, 6
    s_add_u32 s45, s3, {FL_XC}
    s_lshl_b32 s3, s21, 2
    s_add_u32 s3, s3, s45
    s_add_u32 s44, s44, 1
    v_mov_b32 v2, s3
    v_mov_b32 v3, s44
    v_cmp_eq_u32 vcc, 0, v0
    s_and_saveexec_b64 s[30:31], vcc
    s_cbranch_execz K3_X1
    global_store_dword v2, v3, s[4:5] sc1
    K3_X1:
    s_mov_b64 exec, s[30:31]
    s_add_u32 s8, s4, {OFF_NOFF}
    s_addc_u32 s9, s5, 0
    s_mov_b32 s10, {25088*16}
    s_mov_b32 s11, 0x20000
    v_mov_b32 v2, s41
    v_lshlrev_b32 v2, 4, v2
    buffer_load_dword v4, v2, s[8:11], 0 offen
    v_add_u32 v3, {3135*16+12}, v2
    buffer_load_dword v5, v3, s[8:11], 0 offen
    v_add_u32 v2, s41, v0
    v_lshlrev_b32 v2, 4, v2
    v_add_u32 v3, 16384, v2
    v_add_u32 v6, 32768, v2
    v_add_u32 v7, 49152, v2
    buffer_load_dwordx4 v[12:15], v2, s[8:11], 0 offen
    buffer_load_dwordx4 v[16:19], v3, s[8:11], 0 offen
    buffer_load_dwordx4 v[20:23], v6, s[8:11], 0 offen
    buffer_load_dwordx4 v[24:27], v7, s[8:11], 0 offen
    v_lshlrev_b32 v6, 2, v0
    v_mov_b32 v7, 0
    v_add_u32 v6, {HIST}, v6
    ds_write_b32 v6, v7
    v_mov_b32 v8, {SLOWF}
    ds_write_b32 v8, v7
    v_mov_b32 v7, {ZSI|(ZSI<<16)}
    v_mov_b32 v8, {DP}
    ds_write_b32 v8, v7
    v_lshlrev_b32 v{v16}, 4, v1
    s_waitcnt vmcnt(4)
    v_readfirstlane_b32 s46, v4
    v_readfirstlane_b32 s47, v5
    s_sub_u32 s48, s47, s46
    s_lshl_b32 s48, s48, 1            ; bytes
    s_cmp_gt_u32 s48, {ECAP}
    s_cselect_b32 s49, 1, 0
    s_cbranch_scc1 K3_NODMA
    s_add_u32 s12, s4, {OFF_ENT}
    s_addc_u32 s13, s5, 0
    s_mov_b32 s14, {ENT_BYTES}
    s_mov_b32 s15, 0x20000
    s_lshl_b32 s50, s46, 1
    s_lshl_b32 s3, s22, 10
    K3_EL:
    s_cmp_ge_u32 s3, s48
    s_cbranch_scc1 K3_NODMA
    s_mov_b32 m0, s3
    s_add_u32 s51, s50, s3
    buffer_load_dwordx4 v{v16}, s[12:15], s51 offen lds
    s_add_u32 s3, s3, 16384
    s_branch K3_EL
    K3_NODMA:
    s_waitcnt lgkmcnt(0)
    s_barrier
    """)
    stamp(0)
    KEY=28; RNK=32; PKA=36; PKB=40
    e(f"v_mov_b32 v44, 0\nv_mov_b32 v45, 1\ns_mov_b32 s51, {HIST}\nv_cmp_gt_u32 s[52:53], 64, v0")
    e("s_waitcnt vmcnt(0)")
    for r in range(4):
        b=12+4*r
        e(f"""v_sub_u32 v46, v{b+1}, v{b}
        v_sub_u32 v47, v{b+2}, v{b+1}
        v_sub_u32 v48, v{b+3}, v{b+2}
        v_lshrrev_b32 v46, 1, v46
        v_lshrrev_b32 v47, 1, v47
        v_lshrrev_b32 v48, 1, v48
        v_or3_b32 v49, v46, v47, v48
        v_lshrrev_b32 v49, 10, v49""")
        if r==3: e("v_cndmask_b32 v49, 0, v49, s[52:53]")
        e(f"""v_or_b32 v44, v44, v49
        v_lshl_or_b32 v{PKB+r}, v47, 10, v46
        v_lshl_or_b32 v{PKB+r}, v48, 20, v{PKB+r}
        v_subrev_u32 v49, s46, v{b}
        v_lshlrev_b32 v49, 12, v49
        v_add_u32 v50, {1024*r}, v0
        v_or_b32 v{PKA+r}, v49, v50
        v_min_u32 v46, 7, v46
        v_min_u32 v47, 7, v47
        v_min_u32 v48, 15, v48
        v_and_b32 v49, 1, v46
        v_sub_u32 v50, 7, v47
        v_cmp_eq_u32 vcc, 1, v49
        v_cndmask_b32 v47, v47, v50, vcc
        v_lshl_or_b32 v47, v46, 3, v47
        v_and_b32 v49, 1, v47
        v_sub_u32 v50, 15, v48
        v_cmp_eq_u32 vcc, 1, v49
        v_cndmask_b32 v48, v48, v50, vcc
        v_lshl_or_b32 v48, v47, 4, v48
        v_lshl_add_u32 v{KEY+r}, v48, 2, s51""")
        if r==3: e("s_mov_b64 s[30:31], exec\ns_mov_b64 exec, s[52:53]\ns_cbranch_execz K3_H3")
        e(f"ds_add_rtn_u32 v{RNK+r}, v{KEY+r}, v45")
        if r==3: e("K3_H3:\ns_mov_b64 exec, s[30:31]")
    e(f"""
    v_cmp_ne_u32 vcc, 0, v44
    s_cmp_lg_u64 vcc, 0
    s_cselect_b32 s3, 1, 0
    s_or_b32 s49, s49, s3
    s_waitcnt lgkmcnt(0)
    s_barrier
    v_lshlrev_b32 v6, 2, v0
    v_add_u32 v6, {HIST}, v6
    ds_read_b32 v7, v6
    s_waitcnt lgkmcnt(0)
    v_mov_b32 v8, v7
    """)
    wave_scan(e,8,9)
    e(f"""
    s_nop 1
    v_readlane_b32 s3, v8, 63
    s_lshl_b32 s28, s22, 2
    s_add_u32 s28, s28, {MISC}
    v_mov_b32 v9, s28
    v_mov_b32 v46, s3
    ds_write_b32 v9, v46
    s_waitcnt lgkmcnt(0)
    s_barrier
    v_lshlrev_b32 v9, 2, v1
    v_add_u32 v9, {MISC}, v9
    v_cmp_gt_u32 vcc, 16, v1
    v_mov_b32 v46, 0
    s_and_saveexec_b64 s[30:31], vcc
    ds_read_b32 v46, v9
    s_mov_b64 exec, s[30:31]
    s_waitcnt lgkmcnt(0)
    v_cmp_gt_u32 vcc, s22, v1
    s_nop 1
    v_cndmask_b32 v46, 0, v46, vcc
    """)
    wave_scan(e,46,47)
    e(f"""
    s_nop 1
    v_readlane_b32 s3, v46, 63
    v_sub_u32 v8, v8, v7
    v_add_u32 v8, s3, v8
    ds_write_b32 v6, v8
    s_waitcnt lgkmcnt(0)
    s_barrier
    """)
    for r in range(4):
        if r==3: e("s_mov_b64 s[30:31], exec\ns_mov_b64 exec, s[52:53]\ns_cbranch_execz K3_H4")
        e(f"ds_read_b32 v46, v{KEY+r}\ns_waitcnt lgkmcnt(0)\nv_add_u32 v46, v46, v{RNK+r}\nv_lshlrev_b32 v46, 2, v46\nv_add_u32 v46, {SA}, v46\nds_write_b32 v46, v{PKA+r}\nds_write_b32 v46, v{PKB+r} offset:12544")
        if r==3: e("K3_H4:\ns_mov_b64 exec, s[30:31]")
    e(f"""
    s_cmp_eq_u32 s49, 0
    s_cbranch_scc1 K3_NOSF
    v_mov_b32 v46, {SLOWF}
    v_mov_b32 v47, 1
    ds_write_b32 v46, v47
    K3_NOSF:
    s_waitcnt lgkmcnt(0)
    s_barrier
    """)
    stamp(1)
    wb=[[] for _ in range(16)]
    for bi,w in enumerate(ASG): wb[w].append(bi)
    e("s_mov_b32 s3, 0")
    for w in range(16):
        nb=len(wb[w]); lst=[0]*(4-nb)+wb[w]
        val=nb|(lst[0]<<4)|(lst[1]<<10)|(lst[2]<<16)|(lst[3]<<22)
        e(f"s_cmp_eq_u32 s22, {w}\ns_cselect_b32 s3, {val:#x}, s3")
    e("""s_and_b32 s39, s3, 15
    s_sub_u32 s38, 4, s39
    s_bfe_u32 s28, s3, 0x60004
    s_bfe_u32 s29, s3, 0x6000a
    s_bfe_u32 s30, s3, 0x60010
    s_bfe_u32 s31, s3, 0x60016""")
    QA=32; QP=36
    for s in range(4):
        e(f"s_lshl_b32 s3, s{28+s}, 8\ns_add_u32 s3, s3, {SA}\nv_lshl_add_u32 v46, v1, 2, s3\nds_read_b32 v{QA+s}, v46\nds_read_b32 v{QP+s}, v46 offset:12544")
    e("s_waitcnt lgkmcnt(0)")
    for s in range(3):
        lab=e.lab('IV')
        e(f"s_cmp_le_u32 s38, {s}\ns_cbranch_scc1 {lab}\nv_mov_b32 v{QP+s}, 0\nv_mov_b32 v{QA+s}, 0xfff\n{lab}:")
    CNT=40
    for s in range(4):
        e(f"v_and_b32 v{CNT+s}, 0x3ff, v{QP+s}\nv_bfe_u32 v{CNT+4+s}, v{QP+s}, 10, 10\nv_bfe_u32 v{CNT+8+s}, v{QP+s}, 20, 10")
    for k in range(12):
        e(f"v_mov_b32 v52, v{CNT+k}")
        for sh in (1,2,4,8): e(f"v_max_u32_dpp v52, v52, v52 row_shr:{sh} row_mask:0xf bank_mask:0xf bound_ctrl:0")
        e(f"s_nop 1\nv_readlane_b32 s{64+k}, v52, 15\nv_readlane_b32 s3, v52, 31\ns_nop 3\ns_max_u32 s{64+k}, s{64+k}, s3\nv_readlane_b32 s3, v52, 47\ns_nop 3\ns_max_u32 s{64+k}, s{64+k}, s3\nv_readlane_b32 s3, v52, 63\ns_nop 3\ns_max_u32 s{64+k}, s{64+k}, s3")
    for X in range(3):
        e(f"s_mov_b32 s{32+X}, 0\ns_mov_b32 s{35+X}, 0")
        for s in range(4):
            lab=e.lab('NS')
            k=64+4*X+s
            if s<3: e(f"s_cmp_gt_u32 s38, {s}\ns_cbranch_scc1 {lab}")
            e(f"s_max_u32 s{k}, s{k}, 1\ns_add_u32 s{32+X}, s{32+X}, s{k}\ns_sub_u32 s3, s{32+X}, 1\ns_min_u32 s3, s3, 31\ns_lshl_b32 s3, 1, s3\ns_or_b32 s{35+X}, s{35+X}, s3")
            if s<3: e(f"{lab}:")
        e(f"s_cmp_gt_u32 s{32+X}, {RXS[X]}\ns_cselect_b32 s3, 1, 0\ns_or_b32 s49, s49, s3")
    if FORCE_SLOW: e("s_mov_b32 s49, 1")
    e(f"""
    s_cmp_eq_u32 s49, 0
    s_cbranch_scc1 K3_NOSF2
    v_mov_b32 v52, {SLOWF}
    v_mov_b32 v53, 1
    ds_write_b32 v52, v53
    K3_NOSF2:
    s_waitcnt lgkmcnt(0)
    s_barrier
    v_mov_b32 v52, {SLOWF}
    ds_read_b32 v53, v52
    s_waitcnt lgkmcnt(0)
    v_readfirstlane_b32 s49, v53
    s_cmp_lg_u32 s49, 0
    s_cbranch_scc1 K3_SLOWSETUP
    """)
    CA=52; CR=53; Q1=54
    for s in range(4): e(f"v_lshrrev_b32 v{28+s}, 12, v{QA+s}\nv_lshlrev_b32 v{28+s}, 1, v{28+s}")
    e(f"v_mov_b32 v60, {DP}")
    for X in range(3):
        QAd=[54,55,56,57]; QRm=[61,62,63,59]
        for s in range(4):
            e(f"v_mov_b32 v{QAd[s]}, v{28+s}\nv_mov_b32 v{QRm[s]}, v{CNT+4*X+s}")
        for s in range(4): e(f"v_lshl_add_u32 v{28+s}, v{CNT+4*X+s}, 2, v{28+s}")
        def shift():
            t=""
            for s in range(3): t+=f"v_mov_b32 v{QAd[s]}, v{QAd[s+1]}\nv_mov_b32 v{QRm[s]}, v{QRm[s+1]}\n"
            t+=f"v_mov_b32 v{QRm[3]}, 0\n"
            return t
        for s in range(3):
            lab=e.lab('IS'); e(f"s_cmp_le_u32 s38, {s}\ns_cbranch_scc1 {lab}\n"+shift()+f"{lab}:")
        for r in range(RXS[X]):
            e(f"""v_cmp_lt_i32 vcc, 0, v{QRm[0]}
            v_subrev_u32 v{QRm[0]}, 1, v{QRm[0]}
            s_nop 0
            v_cndmask_b32 v58, v60, v{QAd[0]}, vcc
            ds_read_b32 v{IDX+RB[X]+r}, v58
            v_add_u32 v{QAd[0]}, 4, v{QAd[0]}""")
            up=e.lab('BU'); bk=e.lab('BB')
            e(f"s_bitcmp1_b32 s{35+X}, {r}\ns_cbranch_scc1 {up}\n{bk}:")
            ool.append(f"{up}:\n"+shift()+f"s_branch {bk}\n")
            if r%8==7: e("s_waitcnt lgkmcnt(4)")
    for s in range(4): e(f"v_and_b32 v{vL+s}, 0xfff, v{QA+s}")
    e("s_waitcnt lgkmcnt(0)\ns_branch K3_SETUP2")
    e("K3_SLOWSETUP:")
    for s in range(4):
        e(f"s_add_u32 s3, s22, {16*s}\ns_lshl_b32 s3, s3, 6\nv_add_u32 v{vL+s}, s3, v1\nv_cmp_gt_u32 vcc, {PN}, v{vL+s}\nv_mov_b32 v46, 0xfff\ns_nop 0\nv_cndmask_b32 v{vL+s}, v46, v{vL+s}, vcc")
    e("K3_SETUP2:")
    if DBG:
        lab=e.lab('DG')
        e(f"s_cmp_lg_u32 s2, 0\ns_cbranch_scc1 {lab}\ns_mul_i32 s3, s22, {64*256}\ns_add_u32 s3, s3, {OFF_DBG+4096}\nv_lshlrev_b32 v58, 2, v1\nv_add_u32 v58, s3, v58")
        for r in range(RT): e(f"global_store_dword v58, v{IDX+r}, s[4:5] offset:0\nv_add_u32 v58, 256, v58")
        for s_ in range(4): e(f"global_store_dword v58, v{vL+s_}, s[4:5]\nv_add_u32 v58, 256, v58")
        for k in range(8): e(f"v_writelane_b32 v60, s{32+k}, {k}")
        e(f"v_writelane_b32 v60, s49, 8\nv_writelane_b32 v60, s46, 9\nv_writelane_b32 v60, s48, 10")
        e(f"global_store_dword v58, v60, s[4:5]\ns_waitcnt vmcnt(0)\n{lab}:")
    stamp(2)
    e(f"""
    s_mov_b32 s16, s6
    s_mov_b32 s17, s7
    s_mov_b32 s18, {N*2}
    s_mov_b32 s19, 0x20000
    """)
    for b in range(4):
        e(f"""v_add_u32 v{vD+b}, s41, v{vL+b}
        v_lshlrev_b32 v{vD+b}, 1, v{vD+b}
        v_cmp_eq_u32 vcc, 0xfff, v{vL+b}
        v_mov_b32 v{TMP}, 0x7ffffff0
        v_mov_b32 v{TMP+1}, {DUMP}
        v_cndmask_b32 v{vD+b}, v{vD+b}, v{TMP}, vcc
        buffer_load_ushort v{vD+b}, v{vD+b}, s[16:19], 0 offen
        v_mov_b32 v{70+(b%2)}, v{vL+b}
        v_lshlrev_b32 v{vL+b}, 3, v{vL+b}
        v_add_u32 v{vL+b}, {STG}, v{vL+b}
        v_cndmask_b32 v{vL+b}, v{vL+b}, v{TMP+1}, vcc""")
    e(f"""
    s_mov_b32 s42, {PN}
    s_cmp_eq_u32 s21, 7
    s_cselect_b32 s42, {N-7*PN}, s42
    v_lshlrev_b32 v{TMP}, 1, v0
    v_add_u32 v{TMP+1}, 2048, v{TMP}
    """)
    for t in range(2):
        e(f"""
        v_add_u32 v{TMP+2}, s41, v{TMP+t}
        v_lshlrev_b32 v{CO+t}, 3, v{TMP+2}
        v_lshlrev_b32 v{TMP+2}, 1, v{TMP+2}
        v_cmp_gt_u32 vcc, s42, v{TMP+t}
        v_mov_b32 v{TMP+3}, 0x7ffffff0
        s_nop 0
        v_cndmask_b32 v{CO+t}, v{TMP+3}, v{CO+t}, vcc
        v_cndmask_b32 v{TMP+2}, v{TMP+3}, v{TMP+2}, vcc
        buffer_load_dword v{CD+2*t}, v{TMP+2}, s[16:19], 0 offen
        """)
    e(f"""
    v_and_b32 v{TMP}, 7, v1
    v_lshlrev_b32 v{TMP}, 2, v{TMP}
    v_add_u32 v{TMP}, s45, v{TMP}
    K3_XP:
    global_load_dword v{TMP+1}, v{TMP}, s[4:5] sc1
    s_waitcnt vmcnt(0)
    v_cmp_eq_u32 vcc, 0, v{TMP+1}
    s_cbranch_vccnz K3_XP
    v_cmp_ne_u32 vcc, s44, v{TMP+1}
    s_cmp_lg_u64 vcc, 0
    s_cselect_b32 s50, 1, 0
    """)
    if FORCE_SLOWSYNC: e("s_mov_b32 s50, 1")
    for b in range(4): e(f"v_lshlrev_b32 v{vD+b}, 16, v{vD+b}")
    for t in range(2): e(f"v_and_b32 v{CD+2*t+1}, 0xffff0000, v{CD+2*t}\nv_lshlrev_b32 v{CD+2*t}, 16, v{CD+2*t}")
    e(f"""
    v_lshrrev_b32 v{TMP}, 4, v1
    v_bfe_u32 v{TMP+1}, v1, 2, 2
    v_and_b32 v{TMP+2}, 1, v1
    v_lshlrev_b32 v{TMP+2}, 4, v{TMP+2}
    v_mov_b32 v{TMP+3}, 0x3f80
    v_lshlrev_b32 v{TMP+3}, v{TMP+2}, v{TMP+3}
    v_cmp_eq_u32 vcc, v{TMP}, v{TMP+1}
    s_nop 1
    v_cndmask_b32 v{TMP+3}, 0, v{TMP+3}, vcc
    v_bfe_u32 v{TMP+2}, v1, 1, 1
    v_cmp_eq_u32 vcc, 0, v{TMP+2}
    v_mov_b32 v{TMP+4}, 0
    s_nop 0
    v_cndmask_b32 v{AC}, 0, v{TMP+3}, vcc
    v_cndmask_b32 v{AC+1}, v{TMP+3}, v{TMP+4}, vcc
    v_mov_b32 v{AC+2}, v{AC}
    v_mov_b32 v{AC+3}, v{AC+1}
    v_lshlrev_b32 v{vC}, 4, v0
    v_add_u32 v{vC}, {STG}, v{vC}
    s_lshl_b32 s3, s20, 8
    s_add_u32 s66, s3, {OFF_FL}
    s_lshl_b32 s3, s21, 5
    s_add_u32 s67, s66, s3
    s_mov_b32 s11, 0x20000
    s_mov_b32 s15, 0x20000
    s_mov_b32 s27, 0x20000
    s_mov_b32 s10, {TS_STRIDE}
    s_mov_b32 s14, {N*8}
    s_mov_b32 s26, {N*8}
    s_mov_b32 s23, 0
    s_mov_b32 s51, 0xffff0000
    s_barrier
    v_mov_b32 v{TMP}, {ZS}
    v_mov_b32 v{TMP+2}, 0
    v_mov_b32 v{TMP+3}, 0
    ds_write_b64 v{TMP}, v[{TMP+2}:{TMP+3}]
    s_waitcnt lgkmcnt(0)
    """)
    stamp(3)
    e("K3_HOP:")
    if TS: e("s_mov_b32 s68, s23")
    e(f"""
    s_and_b32 s69, s23, 1
    s_lshl_b32 s3, s69, 5
    s_add_u32 s3, s3, s20
    s_mul_i32 s3, s3, {TS_STRIDE}
    s_add_u32 s8, s4, s3
    s_addc_u32 s9, s5, 0
    s_xor_b32 s69, s69, 1
    s_lshl_b32 s3, s69, 5
    s_add_u32 s3, s3, s20
    s_mul_i32 s3, s3, {TS_STRIDE}
    s_add_u32 s12, s4, s3
    s_addc_u32 s13, s5, 0
    s_add_u32 s3, s23, 1
    s_lshl_b32 s3, s3, 5
    s_add_u32 s3, s3, s20
    s_mul_i32 s3, s3, {TS_STRIDE}
    s_add_u32 s3, s3, {OFF_T}
    s_add_u32 s24, s4, s3
    s_addc_u32 s25, s5, 0
    s_cmp_lg_u32 s49, 0
    s_cbranch_scc1 K3_SLOWHOP
    """)
    def dma(goff, nins, ldsbase):
        rounds=(nins+15)//16
        for r in range(rounds):
            lab=None
            if (r+1)*16>nins:
                lab=e.lab('DS'); e(f"s_cmp_ge_u32 s22, {nins-r*16}\ns_cbranch_scc1 {lab}")
            e(f"s_lshl_b32 s3, s22, 10\ns_add_u32 m0, s3, {ldsbase+r*16384}\ns_add_u32 s3, s3, {goff+r*16384}\nbuffer_load_dwordx4 v{v16}, s[8:11], s3 offen sc1 lds")
            if lab: e(f"{lab}:")
    dma(0,64,BUF0)
    for i in range(16): e(f"v_mov_b32 v{ACC+i}, 0")
    def issue(X,g):
        s=g%(PD+1); out=[]
        for k in range(2):
            rr=IDX+RB[X]+2*g+k
            out.append(f"v_lshlrev_b32_sdwa v{TMP+2*k}, 3, v{rr} dst_sel:DWORD dst_unused:UNUSED_PAD src0_sel:DWORD src1_sel:WORD_0")
            out.append(f"v_lshlrev_b32_sdwa v{TMP+2*k+1}, 3, v{rr} dst_sel:DWORD dst_unused:UNUSED_PAD src0_sel:DWORD src1_sel:WORD_1")
        for k in range(2):
            d=DAT+8*s+4*k
            out.append(f"ds_read_b64 v[{d}:{d+1}], v{TMP+2*k}")
            out.append(f"ds_read_b64 v[{d+2}:{d+3}], v{TMP+2*k+1}")
        return out
    def phase(X):
        RX=RXS[X]; NG=RX//2
        e(f"s_mov_b32 s54, s{35+X}")
        for g in range(PD): e("\n".join(issue(X,g)))
        def mfma(b,r):
            d=DAT+8*((r//2)%(PD+1))+4*(r%2)
            return f"v_mfma_f32_16x16x32_bf16 v[{ACC+4*b}:{ACC+4*b+3}], v[{AC}:{AC+3}], v[{d}:{d+3}], v[{ACC+4*b}:{ACC+4*b+3}]"
        def body(b):
            out=[]
            for r in range(RX):
                g=r//2
                out.append(f"E_{X}_{b}_{r}:")
                if r%2==0:
                    if g+PD<NG:
                        out+=issue(X,g+PD); out.append(f"s_waitcnt lgkmcnt({4*PD})")
                    else:
                        out.append(f"s_waitcnt lgkmcnt({4*(NG-1-g)})")
                out.append(mfma(b,r))
                if r<RX-1:
                    out.append(f"s_bitcmp1_b32 s54, {r}")
                    out.append(f"s_cbranch_scc1 E_{X}_{b+1}_{r+1}" if b<3 else f"s_cbranch_scc1 PE_{X}")
            out.append(f"s_branch PE_{X}")
            return "\n".join(out)+"\n"
        for b in range(1,4): e(f"s_cmp_eq_u32 s38, {b}"); e(f"s_cbranch_scc1 E_{X}_{b}_0")
        e(body(0))
        for b in range(1,4): ool.append(body(b))
        e(f"PE_{X}:\ns_waitcnt lgkmcnt(0)")
    e("s_waitcnt vmcnt(0)")
    dma(65536,64,BUF1)
    e("s_barrier")
    phase(0)
    e("s_waitcnt vmcnt(0)\ns_barrier")
    dma(131072,68,BUF0)
    phase(1)
    e("s_waitcnt vmcnt(0)\ns_barrier")
    phase(2)
    e("K3_EPI:\ns_nop 7\ns_nop 1")
    for b in range(4):
        a=ACC+4*b; t=DAT+2*b
        for r in range(4): e(f"v_mul_f32 v{a+r}, v{a+r}, v{vD+b}")
        e(f"v_cvt_pk_bf16_f32 v{t}, v{a}, v{a+1}\nv_cvt_pk_bf16_f32 v{t+1}, v{a+2}, v{a+3}")
        e(f"ds_write_b64 v{vL+b}, v[{t}:{t+1}]")
    e("s_waitcnt lgkmcnt(0)\ns_barrier")
    e(f"ds_read_b128 v[{DAT}:{DAT+3}], v{vC}\nds_read_b128 v[{DAT+4}:{DAT+7}], v{vC} offset:16384")
    def tstores():
        for t in range(2):
            d=DAT+4*t
            e(f"buffer_store_dwordx4 v[{d}:{d+3}], v{CO+t}, s[24:27], 0 offen")
    e(f"s_add_u32 s23, s23, 1\ns_cmp_ge_u32 s23, {NH}\ns_cbranch_scc1 K3_FIN")
    for t in range(2):
        d=DAT+4*t; a=ACC+8*t; o=DAT+8+4*t
        e(f"s_waitcnt lgkmcnt({1-t})")
        for r in range(4):
            e(f"v_lshlrev_b32 v{a+2*r}, 16, v{d+r}\nv_and_b32 v{a+2*r+1}, s51, v{d+r}")
        for r in range(8): e(f"v_mul_f32 v{a+r}, v{a+r}, v{CD+2*t+(r//4)}")
        for r in range(4): e(f"v_cvt_pk_bf16_f32 v{o+r}, v{a+2*r}, v{a+2*r+1}")
    e("s_cmp_lg_u32 s50, 0\ns_cbranch_scc1 K3_GS1")
    for t in range(2):
        o=DAT+8+4*t; e(f"buffer_store_dwordx4 v[{o}:{o+3}], v{CO+t}, s[12:15], 0 offen")
    e("s_branch K3_GS2\nK3_GS1:")
    for t in range(2):
        o=DAT+8+4*t; e(f"buffer_store_dwordx4 v[{o}:{o+3}], v{CO+t}, s[12:15], 0 offen sc1")
    e("K3_GS2:\ns_waitcnt vmcnt(0)\ns_barrier")
    e("s_cmp_eq_u32 s22, 0\ns_cbranch_scc1 K3_W0"); tstores(); e("s_branch K3_WAIT\nK3_W0:")
    e(f"""
    v_mov_b32 v{TMP}, s67
    v_mov_b32 v{TMP+1}, s23
    v_cmp_eq_u32 vcc, 0, v1
    s_and_saveexec_b64 s[30:31], vcc
    s_cmp_lg_u32 s50, 0
    s_cbranch_scc1 K3_FS1
    global_store_dword v{TMP}, v{TMP+1}, s[4:5]
    s_branch K3_FS2
    K3_FS1:
    global_store_dword v{TMP}, v{TMP+1}, s[4:5] sc1
    K3_FS2:
    s_mov_b64 exec, s[30:31]
    v_and_b32 v{TMP}, 7, v1
    v_lshlrev_b32 v{TMP}, 5, v{TMP}
    v_add_u32 v{TMP}, s66, v{TMP}
    K3_POLL:
    global_load_dword v{TMP+1}, v{TMP}, s[4:5] sc1
    s_waitcnt vmcnt(0)
    v_cmp_gt_u32 vcc, s23, v{TMP+1}
    s_cbranch_vccnz K3_POLL
    """)
    tstores()
    e("K3_WAIT:\ns_barrier")
    if TS:
        lab=e.lab('TS')
        e(f"s_cmp_lg_u32 s68, 0\ns_cbranch_scc1 {lab}"); stamp(4); e(f"{lab}:")
    e("s_branch K3_HOP")
    e(f"""
    K3_SLOWHOP:
    s_add_u32 s52, s4, {OFF_NOFF}
    s_addc_u32 s53, s5, 0
    s_mov_b32 s54, {25088*16}
    s_mov_b32 s55, 0x20000
    s_add_u32 s56, s4, {OFF_ENT}
    s_addc_u32 s57, s5, 0
    s_mov_b32 s58, {ENT_BYTES}
    s_mov_b32 s59, 0x20000
    """)
    for s in range(4):
        L=e.lab('SL'); Lx=e.lab('SX')
        a=ACC+4*s
        e(f"""
        v_mov_b32 v{a}, 0
        v_mov_b32 v{a+1}, 0
        v_mov_b32 v{a+2}, 0
        v_mov_b32 v{a+3}, 0
        s_add_u32 s3, s22, {16*s}
        s_lshl_b32 s3, s3, 6
        v_add_u32 v{DAT}, s3, v1              ; local
        v_cmp_gt_u32 vcc, {PN}, v{DAT}
        s_and_saveexec_b64 s[30:31], vcc
        s_cbranch_execz {Lx}
        v_add_u32 v{DAT}, s41, v{DAT}
        v_lshlrev_b32 v{DAT}, 4, v{DAT}
        buffer_load_dwordx4 v[{DAT+4}:{DAT+7}], v{DAT}, s[52:55], 0 offen
        s_waitcnt vmcnt(0)
        v_mov_b32 v{DAT+1}, v{DAT+4}          ; pos
        {L}:
        v_cmp_lt_u32 vcc, v{DAT+1}, v{DAT+7}
        s_and_b64 exec, exec, vcc
        s_cbranch_execz {Lx}
        v_lshlrev_b32 v{DAT+2}, 1, v{DAT+1}
        buffer_load_ushort v{DAT+3}, v{DAT+2}, s[56:59], 0 offen
        s_waitcnt vmcnt(0)
        v_cmp_le_u32 vcc, v{DAT+5}, v{DAT+1}           ; pos>=offB
        v_subrev_u32 v{DAT+8}, 512, v{DAT+3}
        s_nop 0
        v_cndmask_b32 v{DAT+9}, v{DAT+3}, v{DAT+8}, vcc
        v_cmp_le_u32 vcc, v{DAT+6}, v{DAT+1}           ; pos>=offC
        v_add_u32 v{DAT+8}, 0x4000, v{DAT+3}
        s_nop 0
        v_cndmask_b32 v{DAT+9}, v{DAT+9}, v{DAT+8}, vcc
        v_cmp_eq_u32 vcc, {ZSI}, v{DAT+3}
        v_lshlrev_b32 v{DAT+9}, 3, v{DAT+9}
        v_mov_b32 v{DAT+8}, 0x7ffffff0
        s_nop 0
        v_cndmask_b32 v{DAT+9}, v{DAT+9}, v{DAT+8}, vcc
        s_mov_b32 s10, {N*8}
        buffer_load_dwordx2 v[{DAT+10}:{DAT+11}], v{DAT+9}, s[8:11], 0 offen sc1
        s_waitcnt vmcnt(0)
        v_lshlrev_b32 v{DAT+12}, 16, v{DAT+10}
        v_and_b32 v{DAT+13}, s51, v{DAT+10}
        v_lshlrev_b32 v{DAT+14}, 16, v{DAT+11}
        v_and_b32 v{DAT+15}, s51, v{DAT+11}
        v_add_f32 v{a}, v{a}, v{DAT+12}
        v_add_f32 v{a+1}, v{a+1}, v{DAT+13}
        v_add_f32 v{a+2}, v{a+2}, v{DAT+14}
        v_add_f32 v{a+3}, v{a+3}, v{DAT+15}
        v_add_u32 v{DAT+1}, 1, v{DAT+1}
        s_branch {L}
        {Lx}:
        s_mov_b64 exec, s[30:31]
        """)
    e(f"s_mov_b32 s10, {TS_STRIDE}\ns_branch K3_EPI")
    for o in ool: e(o)
    e("K3_FIN:\ns_waitcnt lgkmcnt(0)")
    tstores()
    if TS:
        e(f"s_cmp_lg_u32 s2, 41\ns_cbranch_scc1 K3_END\ns_memtime s[62:63]\ns_waitcnt lgkmcnt(0)\ns_sub_u32 s81, s62, s60")
        for k in range(6): e(f"v_writelane_b32 v{TMP+7}, s{76+k}, {k}")
        e(f"s_lshl_b32 s3, s22, 6\ns_add_u32 s3, s3, {OFF_DBG}\nv_lshlrev_b32 v{TMP+6}, 2, v1\nv_add_u32 v{TMP+6}, s3, v{TMP+6}\nv_cmp_gt_u32 vcc, 6, v1\ns_and_saveexec_b64 s[30:31], vcc\nglobal_store_dword v{TMP+6}, v{TMP+7}, s[4:5]")
    e("K3_END:")
    return e.text(),NV,96
```

```python
from glib import E, kernel_text
from layout import *
WOFF=0; SWOFF=65536; BLK0=73728; BLKS=33024; K4_LDS=BLK0+2*BLKS
DBGMAP={}
def gen_k4(DBG=False,TS=False,TSR=2):
    e=E()
    TF=0+8
    TL=40
    UF=72
    AA=104
    AB=120
    SC=136
    SF=152
    WF=160
    PF=176
    ST=184
    DD=188
    X=204
    VB1=236; VB2=237; VW=238; VOUT=239; VDMA=240; RHO=241; PP=242; VW2=246
    NV=248
    s_ws=4;
    e(f"""
    s_cmp_ge_u32 s2, 256
    s_cbranch_scc1 K4_END
    s_load_dwordx2 s[4:5], s[0:1], 88
    s_load_dwordx2 s[6:7], s[0:1], 72
    s_memtime s[60:61]
    v_lshrrev_b32 v2, 6, v0
    v_and_b32 v1, 63, v0
    s_nop 0
    v_readfirstlane_b32 s22, v2       ; wave
    s_waitcnt lgkmcnt(0)
    s_add_u32 s8, s4, {OFF_T}
    s_addc_u32 s9, s5, 0
    s_mov_b32 s10, {T_BYTES}
    s_mov_b32 s11, 0x20000
    s_mov_b32 s12, s6
    s_mov_b32 s13, s7
    s_mov_b32 s14, {N*256}
    s_mov_b32 s15, 0x20000
    s_add_u32 s16, s4, {OFF_W}
    s_addc_u32 s17, s5, 0
    s_mov_b32 s18, 73728
    s_mov_b32 s19, 0x20000
    s_lshr_b32 s23, s22, 2
    s_and_b32 s24, s22, 3
    v_lshlrev_b32 v2, 4, v1
    s_lshl_b32 s3, s22, 10
    """)
    for r in range(9):
        e(f"s_add_u32 m0, s3, {r*8192}\ns_add_u32 s25, s3, {r*8192}\nbuffer_load_dwordx4 v2, s[16:19], s25 offen lds")
    e(f"""
    v_lshrrev_b32 v3, 3, v1
    s_mov_b32 s3, {TS_STRIDE}
    v_mul_lo_u32 v3, v3, s3
    v_and_b32 v4, 7, v1
    v_lshlrev_b32 v4, 4, v4
    v_add_u32 v{VDMA}, v3, v4
    s_mul_i32 s26, s23, {BLKS}
    s_add_u32 s26, s26, {BLK0}
    v_and_b32 v3, 7, v1
    v_mul_u32_u24 v3, 4128, v3
    v_bfe_u32 v4, v1, 3, 2
    v_lshlrev_b32 v4, 3, v4
    v_add_u32 v3, v3, v4
    v_lshrrev_b32 v4, 5, v1
    v_lshlrev_b32 v4, 8, v4
    v_add_u32 v3, v3, v4
    s_lshl_b32 s3, s24, 5
    s_add_u32 s3, s3, s26
    v_add_u32 v{VB1}, s3, v3
    v_lshrrev_b32 v3, 5, v1
    v_lshlrev_b32 v3, 2, v3
    v_bfe_u32 v4, v1, 2, 2
    v_add_u32 v3, v3, v4
    v_mul_u32_u24 v3, 4128, v3
    v_bfe_u32 v4, v1, 4, 1
    v_lshlrev_b32 v4, 2, v4
    v_and_b32 v5, 1, v1
    v_lshlrev_b32 v5, 1, v5
    v_add_u32 v4, v4, v5
    v_bfe_u32 v5, v1, 1, 1
    v_add_u32 v4, v4, v5
    v_lshlrev_b32 v4, 7, v4
    v_add_u32 v3, v3, v4
    v_add_u32 v{VB2}, s3, v3
    v_lshlrev_b32 v{VW}, 4, v1
    v_add_u32 v{VW2}, 32768, v{VW}
    v_bfe_u32 v3, v1, 2, 1
    v_lshlrev_b32 v3, 3, v3
    v_bfe_u32 v4, v1, 3, 1
    v_lshlrev_b32 v4, 2, v4
    v_add_u32 v3, v3, v4
    v_and_b32 v4, 3, v1
    v_add_u32 v3, v3, v4
    v_lshlrev_b32 v3, 1, v3
    v_lshrrev_b32 v4, 5, v1
    v_lshlrev_b32 v4, 8, v4
    v_add_u32 v3, v3, v4
    v_bfe_u32 v4, v1, 4, 1
    v_cmp_eq_u32 vcc, 1, v4
    v_mov_b32 v5, 0x7f000000
    s_nop 0
    v_cndmask_b32 v{VOUT}, v3, v5, vcc
    s_mov_b32 s40, 0xff
    s_mov_b32 s41, 0xff
    s_lshl_b64 s[42:43], s[40:41], 8
    s_lshl_b64 s[44:45], s[40:41], 16
    s_lshl_b64 s[46:47], s[40:41], 24
    """)
    for ee in range(2):
        lo=0;hi=0
        for p in range(2):
            lo|=1<<(16*p+2*ee+p); hi|=1<<(16*p+8+2*ee+p)
        e(f"s_mov_b32 s{48+4*ee}, {lo:#x}\ns_mov_b32 s{49+4*ee}, {lo:#x}\ns_mov_b32 s{50+4*ee}, {hi:#x}\ns_mov_b32 s{51+4*ee}, {hi:#x}")
    e(f"""
    s_mov_b32 s56, 0xffff0000
    s_mov_b32 s57, 0x3c000000      ; 1/128
    s_mov_b32 s58, 0x3727c5ac      ; 1e-5
    s_mov_b32 s27, 0               ; round
    """)
    dbgn=[0]
    def dump(name,regs):
        if not DBG: return
        lab=e.lab('DG')
        e(f"s_cmp_lg_u32 s2, 0\ns_cbranch_scc1 {lab}\ns_cmp_lg_u32 s22, 0\ns_cbranch_scc1 {lab}\ns_cmp_lg_u32 s27, 1\ns_cbranch_scc1 {lab}\ns_nop 7\ns_nop 7")
        e(f"v_lshlrev_b32 v7, 2, v1")
        for r in regs:
            e(f"v_add_u32 v6, {OFF_DBG+dbgn[0]*256}, v7\nglobal_store_dword v6, v{r}, s[4:5]")
            DBGMAP.setdefault(name,[]).append(dbgn[0]); dbgn[0]+=1
        e(f"s_waitcnt vmcnt(0)\n{lab}:")
    def stamp(idx):
        if not TS: return
        lab=e.lab('TS')
        e(f"s_cmp_lg_u32 s27, {TSR}\ns_cbranch_scc1 {lab}\ns_memtime s[62:63]\ns_waitcnt lgkmcnt(0)\ns_sub_u32 s{64+idx}, s62, s60\n{lab}:")
    def blockid():
        e(f"""
        s_mul_i32 s28, s2, 6
        s_lshl_b32 s3, s27, 1
        s_add_u32 s28, s28, s3
        s_add_u32 s28, s28, s23
        s_add_u32 s3, s2, 1536
        s_cmp_eq_u32 s27, 3
        s_cselect_b32 s28, s3, s28
        """)
    def dma():
        e(f"""
        s_lshl_b32 s29, s28, 7              ; node0*8
        s_lshl_b32 s3, s24, 1
        s_mul_i32 s30, s3, {32*TS_STRIDE}
        s_add_u32 s29, s29, s30
        s_mul_i32 s31, s3, 4128
        s_add_u32 s31, s31, s26
        """)
        for kk in range(2):
            for o in range(4):
                e(f"s_add_u32 m0, s31, {kk*4128+o*1024}\ns_add_u32 s3, s29, {(kk*32+8*o)*TS_STRIDE}\nbuffer_load_dwordx4 v{VDMA}, s[8:11], s3 offen lds")
    blockid(); dma()
    e("K4_ROUND:")
    e("s_add_u32 s27, s27, 1"); stamp(0); e("s_sub_u32 s27, s27, 1")
    e("s_waitcnt vmcnt(0)"); e("s_add_u32 s27, s27, 1"); stamp(1); e("s_sub_u32 s27, s27, 1"); e("s_barrier"); e("s_add_u32 s27, s27, 1"); stamp(2); e("s_sub_u32 s27, s27, 1")
    for ks in range(8):
        off=(ks>>1)*1024+(ks&1)*512
        e(f"ds_read_b64 v[{TF+4*ks}:{TF+4*ks+1}], v{VB1} offset:{off}\nds_read_b64 v[{TF+4*ks+2}:{TF+4*ks+3}], v{VB1} offset:{off+128}")
    e("s_waitcnt lgkmcnt(8)")
    for nt in range(4):
        for ee in range(2):
            for jj in range(2):
                d=TL+8*nt+4*ee+2*jj
                e(f"ds_read_b64_tr_b16 v[{d}:{d+1}], v{VB2} offset:{nt*1024+(2*ee+jj)*8}")
        if nt==1: e("s_waitcnt lgkmcnt(8)")
    e(f"s_mov_b32 s32, s28\ns_waitcnt lgkmcnt(0)\ns_barrier")
    e(f"""
    s_add_u32 s27, s27, 1
    s_mov_b32 s33, 1
    s_cmp_lt_u32 s27, 3
    s_cbranch_scc1 K4_NEXT
    s_mov_b32 s33, 0
    s_cmp_lg_u32 s27, 3
    s_cbranch_scc1 K4_NONEXT
    s_cmp_ge_u32 s2, 27
    s_cbranch_scc1 K4_NONEXT
    s_cmp_ge_u32 s22, 4
    s_cbranch_scc1 K4_NONEXT
    s_mov_b32 s33, 1
    K4_NEXT:
    """)
    blockid(); dma()
    e("K4_NONEXT:"); stamp(3)
    def wread(idx,off):
        reg=VW
        if off>=32768: reg=VW2; off-=32768
        e(f"ds_read_b128 v[{WF+4*(idx%4)}:{WF+4*(idx%4)+3}], v{reg} offset:{off}")
    R4=lambda b: f"v[{b}:{b+3}]"
    R16=lambda b: f"v[{b}:{b+15}]"
    for i in range(4): e(f"v_mov_b32 v{ST+i}, 0")
    for i in range(4): e(f"v_mov_b32 v{X+i}, 0")
    for ks in range(3): wread(ks,SWOFF+ks*1024)
    for ks in range(8):
        if ks+3<8: wread(ks+3,SWOFF+(ks+3)*1024); e("s_waitcnt lgkmcnt(3)")
        else: e(f"s_waitcnt lgkmcnt({7-ks})")
        e(f"v_mfma_f32_16x16x32_bf16 {R4(ST)}, {R4(WF+4*(ks%4))}, {R4(TF+4*ks)}, {R4(ST)}")
        for i in range(4): e(f"v_dot2c_f32_bf16 v{X+i}, v{TF+4*ks+i}, v{TF+4*ks+i}")
    stamp(4)
    for i in range(16): e(f"v_mov_b32 v{SC+i}, 0")
    seq=[(mt,ks) for mt in range(4) for ks in range(8)]
    for n in range(3): wread(n, (seq[n][0]*8+seq[n][1])*1024)
    for n,(mt,ks) in enumerate(seq):
        acc=AA if mt%2==0 else AB
        if n+3<32: wread(n+3,(seq[n+3][0]*8+seq[n+3][1])*1024); e("s_waitcnt lgkmcnt(3)")
        else: e(f"s_waitcnt lgkmcnt({31-n})")
        c = "0" if ks==0 else R16(acc)
        e(f"v_mfma_f32_32x32x16_bf16 {R16(acc)}, {R4(WF+4*(n%4))}, {R4(TF+4*ks)}, {c}")
        if ks==7:
            for ee in range(2):
                for i in range(4): e(f"v_cvt_pk_bf16_f32 v{SF+4*ee+i}, v{acc+8*ee+2*i}, v{acc+8*ee+2*i+1}")
            for ee in range(2):
                e(f"v_mfma_f32_32x32x16_bf16 {R16(SC)}, {R4(TF+4*(2*mt+ee))}, {R4(SF+4*ee)}, {R16(SC)}")
    stamp(5)
    e(f"""
    v_add_f32 v{X}, v{X}, v{X+1}
    v_add_f32 v{X+2}, v{X+2}, v{X+3}
    v_add_f32 v{X}, v{X}, v{X+2}
    v_mov_b32 v{X+1}, v{X}
    v_permlane32_swap_b32 v{X}, v{X+1}
    v_add_f32 v{X}, v{X}, v{X+1}
    v_mul_f32 v{X+1}, s57, v{ST}
    v_mul_f32 v{X}, s57, v{X}
    v_fma_f32 v{X}, -v{X+1}, v{X+1}, v{X}
    v_add_f32 v{X}, s58, v{X}
    v_rsq_f32 v{RHO}, v{X}
    """)
    dump('rho',[RHO]); dump('st1',[ST]); dump('sc',range(SC,SC+16)); dump('tf',range(TF,TF+32)); dump('tl',range(TL,TL+32))
    for n in range(3): wread(n, 32768+(seq[n][0]*8+seq[n][1])*1024)
    for n,(nt,ks) in enumerate(seq):
        acc=AA if nt%2==0 else AB
        if n+3<32: wread(n+3,32768+(seq[n+3][0]*8+seq[n+3][1])*1024); e("s_waitcnt lgkmcnt(3)")
        else: e(f"s_waitcnt lgkmcnt({31-n})")
        c = "0" if ks==0 else R16(acc)
        e(f"v_mfma_f32_32x32x16_bf16 {R16(acc)}, {R4(TF+4*ks)}, {R4(WF+4*(n%4))}, {c}")
        if ks==7:
            for ee in range(2):
                for i in range(4): e(f"v_cvt_pk_bf16_f32 v{UF+8*nt+4*ee+i}, v{acc+8*ee+2*i}, v{acc+8*ee+2*i+1}")
    stamp(6)
    def keygather(src,y):
        e(f"""v_mov_b32 v{y}, v{src}
        v_mov_b32_dpp v{y}, v{src} row_shr:4 row_mask:0x3 bank_mask:0xa
        v_mov_b32_dpp v{y}, v{src} row_shl:4 row_mask:0xc bank_mask:0x5""")
    Y=X+4; XS=X+8; RK=X+12; T0=X+16
    keygather(RHO,Y)
    for i in range(4):
        e(f"v_mov_b32_dpp v{RK+i}, v{Y} quad_perm:[{i},{i},{i},{i}] row_mask:0xf bank_mask:0xf")
        e(f"v_cndmask_b32 v{XS+i}, v{SC+i}, v{SC+4+i}, s[42:43]")
        e(f"v_cndmask_b32 v{XS+i}, v{XS+i}, v{SC+8+i}, s[44:45]")
        e(f"v_cndmask_b32 v{XS+i}, v{XS+i}, v{SC+12+i}, s[46:47]")
    for i in range(4):
        e(f"v_mul_f32 v{XS+i}, v{XS+i}, v{RHO}\nv_mul_f32 v{XS+i}, v{XS+i}, v{RK+i}")
    e(f"""
    v_max3_f32 v{T0}, v{XS}, v{XS+1}, v{XS+2}
    v_max_f32 v{T0}, v{T0}, v{XS+3}
    v_mov_b32 v{T0+1}, v{T0}
    v_permlane32_swap_b32 v{T0}, v{T0+1}
    v_max_f32 v{T0}, v{T0}, v{T0+1}
    """)
    for i in range(4): e(f"v_sub_f32 v{XS+i}, v{XS+i}, v{T0}\nv_exp_f32 v{XS+i}, v{XS+i}")
    e(f"""
    v_add_f32 v{T0}, v{XS}, v{XS+1}
    v_add_f32 v{T0+1}, v{XS+2}, v{XS+3}
    v_add_f32 v{T0}, v{T0}, v{T0+1}
    v_mov_b32 v{T0+1}, v{T0}
    v_permlane32_swap_b32 v{T0}, v{T0+1}
    v_add_f32 v{T0}, v{T0}, v{T0+1}
    v_rcp_f32 v{T0}, v{T0}
    """)
    for i in range(4): e(f"v_mul_f32 v{XS+i}, v{XS+i}, v{T0}\nv_mul_f32 v{PP+i}, v{XS+i}, v{RK+i}")
    e(f"v_cvt_pk_bf16_f32 v{T0}, v{PP}, v{PP+1}\nv_cvt_pk_bf16_f32 v{T0+1}, v{PP+2}, v{PP+3}")
    for ee in range(2):
        for half in range(2):
            q=2*ee+half
            e(f"v_cndmask_b32 v{PF+4*ee+2*half}, 0, v{T0}, s[{40+2*q}:{41+2*q}]\nv_cndmask_b32 v{PF+4*ee+2*half+1}, 0, v{T0+1}, s[{40+2*q}:{41+2*q}]")
    dump('pp',range(PP,PP+4)); dump('pf',range(PF,PF+8)); dump('uf',range(UF,UF+32))
    stamp(7)
    for i in range(4): e(f"v_mov_b32 v{ST+i}, 0")
    for i in range(4): e(f"v_mov_b32 v{X+i}, 0")
    for n in range(3): wread(n,SWOFF+n*1024)
    for nt in range(4):
        acc=AA if nt%2==0 else AB
        for r in range(16):
            src=TF+4*(2*nt+(r>>3))+((r&7)>>1)
            if r&1: e(f"v_and_b32 v{acc+r}, s56, v{src}")
            else: e(f"v_lshlrev_b32 v{acc+r}, 16, v{src}")
        for ee in range(2):
            e(f"v_mfma_f32_32x32x16_bf16 {R16(acc)}, {R4(UF+8*nt+4*ee)}, {R4(PF+4*ee)}, {R16(acc)}")
        for ee in range(2):
            for i in range(4): e(f"v_cvt_pk_bf16_f32 v{SF+4*ee+i}, v{acc+8*ee+2*i}, v{acc+8*ee+2*i+1}")
        for ee in range(2):
            ks=2*nt+ee
            if ks+3<8: wread(ks+3,SWOFF+(ks+3)*1024); e("s_waitcnt lgkmcnt(3)")
            else: e(f"s_waitcnt lgkmcnt({7-ks})")
            e(f"v_mfma_f32_16x16x32_bf16 {R4(ST)}, {R4(WF+4*(ks%4))}, {R4(SF+4*ee)}, {R4(ST)}")
            for i in range(4): e(f"v_dot2c_f32_bf16 v{X+i}, v{SF+4*ee+i}, v{SF+4*ee+i}")
    stamp(8)
    AL=X+4
    e(f"""
    v_add_f32 v{X}, v{X}, v{X+1}
    v_add_f32 v{X+2}, v{X+2}, v{X+3}
    v_add_f32 v{X}, v{X}, v{X+2}
    v_mov_b32 v{X+1}, v{X}
    v_permlane32_swap_b32 v{X}, v{X+1}
    v_add_f32 v{X}, v{X}, v{X+1}
    v_mul_f32 v{X+1}, s57, v{ST}
    v_mul_f32 v{X}, s57, v{X}
    v_fma_f32 v{X}, -v{X+1}, v{X+1}, v{X}
    v_add_f32 v{X}, s58, v{X}
    v_rsq_f32 v{X}, v{X}
    v_add_f32 v{X+1}, v{ST+1}, v{ST+2}
    v_mul_f32 v{X}, v{X}, v{X+1}
    """)
    def red8(op,dst,src,tmp):
        e(f"""v_mov_b32_dpp v{tmp}, v{src} quad_perm:[1,0,3,2] row_mask:0xf bank_mask:0xf
        {op} v{dst}, v{src}, v{tmp}
        v_mov_b32_dpp v{tmp}, v{dst} quad_perm:[2,3,0,1] row_mask:0xf bank_mask:0xf
        {op} v{dst}, v{dst}, v{tmp}
        v_mov_b32_dpp v{tmp}, v{dst} row_half_mirror row_mask:0xf bank_mask:0xf
        {op} v{dst}, v{dst}, v{tmp}""")
    red8('v_max_f32',X+1,X,X+2)
    e(f"v_sub_f32 v{X}, v{X}, v{X+1}\nv_exp_f32 v{X}, v{X}")
    red8('v_add_f32',X+1,X,X+2)
    e(f"v_rcp_f32 v{X+1}, v{X+1}\nv_mul_f32 v{AL}, v{X}, v{X+1}")
    dump('st2',range(ST,ST+4)); dump('al',[AL])
    BE=X+8
    for i in range(4):
        e(f"v_mul_f32 v{PP+i}, v{PP+i}, v{AL}")
        red8('v_add_f32',BE+i,PP+i,X+2)
    AK=X+12
    keygather(AL,X+5)
    for i in range(4): e(f"v_mov_b32_dpp v{AK+i}, v{X+5} quad_perm:[{i},{i},{i},{i}] row_mask:0xf bank_mask:0xf")
    PK=X+16
    e(f"""
    v_cvt_pk_bf16_f32 v{PK}, v{BE}, v{BE+1}
    v_cvt_pk_bf16_f32 v{PK+1}, v{BE+2}, v{BE+3}
    v_cvt_pk_bf16_f32 v{PK+2}, v{AK}, v{AK+1}
    v_cvt_pk_bf16_f32 v{PK+3}, v{AK+2}, v{AK+3}
    """)
    for i in range(4): e(f"v_mov_b32 v{PK+4+i}, v{PK+i}")
    for i in range(4): e(f"v_permlane16_swap_b32 v{PK+i}, v{PK+4+i}")
    dump('be',range(BE,BE+4)); dump('ak',range(AK,AK+4)); dump('pk',range(PK,PK+8))
    stamp(9)
    for ee in range(2):
        kl=f"s[{48+4*ee}:{49+4*ee}]"; kh=f"s[{50+4*ee}:{51+4*ee}]"
        for w,(b0) in enumerate((0,2)):
            base=SC+8*w+4*ee; src=PK+4*ee+b0
            e(f"v_cndmask_b32 v{base}, 0, v{src}, {kl}\nv_cndmask_b32 v{base+1}, 0, v{src+1}, {kl}\nv_cndmask_b32 v{base+2}, 0, v{src}, {kh}\nv_cndmask_b32 v{base+3}, 0, v{src+1}, {kh}")
    for nt in range(4):
        d=DD+4*nt
        e(f"v_mfma_f32_16x16x32_bf16 {R4(d)}, {R4(SC)}, {R4(UF+8*nt)}, 0")
        e(f"v_mfma_f32_16x16x32_bf16 {R4(d)}, {R4(SC+4)}, {R4(UF+8*nt+4)}, {R4(d)}")
        e(f"v_mfma_f32_16x16x32_bf16 {R4(d)}, {R4(SC+8)}, {R4(TL+8*nt)}, {R4(d)}")
        e(f"v_mfma_f32_16x16x32_bf16 {R4(d)}, {R4(SC+12)}, {R4(TL+8*nt+4)}, {R4(d)}")
    dump('ra',range(SC,SC+16)); dump('dd',range(DD,DD+16))
    stamp(10)
    e(f"""
    s_lshl_b32 s3, s32, 12
    s_lshl_b32 s34, s24, 10
    s_add_u32 s34, s34, s3
    """)
    for nt in range(4):
        d=DD+4*nt; t=X+2*nt
        e(f"v_cvt_pk_bf16_f32 v{t}, v{d}, v{d+1}\nv_cvt_pk_bf16_f32 v{t+1}, v{d+2}, v{d+3}")
        e(f"buffer_store_short v{t}, v{VOUT}, s[12:15], s34 offen offset:{64*nt}")
        e(f"buffer_store_short_d16_hi v{t}, v{VOUT}, s[12:15], s34 offen offset:{64*nt+32}")
        e(f"buffer_store_short v{t+1}, v{VOUT}, s[12:15], s34 offen offset:{64*nt+512}")
        e(f"buffer_store_short_d16_hi v{t+1}, v{VOUT}, s[12:15], s34 offen offset:{64*nt+512+32}")
    stamp(11)
    e(f"""
    s_cmp_eq_u32 s33, 1
    s_cbranch_scc1 K4_ROUND
    """)
    if TS:
        e("s_cmp_lg_u32 s2, 37\ns_cbranch_scc1 K4_END\ns_memtime s[62:63]\ns_waitcnt lgkmcnt(0)\ns_sub_u32 s76, s62, s60")
        for k in range(13): e(f"v_writelane_b32 v7, s{64+k}, {k}")
        e(f"s_lshl_b32 s3, s22, 6\ns_add_u32 s3, s3, {OFF_DBG}\nv_lshlrev_b32 v6, 2, v1\nv_add_u32 v6, s3, v6\nv_cmp_gt_u32 vcc, 13, v1\ns_and_saveexec_b64 s[30:31], vcc\nglobal_store_dword v6, v7, s[4:5]")
    e("K4_END:")
    return e.text(), NV, 96
```

```python
N=25000; EDG=400000
TS_STRIDE=25344*8
OFF_G=0
OFF_T=2*32*TS_STRIDE
T_BYTES=8*32*TS_STRIDE
OFF_W=OFF_T+T_BYTES
OFF_CH=OFF_W+128*1024
NCH=100; CHE=4000
NBIN=128; BINN=196
OFF_OFFS=OFF_CH+EDG*4
OFF_ENT=OFF_OFFS+64*1024
ENT_BYTES=1024*1024
OFF_NOFF=OFF_ENT+ENT_BYTES
OFF_FL=OFF_NOFF+512*1024
OFF_DBG=OFF_FL+64*1024
PN=3136
def swap23(i): return (i&0x13)|((i&4)<<1)|((i&8)>>1)
```

```python
import sys
sys.path.insert(0,'dev')
from glib import *
import hazard
def K(name,gen,**kw):
    b,vg,sg=gen(**kw); b,n=hazard.fix(b); return kernel_text(name,b,vg,sg)
if __name__=='__main__':
    from k1 import *; from k2 import *
    what=sys.argv[1]
    L=[('prep1_kernel',K1_GRID,1024,K1_LDS),('prep2_kernel',128,1024,K2_LDS)]
    Ks=[K('prep1_kernel',gen_k1),K('prep2_kernel',gen_k2)]
    if what in('123','all'):
        from k3 import *
        L.append(('hops_kernel',256,1024,K3_LDS)); Ks.append(K('hops_kernel',gen_k3,TS='ts' in sys.argv, DBG='dbg' in sys.argv, FORCE_SLOW='slow' in sys.argv, FORCE_SLOWSYNC='slowsync' in sys.argv))
    if what=='all':
        from k4 import *
        L.append(('final_kernel',256,512,K4_LDS)); Ks.append(K('final_kernel',gen_k4))
    open(sys.argv[2],'w').write(file_text(L,Ks))
```

```python
import sys
sys.path.insert(0,'dev')
from glib import *
from mkall import K
from prep import *; from k3 import *; from k4v3 import gen_k4,K4_LDS,K4_BLOCK
L=[('prep_kernel',P_GRID,1024,P_LDS),('hops_kernel',256,1024,K3_LDS),('final_kernel',256,K4_BLOCK,K4_LDS)]
Ks=[K('prep_kernel',gen_prep),K('hops_kernel',gen_k3,PD=1,TMODE=1,EXP='prio'),K('final_kernel',gen_k4)]
hdr=open('gather_scatter__hybrid_graph_tf_nagphormer__graph.s.ref').read().split('; Override launch')[0]
t=file_text(L,Ks)
out=hdr+t
dst=sys.argv[1] if len(sys.argv)>1 else 'gather_scatter__hybrid_graph_tf_nagphormer__graph.s'
open(dst,'w').write(out)
print(len(out))
```

```python
from glib import E
from layout import *
from prep import wave_scan, OFF_NINFO
RXS=[14,18,24]; RB=[0,14,32]; RT=56
ASG=[15, 3, 0, 13, 9, 6, 9, 4, 4, 10, 7, 4, 8, 0, 0, 13, 8, 5, 1, 11, 12, 14, 2, 5, 6, 1, 14, 14, 2, 5, 10, 15, 12, 11, 15, 11, 1, 0, 12, 3, 2, 4, 3, 10, 9, 6, 8, 13, 7]
BUF0=0; BUF1=69632; ZS=135168; DUMP=ZS+16; STG=BUF1
ECAP=131072; SA=131072; SB=SA+12544; HIST=SB+12544; MISC=HIST+4096
DP=MISC+128
SLOWF=MISC+132
BMAX=MISC+256
K3_LDS=BMAX+1024
ZSI=16896
FL_XC=OFF_FL+8192
def gen_k3(NH=7, TS=False, PD=2, FORCE_SLOW=False, FORCE_SLOWSYNC=False, DBG=False, GATE=True, TMODE=0):
    e=E()
    vL=2; vD=6; v16=10; vC=11; ACC=12; AC=28; DAT=32; TMP=56; CD=64; CO=68; IDX=72; NV=128
    ool=[]
    def stamp(idx):
        if not TS: return
        e(f"s_memtime s[62:63]\ns_waitcnt lgkmcnt(0)\ns_sub_u32 s{76+idx}, s62, s60")
    def pstamp(idx):
        if TS!=2: return
        e(f"s_memtime s[62:63]\ns_waitcnt lgkmcnt(0)\ns_sub_u32 s{82+idx}, s62, s60")
    def entdma(ks):
        for k in ks:
            e(f"s_add_u32 m0, s56, {k*16384}\ns_add_u32 s3, s50, {k*16384}\nbuffer_load_dwordx4 v{v16}, s[12:15], s3 offen lds")
    def hstamp(idx):
        if TS!=1: return
        lab=e.lab('HS')
        e(f"s_cmp_lg_u32 s68, 3\ns_cbranch_scc1 {lab}\ns_memtime s[62:63]\ns_waitcnt lgkmcnt(0)\ns_sub_u32 s{82+idx}, s62, s60\n{lab}:")
    e(f"""
    s_cmp_ge_u32 s2, 256
    s_cbranch_scc1 K3_END
    s_load_dwordx2 s[4:5], s[0:1], 88
    s_load_dwordx2 s[6:7], s[0:1], 24
    s_memtime s[60:61]
    s_and_b32 s20, s2, 7
    s_lshl_b32 s20, s20, 2
    s_lshr_b32 s3, s2, 3
    s_and_b32 s3, s3, 3
    s_add_u32 s20, s20, s3          ; g
    s_lshr_b32 s21, s2, 5           ; p
    v_lshrrev_b32 v{TMP}, 6, v0
    v_and_b32 v1, 63, v0
    s_getreg_b32 s44, hwreg(HW_REG_XCC_ID, 0, 4)
    v_readfirstlane_b32 s22, v{TMP}   ; wave
    s_mul_i32 s41, s21, {PN}
    s_waitcnt lgkmcnt(0)
    s_lshl_b32 s3, s20, 6
    s_add_u32 s45, s3, {FL_XC}
    s_lshl_b32 s3, s21, 2
    s_add_u32 s3, s3, s45
    s_add_u32 s44, s44, 1
    v_mov_b32 v2, s3
    v_mov_b32 v3, s44
    v_cmp_eq_u32 vcc, 0, v0
    s_and_saveexec_b64 s[30:31], vcc
    s_cbranch_execz K3_X1
    global_store_dword v2, v3, s[4:5] sc1
    K3_X1:
    s_mov_b64 exec, s[30:31]
    s_add_u32 s8, s4, {OFF_NOFF}
    s_addc_u32 s9, s5, 0
    s_mov_b32 s10, {25088*16}
    s_mov_b32 s11, 0x20000
    s_mov_b32 s16, s6
    s_mov_b32 s17, s7
    s_mov_b32 s18, {N*2}
    s_mov_b32 s19, 0x20000
    v_mov_b32 v2, s41
    v_lshlrev_b32 v2, 4, v2
    buffer_load_dword v4, v2, s[8:11], 0 offen
    v_add_u32 v3, {3135*16+12}, v2
    buffer_load_dword v5, v3, s[8:11], 0 offen
    v_add_u32 v2, s41, v0
    v_lshlrev_b32 v2, 4, v2
    v_add_u32 v3, 16384, v2
    v_add_u32 v6, 32768, v2
    v_add_u32 v7, 49152, v2
    s_add_u32 s12, s4, {OFF_NINFO}
    s_addc_u32 s13, s5, 0
    s_mov_b32 s14, {25088*16}
    s_mov_b32 s15, 0x20000
    buffer_load_dwordx4 v[12:15], v2, s[12:15], 0 offen
    buffer_load_dwordx4 v[16:19], v3, s[12:15], 0 offen
    buffer_load_dwordx4 v[20:23], v6, s[12:15], 0 offen
    buffer_load_dwordx4 v[24:27], v7, s[12:15], 0 offen
    s_mov_b32 s42, {PN}
    s_cmp_eq_u32 s21, 7
    s_cselect_b32 s42, {N-7*PN}, s42
    v_lshlrev_b32 v{TMP}, 1, v0
    v_add_u32 v{TMP+1}, 2048, v{TMP}
    """)
    for t in range(2):
        e(f"""
        v_add_u32 v{TMP+2}, s41, v{TMP+t}
        v_lshlrev_b32 v{CO+t}, 3, v{TMP+2}
        v_lshlrev_b32 v{TMP+2}, 1, v{TMP+2}
        v_cmp_gt_u32 vcc, s42, v{TMP+t}
        v_mov_b32 v{TMP+3}, 0x7ffffff0
        s_nop 0
        v_cndmask_b32 v{CO+t}, v{TMP+3}, v{CO+t}, vcc
        v_cndmask_b32 v{TMP+2}, v{TMP+3}, v{TMP+2}, vcc
        buffer_load_dword v{CD+2*t}, v{TMP+2}, s[16:19], 0 offen
        """)
    e(f"""
    v_lshlrev_b32 v6, 2, v0
    v_mov_b32 v7, 0
    v_add_u32 v6, {HIST}, v6
    ds_write_b32 v6, v7
    v_mov_b32 v8, {SLOWF}
    ds_write_b32 v8, v7
    v_mov_b32 v7, {ZSI|(ZSI<<16)}
    v_mov_b32 v8, {DP}
    ds_write_b32 v8, v7
    v_lshlrev_b32 v{v16}, 4, v1
    s_waitcnt lgkmcnt(0)
    s_barrier
    s_waitcnt vmcnt(6)
    v_readfirstlane_b32 s46, v4
    v_readfirstlane_b32 s47, v5
    s_add_u32 s12, s4, {OFF_ENT}
    s_addc_u32 s13, s5, 0
    s_mov_b32 s15, 0x20000
    s_sub_u32 s48, s47, s46
    s_lshl_b32 s48, s48, 1            ; bytes
    s_lshl_b32 s14, s47, 1
    s_cmp_gt_u32 s48, {ECAP}
    s_cselect_b32 s49, 1, 0
    s_cselect_b32 s14, 0, s14
    s_lshl_b32 s50, s46, 1
    s_lshl_b32 s56, s22, 10
    s_add_u32 s50, s50, s56
    """)
    stamp(0)
    KEY=28; RNK=32; PKA=36; PKB=40
    e(f"v_mov_b32 v44, 0\nv_mov_b32 v45, 1\ns_mov_b32 s51, {HIST}\nv_cmp_gt_u32 s[52:53], 64, v0")
    for r in range(4):
        e(f"s_waitcnt vmcnt({(3-r)+2})")
        b=12+4*r
        if r==3: e(f"v_cndmask_b32 v{b+3}, 0, v{b+3}, s[52:53]")
        e(f"""v_or_b32 v44, v44, v{b+3}
        v_subrev_u32 v49, s46, v{b}
        v_lshlrev_b32 v49, 12, v49
        v_add_u32 v50, {1024*r}, v0
        v_or_b32 v{PKA+r}, v49, v50
        v_mov_b32 v{PKB+r}, v{b+1}
        v_add_u32 v{KEY+r}, s51, v{b+2}""")
        if r==3: e("s_mov_b64 s[30:31], exec\ns_mov_b64 exec, s[52:53]\ns_cbranch_execz K3_H3")
        e(f"ds_add_rtn_u32 v{RNK+r}, v{KEY+r}, v45")
        if r==3: e("K3_H3:\ns_mov_b64 exec, s[30:31]")
    entdma((0,1))
    pstamp(0)
    e(f"""
    v_cmp_ne_u32 vcc, 0, v44
    s_cmp_lg_u64 vcc, 0
    s_cselect_b32 s3, 1, 0
    s_or_b32 s49, s49, s3
    s_waitcnt lgkmcnt(0)
    s_barrier
    """)
    pstamp(1)
    entdma((2,3))
    e(f"""
    v_lshlrev_b32 v6, 2, v0
    v_add_u32 v6, {HIST}, v6
    ds_read_b32 v7, v6
    s_waitcnt lgkmcnt(0)
    v_mov_b32 v8, v7
    """)
    wave_scan(e,8,9)
    e(f"""
    s_nop 1
    v_readlane_b32 s3, v8, 63
    s_lshl_b32 s28, s22, 2
    s_add_u32 s28, s28, {MISC}
    v_mov_b32 v9, s28
    v_mov_b32 v46, s3
    ds_write_b32 v9, v46
    s_waitcnt lgkmcnt(0)
    s_barrier
    """)
    entdma((4,5))
    e(f"""
    v_lshlrev_b32 v9, 2, v1
    v_add_u32 v9, {MISC}, v9
    v_cmp_gt_u32 vcc, 16, v1
    v_mov_b32 v46, 0
    s_and_saveexec_b64 s[30:31], vcc
    ds_read_b32 v46, v9
    s_mov_b64 exec, s[30:31]
    s_waitcnt lgkmcnt(0)
    v_cmp_gt_u32 vcc, s22, v1
    s_nop 1
    v_cndmask_b32 v46, 0, v46, vcc
    """)
    wave_scan(e,46,47)
    e(f"""
    s_nop 1
    v_readlane_b32 s3, v46, 63
    v_sub_u32 v8, v8, v7
    v_add_u32 v8, s3, v8
    ds_write_b32 v6, v8
    s_waitcnt lgkmcnt(0)
    s_barrier
    """)
    pstamp(2)
    entdma((6,7))
    for r in range(3): e(f"ds_read_b32 v{12+r}, v{KEY+r}")
    e("s_mov_b64 s[30:31], exec\ns_mov_b64 exec, s[52:53]\ns_cbranch_execz K3_H4a\nds_read_b32 v15, v31\nK3_H4a:\ns_mov_b64 exec, s[30:31]\ns_waitcnt lgkmcnt(0)")
    for r in range(4):
        if r==3: e("s_mov_b64 s[30:31], exec\ns_mov_b64 exec, s[52:53]\ns_cbranch_execz K3_H4")
        e(f"""v_add_u32 v46, v{12+r}, v{RNK+r}
        v_lshlrev_b32 v47, 2, v46
        v_add_u32 v47, {SA}, v47
        ds_write_b32 v47, v{PKA+r}
        ds_write_b32 v47, v{PKB+r} offset:12544
""")
        if r==3: e("K3_H4:\ns_mov_b64 exec, s[30:31]")
    pstamp(3)
    e(f"""
    s_cmp_eq_u32 s49, 0
    s_cbranch_scc1 K3_NOSF
    v_mov_b32 v46, {SLOWF}
    v_mov_b32 v47, 1
    ds_write_b32 v46, v47
    K3_NOSF:
    s_waitcnt vmcnt(0) lgkmcnt(0)
    s_barrier
    """)
    stamp(1)
    wb=[[] for _ in range(16)]
    for bi,w in enumerate(ASG): wb[w].append(bi)
    e("s_mov_b32 s3, 0")
    for w in range(16):
        nb=len(wb[w]); lst=[0]*(4-nb)+wb[w]
        val=nb|(lst[0]<<4)|(lst[1]<<10)|(lst[2]<<16)|(lst[3]<<22)
        e(f"s_cmp_eq_u32 s22, {w}\ns_cselect_b32 s3, {val:#x}, s3")
    e("""s_and_b32 s39, s3, 15
    s_sub_u32 s38, 4, s39
    s_bfe_u32 s28, s3, 0x60004
    s_bfe_u32 s29, s3, 0x6000a
    s_bfe_u32 s30, s3, 0x60010
    s_bfe_u32 s31, s3, 0x60016""")
    QA=32; QP=36
    BM=12
    for s in range(4):
        e(f"s_lshl_b32 s3, s{28+s}, 8\ns_add_u32 s3, s3, {SA}\nv_lshl_add_u32 v46, v1, 2, s3\nds_read_b32 v{QA+s}, v46\nds_read_b32 v{QP+s}, v46 offset:12544")
        pass
    e("s_waitcnt lgkmcnt(0)")
    for s in range(3):
        lab=e.lab('IV')
        e(f"s_cmp_le_u32 s38, {s}\ns_cbranch_scc1 {lab}\nv_mov_b32 v{QP+s}, 0\nv_mov_b32 v{QA+s}, 0xfff\n{lab}:")
    CNT=40
    for s in range(4):
        e(f"v_and_b32 v{CNT+s}, 0x3ff, v{QP+s}\nv_bfe_u32 v{CNT+4+s}, v{QP+s}, 10, 10\nv_bfe_u32 v{CNT+8+s}, v{QP+s}, 20, 10")
    for s_ in range(4): e(f"v_lshl_or_b32 v{BM+s_}, v{CNT+4+s_}, 16, v{CNT+s_}")
    e(f"v_lshl_or_b32 v{BM+4}, v{CNT+9}, 16, v{CNT+8}\nv_lshl_or_b32 v{BM+5}, v{CNT+11}, 16, v{CNT+10}")
    for s_ in range(4):
        if s_<3: e(f"s_cmp_le_u32 s38, {s_}\ns_cselect_b32 s{52+s_}, 0x00010001, 0")
        else: e("s_mov_b32 s55, 0x00010001")
    e("s_pack_ll_b32_b16 s56, s52, s53\ns_pack_ll_b32_b16 s57, s54, s55")
    for w in range(6): e(f"v_pk_max_u16 v{BM+w}, v{BM+w}, s{52+w}")
    for ctl in ("row_shr:1 row_mask:0xf bank_mask:0xf bound_ctrl:0","row_shr:2 row_mask:0xf bank_mask:0xf bound_ctrl:0","row_shr:4 row_mask:0xf bank_mask:0xf bound_ctrl:0","row_shr:8 row_mask:0xf bank_mask:0xf bound_ctrl:0","row_bcast:15 row_mask:0xa bank_mask:0xf","row_bcast:31 row_mask:0xc bank_mask:0xf"):
        for w in range(6): e(f"v_mov_b32 v{BM+6+w}, 0" if 'bcast' in ctl else "")
        for w in range(6): e(f"v_mov_b32_dpp v{BM+6+w}, v{BM+w} {ctl}")
        for w in range(6): e(f"v_pk_max_u16 v{BM+w}, v{BM+w}, v{BM+6+w}")
    for w in range(6): e(f"v_readlane_b32 s{52+w}, v{BM+w}, 63")
    pstamp(4)
    e("s_or_b32 s3, s52, s53\ns_or_b32 s3, s3, s54\ns_or_b32 s3, s3, s55\ns_or_b32 s3, s3, s56\ns_or_b32 s3, s3, s57\ns_and_b32 s3, s3, 0xffe0ffe0\ns_cselect_b32 s3, 1, 0\ns_or_b32 s49, s49, s3")
    packs=[("s_pack_ll_b32_b16 s64, s52, s54","s_pack_ll_b32_b16 s65, s53, s55"),
           ("s_pack_hh_b32_b16 s64, s52, s54","s_pack_hh_b32_b16 s65, s53, s55"),
           ("s_pack_ll_b32_b16 s64, s56, s57","s_pack_hh_b32_b16 s65, s56, s57")]
    for X in range(3):
        e(packs[X][0]); e(packs[X][1])
        e(f"""s_lshl_b32 s65, s65, 8
        s_or_b32 s64, s64, s65
        s_mul_i32 s64, s64, 0x01010101
        s_lshr_b32 s{32+X}, s64, 24
        s_add_u32 s64, s64, 0x1f1f1f1f
        s_mov_b32 s{35+X}, 0
        s_bitset1_b32 s{35+X}, s64
        s_lshr_b32 s65, s64, 8
        s_bitset1_b32 s{35+X}, s65
        s_lshr_b32 s65, s64, 16
        s_bitset1_b32 s{35+X}, s65
        s_lshr_b32 s65, s64, 24
        s_bitset1_b32 s{35+X}, s65
        s_cmp_gt_u32 s{32+X}, {RXS[X]}
        s_cselect_b32 s3, 1, 0
        s_or_b32 s49, s49, s3""")
    e("s_lshl_b32 s56, s22, 10")
    if FORCE_SLOW: e("s_mov_b32 s49, 1")
    e(f"""
    s_cmp_eq_u32 s49, 0
    s_cbranch_scc1 K3_NOSF2
    v_mov_b32 v52, {SLOWF}
    v_mov_b32 v53, 1
    ds_write_b32 v52, v53
    K3_NOSF2:
    """)
    pstamp(5)
    for b in range(4):
        e(f"""v_and_b32 v{vL+b}, 0xfff, v{QA+b}
        v_add_u32 v{vD+b}, s41, v{vL+b}
        v_lshlrev_b32 v{vD+b}, 1, v{vD+b}
        v_cmp_eq_u32 vcc, 0xfff, v{vL+b}
        v_mov_b32 v52, 0x7ffffff0
        s_nop 0
        v_cndmask_b32 v{vD+b}, v{vD+b}, v52, vcc
        buffer_load_ushort v{vD+b}, v{vD+b}, s[16:19], 0 offen""")
    for s_ in range(4): e(f"v_lshrrev_b32 v{28+s_}, 12, v{QA+s_}\nv_lshlrev_b32 v{28+s_}, 1, v{28+s_}")
    e(f"v_mov_b32 v60, {DP}\nv_mov_b32 v61, {ZSI|(ZSI<<16):#x}")
    pstamp(6)
    QAd=[54,55,56,57]; QEn=[62,63,64,65]
    QEn=[12,13,14,15]; QAd=[16,17,18,19]; CAa=[20,21]; CE=22; TT=23
    for X in range(3):
        for s_ in range(4):
            e(f"v_mov_b32 v{QAd[s_]}, v{28+s_}\nv_lshl_add_u32 v{28+s_}, v{CNT+4*X+s_}, 2, v{28+s_}\nv_mov_b32 v{QEn[s_]}, v{28+s_}")
        def shift():
            t=""
            for s_ in range(3): t+=f"v_mov_b32 v{QAd[s_]}, v{QAd[s_+1]}\nv_mov_b32 v{QEn[s_]}, v{QEn[s_+1]}\n"
            return t
        for s_ in range(3):
            lab=e.lab('IS'); e(f"s_cmp_le_u32 s38, {s_}\ns_cbranch_scc1 {lab}\n"+shift()+f"{lab}:")
        e(f"v_mov_b32 v{CAa[0]}, v{QAd[0]}\nv_mov_b32 v{CE}, v{QEn[0]}")
        for r in range(RXS[X]):
            ca=CAa[r%2]; cn=CAa[(r+1)%2]
            up=f"BU_{X}_{r}"; bk=f"BB_{X}_{r}"
            e(f"""v_cmp_lt_u32 vcc, v{ca}, v{CE}
            s_bitcmp1_b32 s{35+X}, {r}
            v_add_u32 v{cn}, 4, v{ca}
            v_cndmask_b32 v{TT}, v60, v{ca}, vcc
            ds_read_b32 v{IDX+RB[X]+r}, v{TT}
            s_cbranch_scc1 {up}
            {bk}:""")
            nxt=f"BF_{X}_{r+1}"
            ool.append(f"{up}:\ns_cmp_le_u32 s{32+X}, {r+1}\ns_cbranch_scc1 {nxt}\n"+shift()+f"v_mov_b32 v{cn}, v{QAd[0]}\nv_mov_b32 v{CE}, v{QEn[0]}\ns_branch {bk}\n")
            if r%8==7: e("s_waitcnt lgkmcnt(4)")
        e(f"s_branch BF_{X}_{RXS[X]}")
        fill=""
        for r in range(1,RXS[X]): fill+=f"BF_{X}_{r}:\nv_mov_b32 v{IDX+RB[X]+r}, v61\n"
        e(fill+f"BF_{X}_{RXS[X]}:")
        pstamp(7+X)
    e(f"""s_waitcnt lgkmcnt(0)
    s_barrier
    v_mov_b32 v52, {SLOWF}
    ds_read_b32 v53, v52
    s_waitcnt lgkmcnt(0)
    v_readfirstlane_b32 s49, v53
    s_cmp_eq_u32 s49, 0
    s_cbranch_scc1 K3_SETUP2
    s_waitcnt vmcnt(0)""")
    e("K3_SLOWSETUP:")
    for s in range(4):
        e(f"s_add_u32 s3, s22, {16*s}\ns_lshl_b32 s3, s3, 6\nv_add_u32 v{vL+s}, s3, v1\nv_cmp_gt_u32 vcc, {PN}, v{vL+s}\nv_mov_b32 v46, 0xfff\ns_nop 0\nv_cndmask_b32 v{vL+s}, v46, v{vL+s}, vcc")
    for b in range(4):
        e(f"""v_add_u32 v{vD+b}, s41, v{vL+b}
        v_lshlrev_b32 v{vD+b}, 1, v{vD+b}
        v_cmp_eq_u32 vcc, 0xfff, v{vL+b}
        v_mov_b32 v52, 0x7ffffff0
        s_nop 0
        v_cndmask_b32 v{vD+b}, v{vD+b}, v52, vcc
        buffer_load_ushort v{vD+b}, v{vD+b}, s[16:19], 0 offen""")
    e("K3_SETUP2:")
    if DBG:
        lab=e.lab('DG')
        e(f"s_cmp_lg_u32 s2, 0\ns_cbranch_scc1 {lab}\ns_mul_i32 s3, s22, {64*256}\ns_add_u32 s3, s3, {OFF_DBG+4096}\nv_lshlrev_b32 v58, 2, v1\nv_add_u32 v58, s3, v58")
        for r in range(RT): e(f"global_store_dword v58, v{IDX+r}, s[4:5] offset:0\nv_add_u32 v58, 256, v58")
        for s_ in range(4): e(f"global_store_dword v58, v{vL+s_}, s[4:5]\nv_add_u32 v58, 256, v58")
        for k in range(8): e(f"v_writelane_b32 v60, s{32+k}, {k}")
        e(f"v_writelane_b32 v60, s49, 8\nv_writelane_b32 v60, s46, 9\nv_writelane_b32 v60, s48, 10")
        e(f"global_store_dword v58, v60, s[4:5]\ns_waitcnt vmcnt(0)\n{lab}:")
    stamp(2)
    for b in range(4):
        e(f"""v_cmp_eq_u32 vcc, 0xfff, v{vL+b}
        v_lshlrev_b32 v{vL+b}, 3, v{vL+b}
        v_add_u32 v{vL+b}, {STG}, v{vL+b}
        v_mov_b32 v{TMP+1}, {DUMP}
        v_cndmask_b32 v{vL+b}, v{vL+b}, v{TMP+1}, vcc""")
    e(f"""
    v_and_b32 v70, 7, v1
    v_lshlrev_b32 v70, 2, v70
    v_add_u32 v70, s45, v70
    global_load_dword v71, v70, s[4:5] sc1
    s_mov_b32 s50, 2
    s_waitcnt vmcnt(1)
    """)
    for b in range(4): e(f"v_lshlrev_b32 v{vD+b}, 16, v{vD+b}")
    for t in range(2): e(f"v_and_b32 v{CD+2*t+1}, 0xffff0000, v{CD+2*t}\nv_lshlrev_b32 v{CD+2*t}, 16, v{CD+2*t}")
    e(f"""
    v_lshrrev_b32 v{TMP}, 4, v1
    v_bfe_u32 v{TMP+1}, v1, 2, 2
    v_and_b32 v{TMP+2}, 1, v1
    v_lshlrev_b32 v{TMP+2}, 4, v{TMP+2}
    v_mov_b32 v{TMP+3}, 0x3f80
    v_lshlrev_b32 v{TMP+3}, v{TMP+2}, v{TMP+3}
    v_cmp_eq_u32 vcc, v{TMP}, v{TMP+1}
    s_nop 1
    v_cndmask_b32 v{TMP+3}, 0, v{TMP+3}, vcc
    v_bfe_u32 v{TMP+2}, v1, 1, 1
    v_cmp_eq_u32 vcc, 0, v{TMP+2}
    v_mov_b32 v{TMP+4}, 0
    s_nop 0
    v_cndmask_b32 v{AC}, 0, v{TMP+3}, vcc
    v_cndmask_b32 v{AC+1}, v{TMP+3}, v{TMP+4}, vcc
    v_mov_b32 v{AC+2}, v{AC}
    v_mov_b32 v{AC+3}, v{AC+1}
    v_lshlrev_b32 v{vC}, 4, v0
    v_add_u32 v{vC}, {STG}, v{vC}
    s_lshl_b32 s3, s20, 8
    s_add_u32 s66, s3, {OFF_FL}
    s_lshl_b32 s3, s21, 5
    s_add_u32 s67, s66, s3
    s_mov_b32 s11, 0x20000
    s_mov_b32 s15, 0x20000
    s_mov_b32 s27, 0x20000
    s_mov_b32 s10, {TS_STRIDE}
    s_mov_b32 s14, {N*8}
    s_mov_b32 s26, {N*8}
    s_mov_b32 s23, 0
    s_lshl_b32 s56, s22, 10
    s_mov_b32 s51, 0xffff0000
    v_mov_b32 v{TMP}, {ZS}
    v_mov_b32 v{TMP+2}, 0
    v_mov_b32 v{TMP+3}, 0
    ds_write_b64 v{TMP}, v[{TMP+2}:{TMP+3}]
    s_waitcnt lgkmcnt(0)
    """)
    stamp(3)
    e("K3_HOP:")
    if TS: e("s_mov_b32 s68, s23")
    e(f"""
    s_and_b32 s69, s23, 1
    s_lshl_b32 s3, s69, 5
    s_add_u32 s3, s3, s20
    s_mul_i32 s3, s3, {TS_STRIDE}
    s_add_u32 s8, s4, s3
    s_addc_u32 s9, s5, 0
    s_xor_b32 s69, s69, 1
    s_lshl_b32 s3, s69, 5
    s_add_u32 s3, s3, s20
    s_mul_i32 s3, s3, {TS_STRIDE}
    s_add_u32 s12, s4, s3
    s_addc_u32 s13, s5, 0
    s_add_u32 s3, s23, 1
    s_lshl_b32 s3, s3, 5
    s_add_u32 s3, s3, s20
    s_mul_i32 s3, s3, {TS_STRIDE}
    s_add_u32 s3, s3, {OFF_T}
    s_add_u32 s24, s4, s3
    s_addc_u32 s25, s5, 0
    s_cmp_lg_u32 s49, 0
    s_cbranch_scc1 K3_SLOWHOP
    """)
    def dma(goff, nins, ldsbase):
        rounds=(nins+15)//16
        for r in range(rounds):
            lab=None
            if (r+1)*16>nins:
                lab=e.lab('DS'); e(f"s_cmp_ge_u32 s22, {nins-r*16}\ns_cbranch_scc1 {lab}")
            e(f"s_lshl_b32 s3, s22, 10\ns_add_u32 m0, s3, {ldsbase+r*16384}\ns_add_u32 s3, s3, {goff+r*16384}\nbuffer_load_dwordx4 v{v16}, s[8:11], s3 offen sc1 lds")
            if lab: e(f"{lab}:")
    hstamp(0)
    dma(0,64,BUF0)
    for i in range(16): e(f"v_mov_b32 v{ACC+i}, 0")
    def issue(X,g):
        s=g%(PD+1); out=[]
        for k in range(2):
            rr=IDX+RB[X]+2*g+k
            out.append(f"v_lshlrev_b32_sdwa v{TMP+2*k}, 3, v{rr} dst_sel:DWORD dst_unused:UNUSED_PAD src0_sel:DWORD src1_sel:WORD_0")
            out.append(f"v_lshlrev_b32_sdwa v{TMP+2*k+1}, 3, v{rr} dst_sel:DWORD dst_unused:UNUSED_PAD src0_sel:DWORD src1_sel:WORD_1")
        for k in range(2):
            d=DAT+8*s+4*k
            out.append(f"ds_read_b64 v[{d}:{d+1}], v{TMP+2*k}")
            out.append(f"ds_read_b64 v[{d+2}:{d+3}], v{TMP+2*k+1}")
        return out
    def dma1(k,goff,ldsbase):
        return [f"s_add_u32 m0, s56, {ldsbase+k*16384}",f"s_add_u32 s3, s56, {goff+k*16384}",f"buffer_load_dwordx4 v{v16}, s[8:11], s3 offen sc1 lds"]
    def phase(X):
        RX=RXS[X]; NG=RX//2
        nd={0:(65536,BUF1),1:(131072,BUF0)}.get(X)
        e(f"s_mov_b32 s54, s{35+X}")
        for g in range(PD): e("\n".join(issue(X,g)))
        def mfma(b,r):
            d=DAT+8*((r//2)%(PD+1))+4*(r%2)
            return f"v_mfma_f32_16x16x32_bf16 v[{ACC+4*b}:{ACC+4*b+3}], v[{AC}:{AC+3}], v[{d}:{d+3}], v[{ACC+4*b}:{ACC+4*b+3}]"
        def body(b):
            out=[]; tail=[]
            for r in range(RX):
                g=r//2
                out.append(f"E_{X}_{b}_{r}:")
                if r%2==0:
                    if g+PD<NG:
                        if b==3 and GATE:
                            out.append(f"s_cmp_le_u32 s{32+X}, {2*(g+PD)}")
                            out.append(f"s_cbranch_scc1 T_{X}_{r}")
                            tl=[f"T_{X}_{r}:"]
                            if nd and g<4: tl+=dma1(g,*nd)
                            tl+= ["s_waitcnt lgkmcnt(0)",f"s_branch M_{X}_{r}"]
                            tail+=tl
                        out+=issue(X,g+PD)
                        if nd and g<4: out+=dma1(g,*nd)
                        out.append(f"s_waitcnt lgkmcnt({4*PD})")
                        if b==3 and GATE: out.append(f"M_{X}_{r}:")
                    else:
                        if nd and g<4: out+=dma1(g,*nd)
                        out.append(f"s_waitcnt lgkmcnt({0 if (b==3 and GATE) else 4*(NG-1-g)})")
                out.append(mfma(b,r))
                if r<RX-1:
                    out.append(f"s_bitcmp1_b32 s54, {r}")
                    out.append(f"s_cbranch_scc1 E_{X}_{b+1}_{r+1}" if b<3 else f"s_cbranch_scc1 PE_{X}")
            out.append(f"s_branch PE_{X}")
            return "\n".join(out+tail)+"\n"
        for b in range(1,4): e(f"s_cmp_eq_u32 s38, {b}"); e(f"s_cbranch_scc1 E_{X}_{b}_0")
        e(body(0))
        for b in range(1,4): ool.append(body(b))
        e(f"PE_{X}:")
        if nd:
            for k in range(1,4):
                lab=e.lab('DR')
                e(f"s_cmp_gt_u32 s{32+X}, {2*k}\ns_cbranch_scc1 {lab}\n"+"\n".join(dma1(k,*nd))+f"\n{lab}:")
            if X==1:
                lab=e.lab('DR'); e(f"s_cmp_ge_u32 s22, 4\ns_cbranch_scc1 {lab}\n"+"\n".join(dma1(4,*nd))+f"\n{lab}:")
        e("s_waitcnt lgkmcnt(0)")
    e("s_waitcnt vmcnt(0)"); hstamp(1)
    e("s_barrier"); hstamp(2)
    phase(0); hstamp(3)
    e("s_waitcnt vmcnt(0)\ns_barrier"); hstamp(4)
    phase(1); hstamp(5)
    e("s_waitcnt vmcnt(0)\ns_barrier"); hstamp(6)
    phase(2); hstamp(7)
    e("K3_EPI:\ns_nop 7\ns_nop 1")
    for b in range(4):
        a=ACC+4*b; t=DAT+2*b
        for r in range(4): e(f"v_mul_f32 v{a+r}, v{a+r}, v{vD+b}")
        e(f"v_cvt_pk_bf16_f32 v{t}, v{a}, v{a+1}\nv_cvt_pk_bf16_f32 v{t+1}, v{a+2}, v{a+3}")
        e(f"ds_write_b64 v{vL+b}, v[{t}:{t+1}]")
    e("s_waitcnt lgkmcnt(0)\ns_barrier"); hstamp(8)
    e(f"ds_read_b128 v[{DAT}:{DAT+3}], v{vC}\nds_read_b128 v[{DAT+4}:{DAT+7}], v{vC} offset:16384")
    def tstores():
        for t in range(2):
            d=DAT+4*t
            e(f"buffer_store_dwordx4 v[{d}:{d+3}], v{CO+t}, s[24:27], 0 offen")
    e(f"s_add_u32 s23, s23, 1\ns_cmp_ge_u32 s23, {NH}\ns_cbranch_scc1 K3_FIN")
    for t in range(2):
        d=DAT+4*t; a=ACC+8*t; o=DAT+8+4*t
        e(f"s_waitcnt lgkmcnt({1-t})")
        for r in range(4):
            e(f"v_lshlrev_b32 v{a+2*r}, 16, v{d+r}\nv_and_b32 v{a+2*r+1}, s51, v{d+r}")
        for r in range(8): e(f"v_mul_f32 v{a+r}, v{a+r}, v{CD+2*t+(r//4)}")
        for r in range(4): e(f"v_cvt_pk_bf16_f32 v{o+r}, v{a+2*r}, v{a+2*r+1}")
    e(f"""s_cmp_lg_u32 s50, 2
    s_cbranch_scc1 K3_XD
    K3_XP:
    v_cmp_eq_u32 vcc, 0, v71
    s_cbranch_vccz K3_XE
    global_load_dword v71, v70, s[4:5] sc1
    s_waitcnt vmcnt(0)
    s_branch K3_XP
    K3_XE:
    v_cmp_ne_u32 vcc, s44, v71
    s_cmp_lg_u64 vcc, 0
    s_cselect_b32 s50, 1, 0""")
    if FORCE_SLOWSYNC: e("s_mov_b32 s50, 1")
    e("K3_XD:")
    e("s_cmp_lg_u32 s50, 0\ns_cbranch_scc1 K3_GS1")
    for t in range(2):
        o=DAT+8+4*t; e(f"buffer_store_dwordx4 v[{o}:{o+3}], v{CO+t}, s[12:15], 0 offen")
    e("s_branch K3_GS2\nK3_GS1:")
    for t in range(2):
        o=DAT+8+4*t; e(f"buffer_store_dwordx4 v[{o}:{o+3}], v{CO+t}, s[12:15], 0 offen sc1")
    e("K3_GS2:\ns_waitcnt vmcnt(0)"); hstamp(9); e("s_barrier")
    e("s_cmp_eq_u32 s22, 0\ns_cbranch_scc1 K3_W0")
    if TMODE==1: e("s_sleep 6")
    if TMODE in (0,1): tstores()
    e("s_branch K3_WAIT\nK3_W0:")
    e(f"""
    v_mov_b32 v{TMP}, s67
    v_mov_b32 v{TMP+1}, s23
    v_cmp_eq_u32 vcc, 0, v1
    s_and_saveexec_b64 s[30:31], vcc
    s_cmp_lg_u32 s50, 0
    s_cbranch_scc1 K3_FS1
    global_store_dword v{TMP}, v{TMP+1}, s[4:5]
    s_branch K3_FS2
    K3_FS1:
    global_store_dword v{TMP}, v{TMP+1}, s[4:5] sc1
    K3_FS2:
    s_mov_b64 exec, s[30:31]
    v_and_b32 v{TMP}, 7, v1
    v_lshlrev_b32 v{TMP}, 5, v{TMP}
    v_add_u32 v{TMP}, s66, v{TMP}
    K3_POLL:
    global_load_dword v{TMP+1}, v{TMP}, s[4:5] sc1
    s_waitcnt vmcnt(0)
    v_cmp_gt_u32 vcc, s23, v{TMP+1}
    s_cbranch_vccnz K3_POLL
    """)
    if TMODE in (0,1): tstores()
    e("K3_WAIT:\ns_barrier"); hstamp(10)
    if TMODE==2: tstores()
    if TS:
        lab=e.lab('TS')
        e(f"s_cmp_lg_u32 s68, 0\ns_cbranch_scc1 {lab}"); stamp(4); e(f"{lab}:")
    e("s_branch K3_HOP")
    e(f"""
    K3_SLOWHOP:
    s_add_u32 s52, s4, {OFF_NOFF}
    s_addc_u32 s53, s5, 0
    s_mov_b32 s54, {25088*16}
    s_mov_b32 s55, 0x20000
    s_add_u32 s56, s4, {OFF_ENT}
    s_addc_u32 s57, s5, 0
    s_mov_b32 s58, {ENT_BYTES}
    s_mov_b32 s59, 0x20000
    """)
    for s in range(4):
        L=e.lab('SL'); Lx=e.lab('SX')
        a=ACC+4*s
        e(f"""
        v_mov_b32 v{a}, 0
        v_mov_b32 v{a+1}, 0
        v_mov_b32 v{a+2}, 0
        v_mov_b32 v{a+3}, 0
        s_add_u32 s3, s22, {16*s}
        s_lshl_b32 s3, s3, 6
        v_add_u32 v{DAT}, s3, v1              ; local
        v_cmp_gt_u32 vcc, {PN}, v{DAT}
        s_and_saveexec_b64 s[30:31], vcc
        s_cbranch_execz {Lx}
        v_add_u32 v{DAT}, s41, v{DAT}
        v_lshlrev_b32 v{DAT}, 4, v{DAT}
        buffer_load_dwordx4 v[{DAT+4}:{DAT+7}], v{DAT}, s[52:55], 0 offen
        s_waitcnt vmcnt(0)
        v_mov_b32 v{DAT+1}, v{DAT+4}          ; pos
        {L}:
        v_cmp_lt_u32 vcc, v{DAT+1}, v{DAT+7}
        s_and_b64 exec, exec, vcc
        s_cbranch_execz {Lx}
        v_lshlrev_b32 v{DAT+2}, 1, v{DAT+1}
        buffer_load_ushort v{DAT+3}, v{DAT+2}, s[56:59], 0 offen
        s_waitcnt vmcnt(0)
        v_cmp_le_u32 vcc, v{DAT+5}, v{DAT+1}           ; pos>=offB
        v_subrev_u32 v{DAT+8}, 512, v{DAT+3}
        s_nop 0
        v_cndmask_b32 v{DAT+9}, v{DAT+3}, v{DAT+8}, vcc
        v_cmp_le_u32 vcc, v{DAT+6}, v{DAT+1}           ; pos>=offC
        v_add_u32 v{DAT+8}, 0x4000, v{DAT+3}
        s_nop 0
        v_cndmask_b32 v{DAT+9}, v{DAT+9}, v{DAT+8}, vcc
        v_cmp_eq_u32 vcc, {ZSI}, v{DAT+3}
        v_lshlrev_b32 v{DAT+9}, 3, v{DAT+9}
        v_mov_b32 v{DAT+8}, 0x7ffffff0
        s_nop 0
        v_cndmask_b32 v{DAT+9}, v{DAT+9}, v{DAT+8}, vcc
        s_mov_b32 s10, {N*8}
        buffer_load_dwordx2 v[{DAT+10}:{DAT+11}], v{DAT+9}, s[8:11], 0 offen sc1
        s_waitcnt vmcnt(0)
        v_lshlrev_b32 v{DAT+12}, 16, v{DAT+10}
        v_and_b32 v{DAT+13}, s51, v{DAT+10}
        v_lshlrev_b32 v{DAT+14}, 16, v{DAT+11}
        v_and_b32 v{DAT+15}, s51, v{DAT+11}
        v_add_f32 v{a}, v{a}, v{DAT+12}
        v_add_f32 v{a+1}, v{a+1}, v{DAT+13}
        v_add_f32 v{a+2}, v{a+2}, v{DAT+14}
        v_add_f32 v{a+3}, v{a+3}, v{DAT+15}
        v_add_u32 v{DAT+1}, 1, v{DAT+1}
        s_branch {L}
        {Lx}:
        s_mov_b64 exec, s[30:31]
        """)
    e(f"s_mov_b32 s10, {TS_STRIDE}\ns_branch K3_EPI")
    for o in ool: e(o)
    e("K3_FIN:\ns_waitcnt lgkmcnt(0)")
    tstores()
    if TS:
        e(f"s_cmp_lg_u32 s2, 41\ns_cbranch_scc1 K3_END\ns_memtime s[62:63]\ns_waitcnt lgkmcnt(0)\ns_sub_u32 s81, s62, s60")
        for k in range(17): e(f"v_writelane_b32 v{TMP+7}, s{76+k}, {k}")
        e(f"s_lshl_b32 s3, s22, 7\ns_add_u32 s3, s3, {OFF_DBG}\nv_lshlrev_b32 v{TMP+6}, 2, v1\nv_add_u32 v{TMP+6}, s3, v{TMP+6}\nv_cmp_gt_u32 vcc, 17, v1\ns_and_saveexec_b64 s[30:31], vcc\nglobal_store_dword v{TMP+6}, v{TMP+7}, s[4:5]")
    e("K3_END:")
    return e.text(),NV,102
```

```python
from glib import E
from layout import *
import sched
BLKS=33024; BUFS=[0,BLKS,2*BLKS]; SWOFF=3*BLKS
WSTG=BLKS
K4_LDS=SWOFF+8192
K4_BLOCK=256
def gen_k4(TS=False,TSR=2,LDSLAT=130,DMAGAP=200,verbose=False,EXP=''):
    e=E()
    VB1=2; VB2=3; VW=4; VOUT=5; VDMA=6; RHO=7
    TF=8; UF=40; AA=72; AB=88; SC=104; SF0=120; SF1=128; PF=136; ST1=144; ST2=148; WF=152; TL=160; DD=176
    XM=184
    PP=212
    XT=216
    VT=253
    NV=256
    def stamp(idx):
        if not TS: return
        lab=e.lab('TS')
        e(f"s_cmp_lg_u32 s35, {TSR}\ns_cbranch_scc1 {lab}\ns_memtime s[62:63]\ns_waitcnt lgkmcnt(0)\ns_sub_u32 s{78+idx}, s62, s60\n{lab}:")
    e(f"""
    s_cmp_ge_u32 s2, 256
    s_cbranch_scc1 K4_END
    s_load_dwordx2 s[4:5], s[0:1], 88
    s_load_dwordx2 s[6:7], s[0:1], 72
    s_memtime s[60:61]
    v_lshrrev_b32 v{VT}, 6, v0
    v_and_b32 v1, 63, v0
    s_nop 0
    v_readfirstlane_b32 s24, v{VT}
    s_waitcnt lgkmcnt(0)
    s_add_u32 s8, s4, {OFF_T}
    s_addc_u32 s9, s5, 0
    s_mov_b32 s10, {T_BYTES}
    s_mov_b32 s11, 0x20000
    s_mov_b32 s12, s6
    s_mov_b32 s13, s7
    s_mov_b32 s14, {N*256}
    s_mov_b32 s15, 0x20000
    s_add_u32 s16, s4, {OFF_W}
    s_addc_u32 s17, s5, 0
    s_mov_b32 s18, 73728
    s_mov_b32 s19, 0x20000
    v_lshrrev_b32 v{VT}, 3, v1
    s_mov_b32 s3, {TS_STRIDE}
    v_mul_lo_u32 v{VT}, v{VT}, s3
    v_and_b32 v{VT+1}, 7, v1
    v_lshlrev_b32 v{VT+1}, 4, v{VT+1}
    v_add_u32 v{VDMA}, v{VT}, v{VT+1}
    s_mov_b32 s36, 6
    s_cmp_lt_u32 s2, 27
    s_cselect_b32 s36, 7, s36
    """)
    def blockid(rreg,bufreg):
        e(f"""
        s_mul_i32 s28, s2, 6
        s_add_u32 s28, s28, {rreg}
        s_add_u32 s3, s2, 1536
        s_cmp_eq_u32 {rreg}, 6
        s_cselect_b32 s28, s3, s28
        s_lshl_b32 s29, s28, 7
        s_lshl_b32 s3, s24, 1
        s_mul_i32 s30, s3, {32*TS_STRIDE}
        s_add_u32 s29, s29, s30
        s_mul_i32 s31, s3, 4128
        s_add_u32 s31, s31, {bufreg}
        """)
    def dma_bundles():
        out=[]
        for kk in range(2):
            for o in range(4):
                out.append([f"s_add_u32 m0, s31, {kk*4128+o*1024}",f"s_add_u32 s3, s29, {(kk*32+8*o)*TS_STRIDE}",f"buffer_load_dwordx4 v{VDMA}, s[8:11], s3 offen lds"])
        return out
    e("s_mov_b32 s27, 0\ns_mov_b32 s26, 0")
    blockid('s27','s26')
    for b in dma_bundles(): e("\n".join(b))
    e("s_mov_b32 s32, s28")
    e(f"v_lshlrev_b32 v{VW}, 4, v1\ns_lshl_b32 s37, s24, 10")
    for r in range(16):
        e(f"s_add_u32 m0, s37, {WSTG+r*4096}\ns_add_u32 s25, s37, {r*4096}\nbuffer_load_dwordx4 v{VW}, s[16:19], s25 offen lds")
    for r in range(2):
        e(f"s_add_u32 m0, s37, {SWOFF+r*4096}\ns_add_u32 s25, s37, {65536+r*4096}\nbuffer_load_dwordx4 v{VW}, s[16:19], s25 offen lds")
    a=VT; b=VT+1; c=VT+2
    e(f"""
    v_and_b32 v{a}, 7, v1
    v_mul_u32_u24 v{a}, 4128, v{a}
    v_bfe_u32 v{b}, v1, 3, 2
    v_lshlrev_b32 v{b}, 3, v{b}
    v_add_u32 v{a}, v{a}, v{b}
    v_lshrrev_b32 v{b}, 5, v1
    v_lshlrev_b32 v{b}, 8, v{b}
    v_add_u32 v{a}, v{a}, v{b}
    s_lshl_b32 s3, s24, 5
    v_add_u32 v{VB1}, s3, v{a}
    v_lshrrev_b32 v{a}, 5, v1
    v_lshlrev_b32 v{a}, 2, v{a}
    v_bfe_u32 v{b}, v1, 2, 2
    v_add_u32 v{a}, v{a}, v{b}
    v_mul_u32_u24 v{a}, 4128, v{a}
    v_bfe_u32 v{b}, v1, 4, 1
    v_lshlrev_b32 v{b}, 2, v{b}
    v_and_b32 v{c}, 1, v1
    v_lshlrev_b32 v{c}, 1, v{c}
    v_add_u32 v{b}, v{b}, v{c}
    v_bfe_u32 v{c}, v1, 1, 1
    v_add_u32 v{b}, v{b}, v{c}
    v_lshlrev_b32 v{b}, 7, v{b}
    v_add_u32 v{a}, v{a}, v{b}
    v_add_u32 v{VB2}, s3, v{a}
    v_bfe_u32 v{a}, v1, 1, 1
    v_lshlrev_b32 v{a}, 1, v{a}
    v_bfe_u32 v{b}, v1, 3, 1
    v_add_u32 v{a}, v{a}, v{b}
    v_lshlrev_b32 v{a}, 8, v{a}
    v_and_b32 v{b}, 1, v1
    v_lshl_add_u32 v{a}, v{b}, 5, v{a}
    v_bfe_u32 v{b}, v1, 4, 1
    v_lshl_add_u32 v{a}, v{b}, 4, v{a}
    v_bfe_u32 v{b}, v1, 5, 1
    v_lshl_add_u32 v{a}, v{b}, 3, v{a}
    v_bfe_u32 v{b}, v1, 2, 1
    v_cmp_eq_u32 vcc, 1, v{b}
    v_mov_b32 v{c}, 0x7f000000
    s_nop 0
    v_cndmask_b32 v{VOUT}, v{a}, v{c}, vcc
    s_mov_b32 s40, 0xff
    s_mov_b32 s41, 0xff
    s_lshl_b64 s[42:43], s[40:41], 8
    s_lshl_b64 s[44:45], s[40:41], 16
    s_lshl_b64 s[46:47], s[40:41], 24
    """)
    for ee in range(2):
        lo=0;hi=0
        for p in range(2):
            lo|=1<<(16*p+2*ee+p); hi|=1<<(16*p+8+2*ee+p)
        e(f"s_mov_b32 s{48+4*ee}, {lo:#x}\ns_mov_b32 s{49+4*ee}, {lo:#x}\ns_mov_b32 s{50+4*ee}, {hi:#x}\ns_mov_b32 s{51+4*ee}, {hi:#x}")
    e(f"""
    s_mov_b32 s56, 0xffff0000
    s_mov_b32 s57, 0x3c000000
    s_mov_b32 s58, 0x3727c5ac
    s_mov_b32 s70, 0xaaaaaaaa
    s_mov_b32 s71, 0xaaaaaaaa
    s_mov_b32 s72, 0xcccccccc
    s_mov_b32 s73, 0xcccccccc
    s_mov_b32 s74, 0xf0f0f0f0
    s_mov_b32 s75, 0xf0f0f0f0
    v_add_u32 v{VT}, {WSTG}, v{VW}
    v_add_u32 v{VT+1}, {WSTG+32768}, v{VW}
    v_add_u32 v{VW}, {SWOFF}, v{VW}
    s_waitcnt vmcnt(0)
    """)
    if TS: e("s_memtime s[62:63]\ns_waitcnt lgkmcnt(0)\ns_sub_u32 s84, s62, s60")
    e("s_barrier")
    for i in range(64):
        reg=VT if i<32 else VT+1
        e(f"ds_read_b128 a[{4*i}:{4*i+3}], v{reg} offset:{(i%32)*1024}")
        if i%8==7: e("s_waitcnt lgkmcnt(4)")
    e("s_waitcnt lgkmcnt(0)\ns_barrier")
    if TS: e("s_memtime s[62:63]\ns_waitcnt lgkmcnt(0)\ns_sub_u32 s85, s62, s60")
    R4=lambda b: f"v[{b}:{b+3}]"
    R16=lambda b: f"v[{b}:{b+15}]"
    A4=lambda b: f"a[{b}:{b+3}]"
    def main():
        L=[]; wc=[0]
        def swread(ks):
            idx=wc[0]%2; wc[0]+=1
            L.append(f"ds_read_b128 {R4(WF+4*idx)}, v{VW} offset:{ks*1024}"); return WF+4*idx
        X=XM
        for ks in range(8):
            off=(ks>>1)*1024+(ks&1)*512
            L.append(f"ds_read_b64 v[{TF+4*ks}:{TF+4*ks+1}], v{VB1} offset:{off}")
            L.append(f"ds_read_b64 v[{TF+4*ks+2}:{TF+4*ks+3}], v{VB1} offset:{off+128}")
        for ks in range(8):
            w=swread(ks)
            c="0" if ks==0 else R4(ST1)
            L.append(f"v_mfma_f32_16x16x32_bf16 {R4(ST1)}, {R4(w)}, {R4(TF+4*ks)}, {c}")
        for ks in range(8):
            c="0" if ks==0 else R16(AB)
            L.append(f"v_mfma_f32_32x32x16_bf16 {R16(AB)}, {R4(TF+4*ks)}, {R4(TF+4*ks)}, {c}")
        for b in range(4):
            L.append(f"v_cndmask_b32 v{X+b}, v{AB+b}, v{AB+4+b}, s[42:43]")
            L.append(f"v_cndmask_b32 v{X+b}, v{X+b}, v{AB+8+b}, s[44:45]")
            L.append(f"v_cndmask_b32 v{X+b}, v{X+b}, v{AB+12+b}, s[46:47]")
        L.append(f"v_cndmask_b32 v{X}, v{X}, v{X+1}, s[70:71]")
        L.append(f"v_cndmask_b32 v{X+2}, v{X+2}, v{X+3}, s[70:71]")
        L.append(f"v_cndmask_b32 v{X}, v{X}, v{X+2}, s[72:73]")
        L.append(f"v_mov_b32 v{X+1}, v{X}")
        L.append(f"v_permlane32_swap_b32 v{X}, v{X+1}")
        L.append(f"v_cndmask_b32 v{X}, v{X}, v{X+1}, s[74:75]")
        for mt in range(4):
            acc=AA if mt%2==0 else AB; SF=SF0 if mt%2==0 else SF1
            for ks in range(8):
                c="0" if ks==0 else R16(acc)
                L.append(f"v_mfma_f32_32x32x16_bf16 {R16(acc)}, {A4(4*(mt*8+ks))}, {R4(TF+4*ks)}, {c}")
            for ee in range(2):
                for i in range(4): L.append(f"v_cvt_pk_bf16_f32 v{SF+4*ee+i}, v{acc+8*ee+2*i}, v{acc+8*ee+2*i+1}")
            for ee in range(2):
                c="0" if (mt==0 and ee==0) else R16(SC)
                L.append(f"v_mfma_f32_32x32x16_bf16 {R16(SC)}, {R4(TF+4*(2*mt+ee))}, {R4(SF+4*ee)}, {c}")
        L+=f"""v_mul_f32 v{X+1}, s57, v{ST1}
        v_mul_f32 v{X}, s57, v{X}
        v_fma_f32 v{X}, -v{X+1}, v{X+1}, v{X}
        v_add_f32 v{X}, s58, v{X}
        v_rsq_f32 v{RHO}, v{X}""".split('\n')
        for nt in range(4):
            acc=AA if nt%2==0 else AB
            for ks in range(8):
                c="0" if ks==0 else R16(acc)
                L.append(f"v_mfma_f32_32x32x16_bf16 {R16(acc)}, {R4(TF+4*ks)}, {A4(128+4*(nt*8+ks))}, {c}")
            for ee in range(2):
                for i in range(4): L.append(f"v_cvt_pk_bf16_f32 v{UF+8*nt+4*ee+i}, v{acc+8*ee+2*i}, v{acc+8*ee+2*i+1}")
        Y=X+4; XS=X+8; RK=X+12; T0=X+16; RQ=X+5; Q=X+24
        RQ=[X+5,X+6,X+7,X+22]
        L.extend([f"v_mov_b32 v{Y}, v{RHO}",f"v_mov_b32_dpp v{Y}, v{RHO} row_shr:4 row_mask:0x3 bank_mask:0xa",f"v_mov_b32_dpp v{Y}, v{RHO} row_shl:4 row_mask:0xc bank_mask:0x5"])
        for i in range(4):
            L.append(f"v_mov_b32_dpp v{RK+i}, v{Y} quad_perm:[{i},{i},{i},{i}] row_mask:0xf bank_mask:0xf")
            L.append(f"v_cndmask_b32 v{XS+i}, v{SC+i}, v{SC+4+i}, s[42:43]")
            L.append(f"v_cndmask_b32 v{XS+i}, v{XS+i}, v{SC+8+i}, s[44:45]")
            L.append(f"v_cndmask_b32 v{XS+i}, v{XS+i}, v{SC+12+i}, s[46:47]")
        for i in range(4):
            L.append(f"v_mul_f32 v{RQ[i]}, v{RK+i}, v{RHO}")
            L.append(f"v_mul_f32 v{XS+i}, v{XS+i}, v{RQ[i]}")
        L+=f"""v_max3_f32 v{T0}, v{XS}, v{XS+1}, v{XS+2}
        v_max_f32 v{T0}, v{T0}, v{XS+3}
        v_mov_b32 v{T0+1}, v{T0}
        v_permlane32_swap_b32 v{T0}, v{T0+1}
        v_max_f32 v{T0}, v{T0}, v{T0+1}""".split('\n')
        for i in range(4): L+= [f"v_sub_f32 v{XS+i}, v{XS+i}, v{T0}",f"v_exp_f32 v{XS+i}, v{XS+i}"]
        L+=f"""v_add_f32 v{T0+2}, v{XS}, v{XS+1}
        v_add_f32 v{T0+3}, v{XS+2}, v{XS+3}
        v_add_f32 v{T0+2}, v{T0+2}, v{T0+3}
        v_mov_b32 v{T0+3}, v{T0+2}
        v_permlane32_swap_b32 v{T0+2}, v{T0+3}
        v_add_f32 v{T0+2}, v{T0+2}, v{T0+3}
        v_rcp_f32 v{T0+2}, v{T0+2}""".split('\n')
        for i in range(4): L+= [f"v_mul_f32 v{RK+i}, v{RK+i}, v{T0+2}",f"v_mul_f32 v{PP+i}, v{XS+i}, v{RK+i}"]
        L+= [f"v_cvt_pk_bf16_f32 v{T0+4}, v{PP}, v{PP+1}",f"v_cvt_pk_bf16_f32 v{T0+5}, v{PP+2}, v{PP+3}"]
        for ee in range(2):
            for half in range(2):
                q=2*ee+half
                L+= [f"v_cndmask_b32 v{PF+4*ee+2*half}, 0, v{T0+4}, s[{40+2*q}:{41+2*q}]",f"v_cndmask_b32 v{PF+4*ee+2*half+1}, 0, v{T0+5}, s[{40+2*q}:{41+2*q}]"]
        for nt in range(4):
            acc=SC if nt%2==0 else XT; SF=SF0 if nt%2==0 else SF1
            for r in range(16):
                src=TF+4*(2*nt+(r>>3))+((r&7)>>1)
                L.append(f"v_and_b32 v{acc+r}, s56, v{src}" if r&1 else f"v_lshlrev_b32 v{acc+r}, 16, v{src}")
            for ee in range(2):
                L.append(f"v_mfma_f32_32x32x16_bf16 {R16(acc)}, {R4(UF+8*nt+4*ee)}, {R4(PF+4*ee)}, {R16(acc)}")
            for ee in range(2):
                for i in range(4): L.append(f"v_cvt_pk_bf16_f32 v{SF+4*ee+i}, v{acc+8*ee+2*i}, v{acc+8*ee+2*i+1}")
            for r in range(16):
                if nt==0 and r<4: L.append(f"v_mul_f32 v{Q+r}, v{acc+r}, v{acc+r}")
                else: L.append(f"v_fmac_f32 v{Q+(r%4)}, v{acc+r}, v{acc+r}")
            for ee in range(2):
                ks=2*nt+ee
                w=swread(ks)
                c="0" if ks==0 else R4(ST2)
                L.append(f"v_mfma_f32_16x16x32_bf16 {R4(ST2)}, {R4(w)}, {R4(SF+4*ee)}, {c}")
        return L
    def tail():
        L=[]; Q=XM+24; T=XT
        RA=T; Z=T+16; AL=T+19; Yt=T+20; BE=T+21; AK=T+25; PK=T+29
        L+=f"""v_add_f32 v{Z}, v{Q}, v{Q+1}
        v_add_f32 v{Z+1}, v{Q+2}, v{Q+3}
        v_add_f32 v{Z}, v{Z}, v{Z+1}
        v_mov_b32 v{Z+1}, v{Z}
        v_permlane32_swap_b32 v{Z}, v{Z+1}
        v_add_f32 v{Z}, v{Z}, v{Z+1}
        v_mul_f32 v{Z+1}, s57, v{ST2}
        v_add_f32 v{Z+2}, v{ST2+1}, v{ST2+2}
        v_mul_f32 v{Z}, s57, v{Z}
        v_fma_f32 v{Z}, -v{Z+1}, v{Z+1}, v{Z}
        v_add_f32 v{Z}, s58, v{Z}
        v_rsq_f32 v{Z}, v{Z}
        v_mul_f32 v{Z}, v{Z}, v{Z+2}""".split('\n')
        for i in range(4): L.append(f"v_mov_b32 v{BE+i}, v{PP+i}")
        def red8(op,dst,src):
            o2=op+'_dpp'
            L.extend([f"{o2} v{dst}, v{src}, v{src} quad_perm:[1,0,3,2] row_mask:0xf bank_mask:0xf",
                      f"{o2} v{dst}, v{dst}, v{dst} quad_perm:[2,3,0,1] row_mask:0xf bank_mask:0xf",
                      f"{o2} v{dst}, v{dst}, v{dst} row_half_mirror row_mask:0xf bank_mask:0xf"])
        red8('v_max_f32',Z+1,Z)
        L+= [f"v_sub_f32 v{Z}, v{Z}, v{Z+1}",f"v_exp_f32 v{Z}, v{Z}"]
        red8('v_add_f32',Z+2,Z)
        L+= [f"v_rcp_f32 v{Z+2}, v{Z+2}",f"v_mul_f32 v{AL}, v{Z}, v{Z+2}"]
        for i in range(4):
            L.append(f"v_mul_f32 v{BE+i}, v{BE+i}, v{AL}")
            red8('v_add_f32',BE+i,BE+i)
        L.extend([f"v_mov_b32 v{Yt}, v{AL}",f"v_mov_b32_dpp v{Yt}, v{AL} row_shr:4 row_mask:0x3 bank_mask:0xa",f"v_mov_b32_dpp v{Yt}, v{AL} row_shl:4 row_mask:0xc bank_mask:0x5"])
        for i in range(4): L.append(f"v_mov_b32_dpp v{AK+i}, v{Yt} quad_perm:[{i},{i},{i},{i}] row_mask:0xf bank_mask:0xf")
        L+= [f"v_cvt_pk_bf16_f32 v{PK}, v{BE}, v{BE+1}",f"v_cvt_pk_bf16_f32 v{PK+1}, v{BE+2}, v{BE+3}",f"v_cvt_pk_bf16_f32 v{PK+2}, v{AK}, v{AK+1}",f"v_cvt_pk_bf16_f32 v{PK+3}, v{AK+2}, v{AK+3}"]
        for i in range(4): L.append(f"v_mov_b32 v{PK+4+i}, v{PK+i}")
        for i in range(4): L.append(f"v_permlane16_swap_b32 v{PK+i}, v{PK+4+i}")
        for ee in range(2):
            kl=f"s[{48+4*ee}:{49+4*ee}]"; kh=f"s[{50+4*ee}:{51+4*ee}]"
            for w,b0 in enumerate((0,2)):
                base=RA+8*w+4*ee; src=PK+4*ee+b0
                L+= [f"v_cndmask_b32 v{base}, 0, v{src}, {kl}",f"v_cndmask_b32 v{base+1}, 0, v{src+1}, {kl}",f"v_cndmask_b32 v{base+2}, 0, v{src}, {kh}",f"v_cndmask_b32 v{base+3}, 0, v{src+1}, {kh}"]
        for nt in range(4):
            tl=TL+8*(nt%2); d=DD+4*(nt%2)
            for ee in range(2):
                for jj in range(2):
                    r=tl+4*ee+2*jj
                    if 'notl' not in EXP: L.append(f"ds_read_b64_tr_b16 v[{r}:{r+1}], v{VT} offset:{nt*1024+(2*ee+jj)*8}")
            L.append(f"v_mfma_f32_16x16x32_bf16 {R4(d)}, {R4(UF+8*nt)}, {R4(RA)}, 0")
            L.append(f"v_mfma_f32_16x16x32_bf16 {R4(d)}, {R4(UF+8*nt+4)}, {R4(RA+4)}, {R4(d)}")
            L.append(f"v_mfma_f32_16x16x32_bf16 {R4(d)}, {R4(tl)}, {R4(RA+8)}, {R4(d)}")
            L.append(f"v_mfma_f32_16x16x32_bf16 {R4(d)}, {R4(tl+4)}, {R4(RA+12)}, {R4(d)}")
            t=(BE+1 if nt%2==0 else AK+1)
            t+=t%2
            L+= [f"v_cvt_pk_bf16_f32 v{t}, v{d}, v{d+1}",f"v_cvt_pk_bf16_f32 v{t+1}, v{d+2}, v{d+3}"]
            if 'nost' not in EXP: L.append(f"buffer_store_dwordx2 v[{t}:{t+1}], v{VOUT}, s[12:15], s59 offen offset:{64*nt}")
        return L
    def emit(L):
        if 'novalu' in EXP: L=[x for x in L if isinstance(x,list) or not (x.startswith('v_') and not x.startswith('v_mfma'))]
        if 'nomfma' in EXP: L=[x for x in L if isinstance(x,list) or not x.startswith('v_mfma')]
        if 'nods' in EXP: L=[x for x in L if isinstance(x,list) or not x.startswith('ds_')]
        o,t=sched.schedule(L,LDSLAT,dma_gap=DMAGAP,verbose=verbose); e("\n".join(o))
    e(f"s_mov_b32 s35, 0\ns_mov_b32 s26, 0\ns_mov_b32 s27, 1\ns_mov_b32 s33, {BLKS}")
    blockid('s27','s33')
    emit(dma_bundles()+main())
    e("K4_ROUND:")
    stamp(0)
    e(f"""
    v_add_u32 v{VT}, s26, v{VB2}
    s_lshl_b32 s3, s32, 12
    s_lshl_b32 s59, s24, 10
    s_add_u32 s59, s59, s3
    s_add_u32 s35, s35, 1
    s_cmp_ge_u32 s35, s36
    s_cbranch_scc1 K4_LAST
    s_mov_b32 s32, s28
    s_add_u32 s3, s26, {BLKS}
    s_cmp_eq_u32 s3, {3*BLKS}
    s_cselect_b32 s3, 0, s3
    s_sub_u32 s34, s3, s26
    v_add_u32 v{VB1}, s34, v{VB1}
    s_mov_b32 s26, s3
    s_add_u32 s27, s35, 1
    s_add_u32 s33, s26, {BLKS}
    s_cmp_eq_u32 s33, {3*BLKS}
    s_cselect_b32 s33, 0, s33
    s_waitcnt vmcnt(0)
    """)
    stamp(1)
    e("s_barrier")
    stamp(2)
    e("s_cmp_ge_u32 s27, s36\ns_cbranch_scc1 K4_NODMA")
    blockid('s27','s33')
    emit((dma_bundles() if 'nodma' not in EXP else [])+(tail() if 'notail' not in EXP else [])+main())
    stamp(3)
    e("s_branch K4_ROUND\nK4_NODMA:")
    emit(tail()+main())
    e("s_branch K4_ROUND\nK4_LAST:")
    emit(tail())
    if TS:
        e("s_cmp_lg_u32 s2, 37\ns_cbranch_scc1 K4_END\ns_memtime s[62:63]\ns_waitcnt lgkmcnt(0)\ns_sub_u32 s90, s62, s60")
        for k in range(13): e(f"v_writelane_b32 v{VT+1}, s{78+k}, {k}")
        e(f"s_lshl_b32 s3, s24, 6\ns_add_u32 s3, s3, {OFF_DBG}\nv_lshlrev_b32 v{VT+2}, 2, v1\nv_add_u32 v{VT+2}, s3, v{VT+2}\nv_cmp_gt_u32 vcc, 13, v1\ns_and_saveexec_b64 s[30:31], vcc\nglobal_store_dword v{VT+2}, v{VT+1}, s[4:5]")
    e("K4_END:")
    return e.text(), NV, 96, 256
```

```python
import sys
sys.path.insert(0,'dev')
from glib import *
import hazard
def K(name,gen,**kw):
    r=gen(**kw); b,vg,sg=r[:3]; ag=r[3] if len(r)>3 else 0
    b,n=hazard.fix(b); return kernel_text(name,b,vg,sg,ag)
if __name__=='__main__':
    from prep import *
    what=sys.argv[1]
    L=[('prep1_kernel',K1_GRID,1024,K1_LDS),('prep2_kernel',K2_GRID,1024,K2_LDS)]
    Ks=[K('prep1_kernel',gen_k1),K('prep2_kernel',gen_k2)]
    if what in('123','all'):
        from k3 import *
        L.append(('hops_kernel',256,1024,K3_LDS)); Ks.append(K('hops_kernel',gen_k3,TS=(2 if 'tsp' in sys.argv else 1 if 'ts' in sys.argv else 0), DBG='dbg' in sys.argv, FORCE_SLOW='slow' in sys.argv, FORCE_SLOWSYNC='slowsync' in sys.argv, PD=(1 if 'pd1' in sys.argv else 2), GATE='nogate' not in sys.argv, TMODE=(1 if 't1' in sys.argv else 2 if 't2' in sys.argv else 0)))
    if what=='all':
        from k4v3 import gen_k4,K4_LDS,K4_BLOCK
        L.append(('final_kernel',256,K4_BLOCK,K4_LDS)); Ks.append(K('final_kernel',gen_k4,TS='ts4' in sys.argv,TSR=1))
    open(sys.argv[2],'w').write(file_text(L,Ks))
```

```python
from glib import E
from layout import *
import struct
ZSI=16896
OFF_NINFO=OFF_FL+1024*1024
def wave_scan(e,v,tmp=None):
    for sh in (1,2,4,8):
        e(f"v_add_u32_dpp v{v}, v{v}, v{v} row_shr:{sh} row_mask:0xf bank_mask:0xf bound_ctrl:0")
    e(f"v_add_u32_dpp v{v}, v{v}, v{v} row_bcast:15 row_mask:0xa bank_mask:0xf")
    e(f"v_add_u32_dpp v{v}, v{v}, v{v} row_bcast:31 row_mask:0xc bank_mask:0xf")
def allred32_f32(e,v,tmp):
    e(f"v_add_f32_dpp v{v}, v{v}, v{v} quad_perm:[1,0,3,2] row_mask:0xf bank_mask:0xf")
    e(f"v_add_f32_dpp v{v}, v{v}, v{v} quad_perm:[2,3,0,1] row_mask:0xf bank_mask:0xf")
    e(f"v_add_f32_dpp v{v}, v{v}, v{v} row_half_mirror row_mask:0xf bank_mask:0xf")
    e(f"v_add_f32_dpp v{v}, v{v}, v{v} row_mirror row_mask:0xf bank_mask:0xf")
    e(f"v_mov_b32 v{tmp}, v{v}\nv_permlane16_swap_b32 v{v}, v{tmp}\nv_add_f32 v{v}, v{v}, v{tmp}")
def head(e,grid,P):
    e(f"""
    s_cmp_ge_u32 s2, {grid}
    s_cbranch_scc1 {P}_END
    s_load_dwordx2 s[4:5], s[0:1], 88      ; ws
    v_lshrrev_b32 v2, 6, v0
    v_and_b32 v1, 63, v0
    s_nop 0
    v_readfirstlane_b32 s22, v2
    """)
def role_chunk(e,P):
    e(f"""
    s_load_dwordx4 s[8:11], s[0:1], 8
    s_mul_i32 s3, s2, {CHE*4}
    v_lshlrev_b32 v2, 4, v0
    v_add_u32 v2, s3, v2
    v_mov_b32 v3, 0
    v_lshlrev_b32 v4, 2, v0
    v_cmp_gt_u32 vcc, 128, v0
    s_and_saveexec_b64 s[30:31], vcc
    ds_write_b32 v4, v3
    s_mov_b64 exec, s[30:31]
    s_waitcnt lgkmcnt(0)
    s_mov_b32 s12, s8
    s_mov_b32 s13, s9
    s_mov_b32 s14, {EDG*4}
    s_mov_b32 s15, 0x20000
    s_mov_b32 s16, s10
    s_mov_b32 s17, s11
    s_mov_b32 s18, {EDG*4}
    s_mov_b32 s19, 0x20000
    v_cmp_gt_u32 vcc, {CHE//4}, v0
    s_and_saveexec_b64 s[30:31], vcc
    s_cbranch_execz {P}_C1
    buffer_load_dwordx4 v[8:11], v2, s[16:19], 0 offen     ; dst
    buffer_load_dwordx4 v[12:15], v2, s[12:15], 0 offen    ; src
    {P}_C1:
    s_mov_b64 exec, s[30:31]
    s_barrier
    s_mov_b32 s20, 21913099
    s_movk_i32 s21, 196
    s_and_saveexec_b64 s[30:31], vcc
    s_cbranch_execz {P}_C2
    s_waitcnt vmcnt(1)
    v_mov_b32 v3, 1
    """)
    for i in range(4):
        e(f"""v_mul_hi_u32 v{16+i}, v{8+i}, s20
        v_mul_lo_u32 v{20+i}, v{16+i}, s21
        v_sub_u32 v{20+i}, v{8+i}, v{20+i}
        v_lshlrev_b32 v{16+i}, 2, v{16+i}
        ds_add_rtn_u32 v{24+i}, v{16+i}, v3""")
    e(f"""
    {P}_C2:
    s_mov_b64 exec, s[30:31]
    s_waitcnt lgkmcnt(0)
    s_barrier
    s_cmp_lg_u32 s22, 0
    s_cbranch_scc1 {P}_C3
    v_lshlrev_b32 v4, 3, v1
    ds_read_b64 v[6:7], v4
    s_waitcnt lgkmcnt(0)
    v_add_u32 v5, v6, v7
    v_mov_b32 v28, v5
    """)
    wave_scan(e,28)
    e(f"""
    v_sub_u32 v28, v28, v5
    v_add_u32 v29, v28, v6
    ds_write_b64 v4, v[28:29] offset:1024
    v_mul_u32_u24 v5, {2*NCH*4}, v1
    s_lshl_b32 s3, s2, 2
    s_add_u32 s3, s3, {OFF_OFFS}
    v_add_u32 v5, s3, v5
    global_store_dword v5, v28, s[4:5]
    global_store_dword v5, v29, s[4:5] offset:{NCH*4}
    v_mov_b32 v6, {CHE}
    v_mov_b32 v5, s3
    v_add_u32 v5, {128*NCH*4}, v5
    v_cmp_eq_u32 vcc, 0, v1
    s_and_saveexec_b64 s[32:33], vcc
    global_store_dword v5, v6, s[4:5]
    s_mov_b64 exec, s[32:33]
    {P}_C3:
    s_waitcnt lgkmcnt(0)
    s_barrier
    v_cmp_gt_u32 vcc, {CHE//4}, v0
    s_and_saveexec_b64 s[30:31], vcc
    """)
    for i in range(4): e(f"ds_read_b32 v{28+i}, v{16+i} offset:1024")
    e("s_waitcnt vmcnt(0) lgkmcnt(0)")
    for i in range(4):
        e(f"""v_add_u32 v{28+i}, v{28+i}, v{24+i}
        v_lshlrev_b32 v{28+i}, 2, v{28+i}
        v_lshl_or_b32 v{12+i}, v{20+i}, 16, v{12+i}
        ds_write_b32 v{28+i}, v{12+i} offset:2048""")
    e(f"""s_mov_b64 exec, s[30:31]
    s_waitcnt lgkmcnt(0)
    s_barrier
    s_and_saveexec_b64 s[30:31], vcc
    s_cbranch_execz {P}_END
    v_lshlrev_b32 v4, 4, v0
    ds_read_b128 v[8:11], v4 offset:2048
    s_mul_i32 s3, s2, {CHE*4}
    s_add_u32 s3, s3, {OFF_CH}
    v_add_u32 v4, s3, v4
    s_waitcnt lgkmcnt(0)
    global_store_dwordx4 v4, v[8:11], s[4:5]
    s_endpgm""")
def role_x(e,P,wg0,task0,task1,wpw,doG=True,doT=True):
    e(f"""
    s_load_dwordx2 s[8:9], s[0:1], 0        ; x
    s_load_dwordx2 s[12:13], s[0:1], 24     ; dis
    s_cmp_ge_u32 s22, {wpw}
    s_cbranch_scc1 {P}_END
    s_sub_u32 s3, s2, {wg0}
    s_mul_i32 s3, s3, {wpw}
    s_add_u32 s3, s3, s22
    s_add_u32 s3, s3, {task0}
    s_cmp_ge_u32 s3, {task1}
    s_cbranch_scc1 {P}_END
    s_lshl_b32 s20, s3, 4                   ; n0
    v_and_b32 v2, 15, v1
    v_add_u32 v2, s20, v2                   ; node
    v_lshrrev_b32 v3, 4, v1                 ; c4
    v_lshlrev_b32 v4, 8, v2
    v_lshl_add_u32 v4, v3, 4, v4
    v_lshlrev_b32 v5, 1, v2
    s_waitcnt lgkmcnt(0)
    s_mov_b32 s10, {N*256}
    s_mov_b32 s11, 0x20000
    s_mov_b32 s14, {N*2}
    s_mov_b32 s15, 0x20000
    """)
    e("buffer_load_ushort v6, v5, s[12:15], 0 offen")
    for i in range(4): e(f"buffer_load_dwordx4 v[{8+4*i}:{11+4*i}], v4, s[8:11], 0 offen offset:{64*i}")
    e(f"""
    s_add_u32 s16, s4, {OFF_T}
    s_addc_u32 s17, s5, 0
    s_mov_b32 s18, {32*TS_STRIDE}
    s_mov_b32 s19, 0x20000
    s_add_u32 s24, s4, {OFF_G}
    s_addc_u32 s25, s5, 0
    s_mov_b32 s26, {32*TS_STRIDE}
    s_mov_b32 s27, 0x20000
    s_mov_b32 s21, {TS_STRIDE}
    v_and_b32 v7, 1, v1
    v_lshl_add_u32 v7, v3, 1, v7            ; 2*c4+parity
    v_mul_lo_u32 v7, v7, s21
    v_and_b32 v5, -2, v2
    v_lshl_add_u32 v7, v5, 3, v7
    s_mov_b32 s28, 0xffff0000
    s_mov_b32 s30, 0xaaaaaaaa
    s_mov_b32 s31, 0xaaaaaaaa
    s_waitcnt vmcnt(4)
    v_lshlrev_b32 v6, 16, v6
    """)
    def xch(d,o,t):
        e(f"""v_cndmask_b32 v{t}, v{d+2}, v{d}, s[30:31]
        v_cndmask_b32 v{t+1}, v{d+3}, v{d+1}, s[30:31]
        v_mov_b32_dpp v{t+2}, v{t} quad_perm:[1,0,3,2] row_mask:0xf bank_mask:0xf
        v_mov_b32_dpp v{t+3}, v{t+1} quad_perm:[1,0,3,2] row_mask:0xf bank_mask:0xf
        v_cndmask_b32 v{o}, v{d}, v{t+2}, s[30:31]
        v_cndmask_b32 v{o+1}, v{d+1}, v{t+3}, s[30:31]
        v_cndmask_b32 v{o+2}, v{t+2}, v{d+2}, s[30:31]
        v_cndmask_b32 v{o+3}, v{t+3}, v{d+3}, s[30:31]""")
    nst=int(doG)+int(doT)
    for i in range(4):
        b=8+4*i
        e(f"s_waitcnt vmcnt({(3-i)+nst*i})")
        e(f"s_mov_b32 s3, {8*i*TS_STRIDE}")
        if doG:
            for r in range(4):
                e(f"v_lshlrev_b32 v{24+2*r}, 16, v{b+r}\nv_and_b32 v{25+2*r}, s28, v{b+r}\nv_mul_f32 v{24+2*r}, v{24+2*r}, v6\nv_mul_f32 v{25+2*r}, v{25+2*r}, v6\nv_cvt_pk_bf16_f32 v{32+r}, v{24+2*r}, v{25+2*r}")
            xch(32,40+8*i,36)
            e(f"buffer_store_dwordx4 v[{40+8*i}:{43+8*i}], v7, s[24:27], s3 offen")
        if doT:
            xch(b,44+8*i,36)
            e(f"buffer_store_dwordx4 v[{44+8*i}:{47+8*i}], v7, s[16:19], s3 offen")
    e("s_endpgm")
ACC=64; CS=32768
def w_finish(e,center_right,scale,woff):
    e(f"v_add_f32 v8, v{ACC}, v{ACC+1}")
    for r in range(2,16): e(f"v_add_f32 v8, v8, v{ACC+r}")
    e("v_mov_b32 v12, v8\nv_permlane32_swap_b32 v8, v12\nv_add_f32 v8, v8, v12")
    e(f"v_and_b32 v13, 31, v1\nv_lshlrev_b32 v13, 2, v13\ns_lshl_b32 s3, s22, 7\nv_add_u32 v14, s3, v13\nds_write_b32 v14, v8 offset:{CS}")
    if center_right:
        e("v_add_f32 v9, v40, v41")
        for r in range(2,16): e(f"v_add_f32 v9, v9, v{40+r}")
        e("v_mov_b32 v12, v9\nv_permlane32_swap_b32 v9, v12\nv_add_f32 v9, v9, v12")
        e(f"v_bfe_u32 v14, v1, 2, 1\nv_lshlrev_b32 v14, 4, v14\nv_bfe_u32 v15, v1, 3, 2\nv_lshl_add_u32 v14, v15, 2, v14\nv_and_b32 v15, 3, v1\nv_add_u32 v14, v14, v15\nv_lshlrev_b32 v14, 2, v14\nv_add_u32 v14, s3, v14\nds_write_b32 v14, v9 offset:{CS+2048}")
    e("s_waitcnt lgkmcnt(0)\ns_barrier")
    e("s_and_b32 s3, s22, 3\ns_lshl_b32 s3, s3, 7\nv_add_u32 v14, s3, v13")
    for it in range(4): e(f"ds_read_b32 v{16+it}, v14 offset:{CS+512*it}")
    if center_right:
        e(f"v_lshlrev_b32 v15, 5, v1\nds_read_b128 v[20:23], v15 offset:{CS}\nds_read_b128 v[24:27], v15 offset:{CS+16}")
        e(f"s_lshr_b32 s3, s22, 2\ns_lshl_b32 s3, s3, 9\nv_lshrrev_b32 v15, 5, v1\nv_lshlrev_b32 v15, 6, v15\nv_add_u32 v15, s3, v15")
        for mt in range(4):
            for q in range(4): e(f"ds_read_b128 v[{84+16*(mt%2)+4*q}:{87+16*(mt%2)+4*q}], v15 offset:{CS+2048+128*mt+16*q}")
            if mt%2==1:
                e("s_waitcnt lgkmcnt(0)")
                for r in range(16):
                    if mt==1: e(f"v_add_f32 v{40+r}, v{84+r}, v{100+r}")
                    else: e(f"v_add_f32 v{84+r}, v{84+r}, v{100+r}\nv_add_f32 v{40+r}, v{40+r}, v{84+r}")
    e("s_waitcnt lgkmcnt(0)\ns_mov_b32 s3, 0x3c000000")
    e("v_add_f32 v8, v16, v17\nv_add_f32 v9, v18, v19\nv_add_f32 v8, v8, v9\nv_mul_f32 v8, s3, v8")
    if center_right:
        e("v_add_f32 v12, v20, v21")
        for k in range(2,8): e(f"v_add_f32 v12, v12, v{20+k}")
        allred32_f32(e,12,15)
        e("v_mov_b32 v15, v12\nv_permlane32_swap_b32 v12, v15\nv_add_f32 v12, v12, v15")
        e("v_mul_f32 v12, s3, v12\nv_mul_f32 v12, s3, v12\nv_sub_f32 v8, v8, v12")
        for r in range(16): e(f"v_fma_f32 v{40+r}, s3, v{40+r}, v8")
    e(f"s_mov_b32 s3, {scale:#x}")
    for r in range(16):
        a=ACC+r
        e(f"v_sub_f32 v{a}, v{a}, v{40+r}" if center_right else f"v_sub_f32 v{a}, v{a}, v8")
        if scale!=0x3f800000: e(f"v_mul_f32 v{a}, s3, v{a}")
    e(f"s_and_b32 s3, s22, 3\ns_lshl_b32 s3, s3, 13\ns_lshr_b32 s20, s22, 2\ns_lshl_b32 s20, s20, 11\ns_add_u32 s3, s3, s20\ns_add_u32 s3, s3, {OFF_W+woff}\nv_lshlrev_b32 v13, 4, v1\nv_add_u32 v13, s3, v13")
    for ee in range(2):
        for i in range(4): e(f"v_cvt_pk_bf16_f32 v{32+4*ee+i}, v{ACC+8*ee+2*i}, v{ACC+8*ee+2*i+1}")
        e(f"global_store_dwordx4 v13, v[{32+4*ee}:{35+4*ee}], s[4:5] offset:{ee*1024}")
    e("s_endpgm")
def rowaddr(e):
    e("""v_and_b32 v2, 0x13, v1
    v_bfe_u32 v3, v1, 2, 1
    v_lshl_or_b32 v2, v3, 3, v2
    v_bfe_u32 v3, v1, 3, 1
    v_lshl_or_b32 v2, v3, 2, v2
    v_lshlrev_b32 v3, 8, v2
    v_lshrrev_b32 v4, 5, v1
    v_lshl_add_u32 v3, v4, 4, v3""")
def two_srd(e,off):
    e(f"""s_load_dwordx4 s[8:11], s[0:1], {off}
    s_waitcnt lgkmcnt(0)
    s_mov_b32 s12, s8
    s_mov_b32 s13, s9
    s_mov_b32 s14, 32768
    s_mov_b32 s15, 0x20000
    s_mov_b32 s16, s10
    s_mov_b32 s17, s11
    s_mov_b32 s18, 32768
    s_mov_b32 s19, 0x20000""")
def stage(e,srd,ldsbase,r0):
    e(f"buffer_load_dwordx4 v[{r0}:{r0+3}], v90, {srd}, 0 offen\nbuffer_load_dwordx4 v[{r0+4}:{r0+7}], v91, {srd}, 0 offen")
def stage_addr(e):
    e("""v_lshlrev_b32 v90, 4, v0
    v_add_u32 v91, 16384, v90
    v_lshrrev_b32 v92, 4, v0
    v_and_b32 v93, 15, v92
    v_and_b32 v94, 15, v0
    v_xor_b32 v93, v93, v94
    v_lshlrev_b32 v93, 4, v93
    v_lshl_add_u32 v92, v92, 8, v93""")
def frag_addr(e,reg,tile_sreg):
    e(f"""v_and_b32 v2, 0x13, v1
    v_bfe_u32 v3, v1, 2, 1
    v_lshl_or_b32 v2, v3, 3, v2
    v_bfe_u32 v3, v1, 3, 1
    v_lshl_or_b32 v2, v3, 2, v2
    v_and_b32 v3, 15, v2
    v_lshrrev_b32 v4, 5, v1
    v_xor_b32 v{reg+1}, v3, v4
    v_lshlrev_b32 v{reg}, 8, v2
    v_add_u32 v{reg}, {tile_sreg}, v{reg}""")
def frag_read(e,dst,reg,es,base):
    e(f"v_xor_b32 v7, {2*es}, v{reg+1}\nv_lshl_add_u32 v7, v7, 4, v{reg}\nds_read_b128 v[{dst}:{dst+3}], v7 offset:{base}")
def role_wm(e):
    two_srd(e,32); stage_addr(e)
    stage(e,'s[12:15]',0,8); stage(e,'s[16:19]',32768,16)
    e("s_lshr_b32 s20, s22, 2\ns_lshl_b32 s20, s20, 13\ns_and_b32 s21, s22, 3\ns_lshl_b32 s21, s21, 13")
    frag_addr(e,56,'s20'); frag_addr(e,58,'s21')
    e("""s_waitcnt vmcnt(2)
    ds_write_b128 v92, v[8:11]
    ds_write_b128 v92, v[12:15] offset:16384
    s_waitcnt vmcnt(0)
    ds_write_b128 v92, v[16:19] offset:32768
    ds_write_b128 v92, v[20:23] offset:49152
    s_waitcnt lgkmcnt(0)
    s_barrier""")
    for es in range(8):
        frag_read(e,8+4*es,56,es,0); frag_read(e,84+4*es,58,es,32768)
        if es%4==3: e("s_waitcnt lgkmcnt(0)")
    e("s_barrier")
    for es in range(8):
        c="0" if es==0 else f"v[{ACC}:{ACC+15}]"
        e(f"v_mfma_f32_32x32x16_bf16 v[{ACC}:{ACC+15}], v[{8+4*es}:{11+4*es}], v[{84+4*es}:{87+4*es}], {c}")
        c="0" if es==0 else "v[40:55]"
        e(f"v_mfma_f32_32x32x16_bf16 v[40:55], v[{84+4*es}:{87+4*es}], v[{8+4*es}:{11+4*es}], {c}")
    sc=struct.unpack('<I',struct.pack('<f',1.4426950408889634/128**0.5))[0]
    w_finish(e,True,sc,0)
def role_wu(e):
    two_srd(e,48); stage_addr(e)
    stage(e,'s[12:15]',0,8); stage(e,'s[16:19]',32768,16)
    e("s_lshr_b32 s20, s22, 2\ns_lshl_b32 s20, s20, 13")
    frag_addr(e,56,'s20')
    e("""
    v_lshrrev_b32 v5, 5, v1
    v_lshlrev_b32 v5, 3, v5
    v_bfe_u32 v6, v1, 2, 2
    v_add_u32 v5, v5, v6
    v_lshlrev_b32 v5, 8, v5
    v_bfe_u32 v6, v1, 4, 1
    v_lshlrev_b32 v6, 4, v6
    v_and_b32 v7, 1, v1
    v_lshl_add_u32 v6, v7, 3, v6
    v_bfe_u32 v7, v1, 1, 1
    v_lshl_add_u32 v6, v7, 2, v6
    v_lshl_add_u32 v5, v6, 1, v5
    s_and_b32 s21, s22, 3
    s_lshl_b32 s21, s21, 6
    v_add_u32 v5, s21, v5
    s_waitcnt vmcnt(2)
    ds_write_b128 v92, v[8:11]
    ds_write_b128 v92, v[12:15] offset:16384
    s_waitcnt vmcnt(0)
    ds_write_b128 v90, v[16:19] offset:32768
    ds_write_b128 v91, v[20:23] offset:32768
    s_waitcnt lgkmcnt(0)
    s_barrier
    """)
    for es in range(8):
        frag_read(e,8+4*es,56,es,0)
        for jj in range(2):
            e(f"ds_read_b64_tr_b16 v[{84+4*es+2*jj}:{85+4*es+2*jj}], v5 offset:{32768+(16*es+4*jj)*256}")
        if es%4==3: e("s_waitcnt lgkmcnt(0)")
    e("s_barrier")
    for es in range(8):
        c="0" if es==0 else f"v[{ACC}:{ACC+15}]"
        e(f"v_mfma_f32_32x32x16_bf16 v[{ACC}:{ACC+15}], v[{8+4*es}:{11+4*es}], v[{84+4*es}:{87+4*es}], {c}")
    w_finish(e,False,0x3f800000,32768)
def role_sw(e,P):
    lg=struct.unpack('<I',struct.pack('<f',1.4426950408889634))[0]
    e(f"""
    s_load_dwordx2 s[8:9], s[0:1], 64       ; w_r
    v_mov_b32 v8, 0
    v_mov_b32 v9, 0
    v_mov_b32 v10, 0
    v_mov_b32 v11, 0
    v_lshlrev_b32 v2, 4, v0
    v_add_u32 v2, {OFF_FL}, v2
    s_waitcnt lgkmcnt(0)
    global_store_dwordx4 v2, v[8:11], s[4:5]
    s_cmp_lg_u32 s22, 0
    s_cbranch_scc1 {P}_SW2
    v_lshlrev_b32 v3, 2, v1
    global_load_dword v4, v3, s[8:9]
    s_waitcnt vmcnt(0)
    v_lshlrev_b32 v5, 16, v4
    v_and_b32 v6, 0xffff0000, v4
    v_add_f32 v7, v5, v6
    """)
    allred32_f32(e,7,12)
    e(f"""
    v_mov_b32 v12, v7
    v_permlane32_swap_b32 v7, v12
    v_add_f32 v7, v7, v12
    v_mul_f32 v7, 0x3c000000, v7
    v_sub_f32 v5, v5, v7
    v_sub_f32 v6, v6, v7
    v_mul_f32 v5, {lg:#x}, v5
    v_mul_f32 v6, {lg:#x}, v6
    v_cvt_pk_bf16_f32 v12, v5, v6
    v_lshlrev_b32 v13, 16, v12
    v_and_b32 v14, 0xffff0000, v12
    v_sub_f32 v5, v5, v13
    v_sub_f32 v6, v6, v14
    v_cvt_pk_bf16_f32 v13, v5, v6
    ds_write_b32 v3, v12 offset:256
    ds_write_b32 v3, v13 offset:512
    v_mov_b32 v12, 0x3f803f80
    v_mov_b32 v13, 0
    ds_write_b32 v3, v12
    ds_write_b32 v3, v13 offset:768
    {P}_SW2:
    s_waitcnt lgkmcnt(0)
    s_barrier
    s_cmp_ge_u32 s22, 8
    s_cbranch_scc1 {P}_END
    v_and_b32 v2, 3, v1
    v_lshlrev_b32 v2, 8, v2
    v_lshrrev_b32 v3, 5, v1
    v_lshl_add_u32 v2, v3, 4, v2
    s_lshl_b32 s3, s22, 5
    v_add_u32 v2, s3, v2
    ds_read_b128 v[8:11], v2
    v_bfe_u32 v3, v1, 4, 1
    v_bfe_u32 v4, v1, 2, 1
    v_cmp_eq_u32 vcc, v3, v4
    s_waitcnt lgkmcnt(0)
    v_cndmask_b32 v8, 0, v8, vcc
    v_cndmask_b32 v9, 0, v9, vcc
    v_cndmask_b32 v10, 0, v10, vcc
    v_cndmask_b32 v11, 0, v11, vcc
    s_lshl_b32 s3, s22, 10
    s_add_u32 s3, s3, {OFF_W+65536}
    v_lshlrev_b32 v2, 4, v1
    v_add_u32 v2, s3, v2
    global_store_dwordx4 v2, v[8:11], s[4:5]
    s_endpgm
    """)
TSK=False
def tstamp(e,idx):
    if TSK: e(f"s_memrealtime s[62:63]\ns_waitcnt lgkmcnt(0)\ns_mov_b32 s{70+idx}, s62")
def tdump(e,wg,n):
    if not TSK: return
    lab=e.lab('TD')
    e(f"s_cmp_lg_u32 s2, {wg}\ns_cbranch_scc1 {lab}")
    for k in range(n): e(f"v_writelane_b32 v100, s{70+k}, {k}")
    e(f"s_lshl_b32 s3, s22, 6\ns_add_u32 s3, s3, {OFF_DBG}\nv_lshlrev_b32 v101, 2, v1\nv_add_u32 v101, s3, v101\nv_cmp_gt_u32 vcc, {n}, v1\ns_and_saveexec_b64 s[30:31], vcc\nglobal_store_dword v101, v100, s[4:5]\ns_mov_b64 exec, s[30:31]\n{lab}:")
def role_csr(e,P):
    tstamp(e,0)
    C1=0; C2=2560; CU=5120; OX=7680; WT=10240; ES=10496; ECAPB=16384
    e(f"""
    v_mov_b32 v3, 0
    v_lshlrev_b32 v4, 2, v0
    v_cmp_gt_u32 vcc, 640, v0
    s_and_saveexec_b64 s[30:31], vcc
    ds_write_b32 v4, v3 offset:{C1}
    ds_write_b32 v4, v3 offset:{C2}
    ds_write_b32 v4, v3 offset:{CU}
    s_mov_b64 exec, s[30:31]
    s_waitcnt lgkmcnt(0)
    s_add_u32 s8, s4, {OFF_OFFS}
    s_addc_u32 s9, s5, 0
    s_mov_b32 s10, {129*NCH*4}
    s_mov_b32 s11, 0x20000
    s_add_u32 s12, s4, {OFF_CH}
    s_addc_u32 s13, s5, 0
    s_mov_b32 s14, {EDG*4}
    s_mov_b32 s15, 0x20000
    s_add_u32 s16, s4, {OFF_ENT}
    s_addc_u32 s17, s5, 0
    s_mov_b32 s18, {ENT_BYTES}
    s_mov_b32 s19, 0x20000
    s_mul_i32 s3, s2, {NCH*4}
    v_lshlrev_b32 v5, 4, v1
    v_add_u32 v5, s22, v5                 ; seg
    v_cmp_gt_u32 vcc, {NCH}, v5
    v_cmp_gt_u32 s[32:33], 7, v1
    s_and_b64 vcc, vcc, s[32:33]
    v_lshlrev_b32 v6, 2, v5
    v_add_u32 v6, s3, v6
    v_mov_b32 v7, 0x7ffffff0
    s_nop 0
    v_cndmask_b32 v6, v7, v6, vcc
    buffer_load_dword v8, v6, s[8:11], 0 offen
    buffer_load_dword v9, v6, s[8:11], 0 offen offset:{NCH*4}
    v_lshlrev_b32 v10, 2, v1
    v_add_u32 v10, s3, v10
    buffer_load_dword v11, v10, s[8:11], 0 offen
    v_cmp_gt_u32 s[34:35], {NCH-64}, v1
    v_add_u32 v12, 256, v10
    v_cndmask_b32 v12, v7, v12, s[34:35]
    buffer_load_dword v12, v12, s[8:11], 0 offen
    s_waitcnt vmcnt(2)
    v_sub_u32 v9, v9, v8
    v_mul_u32_u24 v5, {CHE}, v5
    v_add_u32 v8, v8, v5
    """)
    tstamp(e,1)
    for i in range(7): e(f"v_readlane_b32 s{40+i}, v8, {i}\nv_readlane_b32 s{48+i}, v9, {i}")
    R=16
    for i in range(7):
        e(f"""v_add_u32 v13, s{40+i}, v1
        v_lshlrev_b32 v13, 2, v13
        v_cmp_gt_u32 vcc, s{48+i}, v1
        s_nop 1
        v_cndmask_b32 v13, v7, v13, vcc
        buffer_load_dword v{R+i}, v13, s[12:15], 0 offen""")
    e("s_waitcnt vmcnt(7)\nv_add_u32 v11, v11, v12")
    wave_scan(e,11)
    e("s_nop 1\nv_readlane_b32 s24, v11, 63\ns_barrier")
    tstamp(e,2)
    CI=24; RK=32; VL=40
    def decode(rec,ci,vl,t):
        e(f"""v_lshrrev_b32 v{ci}, 16, v{rec}
        v_and_b32 v{vl}, 0xffff, v{rec}
        v_cmp_le_u32 vcc, s28, v{vl}
        v_cmp_le_u32 s[36:37], s27, v{vl}
        v_mul_u32_u24 v{ci}, 3, v{ci}
        v_add_u32 v{t}, 512, v{vl}
        v_subrev_u32 v{t+1}, 0x4000, v{vl}
        v_cndmask_b32 v{vl}, v{vl}, v{t}, vcc
        v_cndmask_b32 v{vl}, v{vl}, v{t+1}, s[36:37]
        v_addc_co_u32 v{ci}, vcc, 0, v{ci}, vcc
        v_addc_co_u32 v{ci}, vcc, 0, v{ci}, s[36:37]
        v_lshlrev_b32 v{ci}, 2, v{ci}""")
    e("v_mov_b32 v3, 1\ns_movk_i32 s27, 0x4000\ns_movk_i32 s28, 0x2000")
    for i in range(7):
        e(f"s_waitcnt vmcnt({6-i})")
        decode(R+i,CI+i,VL+i,14)
        e(f"""v_cmp_gt_u32 vcc, s{48+i}, v1
        s_and_saveexec_b64 s[30:31], vcc
        ds_add_rtn_u32 v{RK+i}, v{CI+i}, v3 offset:{C1}
        s_mov_b64 exec, s[30:31]""")
    def remainder(final):
        for i in range(7):
            L=e.lab(P+'RM'); Lx=e.lab(P+'RX')
            e(f"""s_cmp_le_u32 s{48+i}, 64
            s_cbranch_scc1 {Lx}
            s_mov_b32 s25, 64
            {L}:
            v_add_u32 v13, s25, v1
            v_cmp_gt_u32 vcc, s{48+i}, v13
            s_and_saveexec_b64 s[30:31], vcc
            s_cbranch_execz {L}_s
            v_add_u32 v13, s{40+i}, v13
            v_lshlrev_b32 v13, 2, v13
            buffer_load_dword v48, v13, s[12:15], 0 offen
            s_waitcnt vmcnt(0)""")
            decode(48,49,50,14)
            if not final: e(f"ds_add_u32 v49, v3 offset:{C2}")
            else:
                e(f"""ds_add_rtn_u32 v51, v49, v3 offset:{CU}
                ds_read_b32 v52, v49 offset:{OX}
                ds_read_b32 v53, v49 offset:{C1}
                s_waitcnt lgkmcnt(0)
                v_add3_u32 v51, v51, v52, v53
                v_lshlrev_b32 v51, 1, v51""")
                if final==2: e("v_add_u32 v51, s39, v51\nds_write_b16 v51, v50")
                else: e("buffer_store_short v50, v51, s[16:19], 0 offen")
            e(f"""{L}_s:
            s_mov_b64 exec, s[30:31]
            s_add_u32 s25, s25, 64
            s_cmp_lt_u32 s25, s{48+i}
            s_cbranch_scc1 {L}
            {Lx}:""")
    remainder(False)
    tstamp(e,3)
    e("s_waitcnt lgkmcnt(0)\ns_barrier")
    tstamp(e,4)
    e(f"""
    s_cmp_ge_u32 s22, 4
    s_cbranch_scc1 {P}_N1
    v_mul_u32_u24 v4, 12, v0
    ds_read_b32 v48, v4 offset:{C1}
    ds_read_b32 v49, v4 offset:{C1+4}
    ds_read_b32 v50, v4 offset:{C1+8}
    ds_read_b32 v51, v4 offset:{C2}
    ds_read_b32 v52, v4 offset:{C2+4}
    ds_read_b32 v53, v4 offset:{C2+8}
    v_cmp_gt_u32 vcc, 196, v0
    s_waitcnt lgkmcnt(0)
    """)
    for k in range(3):
        e(f"v_add_u32 v{48+k}, v{48+k}, v{51+k}\nv_cndmask_b32 v{48+k}, 0, v{48+k}, vcc\nv_add_u32 v{54+k}, 1, v{48+k}\nv_and_b32 v{54+k}, -2, v{54+k}")
    e("v_add3_u32 v57, v54, v55, v56\nv_mov_b32 v58, v57")
    wave_scan(e,58)
    e(f"""
    s_nop 1
    v_readlane_b32 s3, v58, 63
    s_lshl_b32 s25, s22, 2
    v_mov_b32 v59, s25
    v_mov_b32 v60, s3
    ds_write_b32 v59, v60 offset:{WT}
    {P}_N1:
    s_waitcnt lgkmcnt(0)
    s_barrier
    s_cmp_ge_u32 s22, 4
    s_cbranch_scc1 {P}_P2
    v_mov_b32 v59, 0
    ds_read_b128 v[60:63], v59 offset:{WT}
    v_sub_u32 v58, v58, v57
    s_mul_i32 s3, s2, 590
    s_add_u32 s3, s3, s24
    s_add_u32 s3, s3, 1
    s_and_b32 s26, s3, -2
    s_waitcnt lgkmcnt(0)
    v_readfirstlane_b32 s40, v60
    v_readfirstlane_b32 s41, v61
    v_readfirstlane_b32 s42, v62
    s_cmp_ge_u32 s22, 1
    s_cselect_b32 s40, s40, 0
    s_cmp_ge_u32 s22, 2
    s_cselect_b32 s41, s41, 0
    s_cmp_ge_u32 s22, 3
    s_cselect_b32 s42, s42, 0
    s_add_u32 s26, s26, s40
    s_add_u32 s26, s26, s41
    s_add_u32 s26, s26, s42
    v_add_u32 v64, s26, v58               ; offA
    v_add_u32 v65, v64, v54               ; offB
    v_add_u32 v66, v65, v55               ; offC
    v_add_u32 v67, v66, v56               ; end
    v_cmp_eq_u32 vcc, 0, v0
    s_and_saveexec_b64 s[30:31], vcc
    ds_write_b32 v59, v64 offset:{WT+16}
    s_mov_b64 exec, s[30:31]
    v_cmp_eq_u32 vcc, 195, v0
    s_and_saveexec_b64 s[30:31], vcc
    ds_write_b32 v59, v67 offset:{WT+20}
    s_mov_b64 exec, s[30:31]
    v_cmp_gt_u32 vcc, 196, v0
    s_and_saveexec_b64 s[30:31], vcc
    s_cbranch_execz {P}_N2
    ds_write_b32 v4, v64 offset:{OX}
    ds_write_b32 v4, v65 offset:{OX+4}
    ds_write_b32 v4, v66 offset:{OX+8}
    s_mul_i32 s3, s2, {196*16}
    v_lshlrev_b32 v5, 4, v0
    v_add_u32 v5, s3, v5
    v_add_u32 v6, {OFF_NOFF}, v5
    global_store_dwordx4 v6, v[64:67], s[4:5]
    v_lshrrev_b32 v54, 1, v54
    v_lshrrev_b32 v55, 1, v55
    v_lshrrev_b32 v56, 1, v56
    v_or3_b32 v71, v54, v55, v56
    v_lshrrev_b32 v71, 10, v71
    v_mov_b32 v68, v64
    v_lshl_or_b32 v69, v55, 10, v54
    v_lshl_or_b32 v69, v56, 20, v69
    v_min_u32 v54, 7, v54
    v_min_u32 v55, 7, v55
    v_min_u32 v56, 15, v56
    v_and_b32 v72, 1, v54
    v_sub_u32 v73, 7, v55
    v_cmp_eq_u32 vcc, 1, v72
    v_cndmask_b32 v55, v55, v73, vcc
    v_lshl_or_b32 v55, v54, 3, v55
    v_and_b32 v72, 1, v55
    v_sub_u32 v73, 15, v56
    v_cmp_eq_u32 vcc, 1, v72
    v_cndmask_b32 v56, v56, v73, vcc
    v_lshl_or_b32 v56, v55, 4, v56
    v_lshlrev_b32 v70, 2, v56
    v_add_u32 v6, {OFF_NINFO}, v5
    global_store_dwordx4 v6, v[68:71], s[4:5]
    """)
    e(f"""
    {P}_N2:
    s_mov_b64 exec, s[30:31]
    {P}_P2:
    s_waitcnt lgkmcnt(0)
    s_barrier
    """)
    tstamp(e,5)
    e(f"""
    v_mov_b32 v59, 0
    ds_read_b64 v[60:61], v59 offset:{WT+16}
    s_waitcnt lgkmcnt(0)
    v_readfirstlane_b32 s26, v60        ; EB
    v_readfirstlane_b32 s29, v61        ; end
    s_sub_u32 s38, s29, s26
    s_lshl_b32 s38, s38, 1              ; bytes
    s_cmp_gt_u32 s38, {ECAPB}
    s_cbranch_scc1 {P}_DIRECT
    """)
    e(f"s_lshl_b32 s39, s26, 1\ns_sub_u32 s39, {ES}, s39")
    for i in range(7):
        e(f"""v_cmp_gt_u32 vcc, s{48+i}, v1
        s_and_saveexec_b64 s[30:31], vcc
        ds_read_b32 v{R+i}, v{CI+i} offset:{OX}
        s_mov_b64 exec, s[30:31]""")
    e(f"""s_cmp_ge_u32 s22, 4
    s_cbranch_scc1 {P}_NP1
    v_cmp_gt_u32 vcc, 196, v0
    s_and_saveexec_b64 s[32:33], vcc
    s_cbranch_execz {P}_NP0
    v_mov_b32 v72, {ZSI}""")
    for k in range(3):
        e(f"""v_and_b32 v73, 1, v{48+k}
        v_cmp_eq_u32 vcc, 1, v73
        v_add_u32 v73, v{64+k}, v{48+k}
        v_lshlrev_b32 v73, 1, v73
        v_add_u32 v73, s39, v73
        s_and_saveexec_b64 s[30:31], vcc
        ds_write_b16 v73, v72
        s_mov_b64 exec, s[30:31]""")
    e(f"{P}_NP0:\ns_mov_b64 exec, s[32:33]\n{P}_NP1:\ns_waitcnt lgkmcnt(0)")
    for i in range(7):
        e(f"""v_add_u32 v13, v{R+i}, v{RK+i}
        v_lshlrev_b32 v13, 1, v13
        v_add_u32 v13, s39, v13
        v_cmp_gt_u32 vcc, s{48+i}, v1
        s_and_saveexec_b64 s[30:31], vcc
        ds_write_b16 v13, v{VL+i}
        s_mov_b64 exec, s[30:31]""")
    remainder(2)
    e(f"""s_waitcnt lgkmcnt(0)
    s_barrier
    v_lshlrev_b32 v4, 4, v0
    v_cmp_gt_u32 vcc, s38, v4
    s_and_saveexec_b64 s[30:31], vcc
    s_cbranch_execz {P}_END
    ds_read_b128 v[8:11], v4 offset:{ES}
    s_lshl_b32 s18, s29, 1
    s_lshl_b32 s3, s26, 1
    s_waitcnt lgkmcnt(0)
    buffer_store_dwordx4 v[8:11], v4, s[16:19], s3 offen
    """)
    tstamp(e,6)
    if TSK: e("s_waitcnt vmcnt(0)")
    tstamp(e,7)
    tdump(e,5,8)
    e(f"s_endpgm\n{P}_DIRECT:")
    e(f"""s_cmp_ge_u32 s22, 4
    s_cbranch_scc1 {P}_NQ1
    v_cmp_gt_u32 vcc, 196, v0
    s_and_saveexec_b64 s[32:33], vcc
    s_cbranch_execz {P}_NQ0
    v_mov_b32 v72, {ZSI}
    v_mov_b32 v74, 0x7ffffff0""")
    for k in range(3):
        e(f"""v_and_b32 v73, 1, v{48+k}
        v_cmp_eq_u32 vcc, 1, v73
        v_add_u32 v73, v{64+k}, v{48+k}
        v_lshlrev_b32 v73, 1, v73
        v_cndmask_b32 v73, v74, v73, vcc
        buffer_store_short v72, v73, s[16:19], 0 offen""")
    e(f"{P}_NQ0:\ns_mov_b64 exec, s[32:33]\n{P}_NQ1:")
    for i in range(7):
        e(f"""v_cmp_gt_u32 vcc, s{48+i}, v1
        s_and_saveexec_b64 s[30:31], vcc
        ds_read_b32 v{R+i}, v{CI+i} offset:{OX}
        s_mov_b64 exec, s[30:31]""")
    e("s_waitcnt lgkmcnt(0)\nv_mov_b32 v94, 0x7ffffff0")
    for i in range(7):
        e(f"""v_add_u32 v13, v{R+i}, v{RK+i}
        v_lshlrev_b32 v13, 1, v13
        v_cmp_gt_u32 vcc, s{48+i}, v1
        s_nop 1
        v_cndmask_b32 v13, v94, v13, vcc
        buffer_store_short v{VL+i}, v13, s[16:19], 0 offen""")
    remainder(True)
    e("s_endpgm")
XW=16
K1_XWG0=103; K1_GRID=K1_XWG0+(1563+XW-1)//XW
K2_GRID=128
K1_LDS=64*1024; K2_LDS=28*1024
def gen_k1():
    e=E(); head(e,K1_GRID,'K1')
    e(f"s_cmp_ge_u32 s2, {K1_XWG0}\ns_cbranch_scc1 K1_X\ns_cmp_eq_u32 s2, 100\ns_cbranch_scc1 K1_WM\ns_cmp_eq_u32 s2, 101\ns_cbranch_scc1 K1_WU\ns_cmp_eq_u32 s2, 102\ns_cbranch_scc1 K1_SW")
    role_chunk(e,'K1')
    e("K1_X:"); role_x(e,'K1',K1_XWG0,0,1563,XW,True,True)
    e("K1_SW:"); role_sw(e,'K1')
    e("K1_WM:"); role_wm(e)
    e("K1_WU:"); role_wu(e)
    e("K1_END:")
    return e.text(),128,40
def gen_k2():
    e=E(); head(e,K2_GRID,'K2')
    role_csr(e,'K2')
    e("K2_END:")
    return e.text(),104,88
```

```python
import hazard
def info(line):
    p=hazard.parse(line); d=hazard.classify(*p)
    mn=p[0]
    r=set(d['r']); w=set(d['w'])
    if d['kind']=='salu' and mn.startswith(('s_add','s_sub','s_lshl','s_lshr','s_and','s_or','s_mul','s_cmp','s_bitcmp')) and not mn.startswith('s_mul'): w.add(('scc',0))
    if mn.startswith(('s_addc','s_cselect')): r.add(('scc',0))
    if d['kind'] in('valu','mfma','ds','vmem'): r.add(('exec',0))
    if mn.startswith('v_cndmask') and 'vcc' in line.split(';')[0]: r.add(('vcc',0))
    return d,r,w
def cost(d):
    k=d['kind']
    if k=='mfma': return 8
    if k=='valu' and (d.get('trans') or d.get('perml')): return 8
    return 4
def schedule(items, lds_lat=140, verbose=False, dma_gap=0):
    nodes=[]
    for it in items:
        lines=it if isinstance(it,list) else [it]
        ds=[info(l) for l in lines]
        r=set();w=set()
        for d,rr,ww in ds: r|=(rr-w); w|=ww
        d0=ds[-1][0]
        kind=d0['kind']
        for d,_,_ in ds:
            if d['kind'] in('mfma','ds','vmem'): kind=d['kind']; d0=d
        nodes.append(dict(lines=lines,r=r,w=w,d=d0,kind=kind,cost=sum(cost(d) for d,_,_ in ds),succ=[],pred=[]))
    lastw={}; readers={}
    def lat(p,s,typ,reg):
        dp=p['d']; k=p['kind']
        if typ=='raw':
            if k=='mfma':
                ps=dp['passes']
                if s['kind']=='mfma' and reg in s['d']['srcC'] and s['d']['w']==dp['w']: return ps*4
                return ps*4+22
            if k=='ds': return lds_lat
            if k=='vmem': return 4
            base=p['cost']
            if k=='valu':
                if s['kind']=='mfma' or s['d'].get('dpp') or s['d'].get('perml'): return base+8
                if dp['mn'].startswith('v_dot') and not s['d']['mn'].startswith('v_dot'): return base+12
                if reg[0] in('s','vcc'): return base+8
                if dp.get('trans'): return base+4
            return base
        if typ=='waw':
            if k=='mfma': return dp['passes']*4+22 if s['kind']!='mfma' else dp['passes']*4
            if k=='ds': return lds_lat
            return p['cost']
        if typ=='war':
            if k=='mfma' and reg in dp['srcC'] and s['kind']=='valu': return dp['passes']*4
            if k=='mfma': return 8
            if k=='vmem' and reg in dp.get('stdata',set()): return 12
            return p['cost'] if False else 0
    def gap(p,s_,typ,reg):
        dp=p['d']; k=p['kind']
        if k=='mfma':
            ps=dp['passes']
            if typ=='raw':
                if s_['kind']=='mfma':
                    if reg in s_['d']['srcC']:
                        return 0 if s_['d']['w']==dp['w'] and s_['d']['passes']==ps else (6 if ps==4 else 10)
                    return 8 if ps==4 else 12
                return 8 if ps==4 else 12
            if typ=='waw' and s_['kind']!='mfma': return 8 if ps==4 else 12
            if typ=='war' and reg in dp['srcC'] and s_['kind']=='valu': return 3 if ps==4 else 7
        if k=='valu' and typ=='raw':
            if s_['kind']=='mfma' or s_['d'].get('dpp') or s_['d'].get('perml'): return 2
            if dp.get('trans') and s_['kind']=='valu' and not s_['d'].get('trans'): return 1
        return 0
    for i,n in enumerate(nodes):
        deps={}; gaps={}
        for reg in n['r']:
            if reg in lastw: j=lastw[reg]; deps[j]=max(deps.get(j,0),lat(nodes[j],n,'raw',reg)); gaps[j]=max(gaps.get(j,0),gap(nodes[j],n,'raw',reg))
        for reg in n['w']:
            if reg in lastw: j=lastw[reg]; deps[j]=max(deps.get(j,0),lat(nodes[j],n,'waw',reg)); gaps[j]=max(gaps.get(j,0),gap(nodes[j],n,'waw',reg))
            for j in readers.get(reg,[]):
                if j!=i: deps[j]=max(deps.get(j,0),lat(nodes[j],n,'war',reg)); gaps[j]=max(gaps.get(j,0),gap(nodes[j],n,'war',reg))
        for j,l in deps.items(): nodes[j]['succ'].append((i,l)); n['pred'].append((j,l)); nodes[j].setdefault('gaps',{})[i]=gaps.get(j,0)
        for reg in n['r']: readers.setdefault(reg,[]).append(i)
        for reg in n['w']: lastw[reg]=i; readers[reg]=[]
    prev=None
    for i,n in enumerate(nodes):
        if n['kind']=='vmem':
            if prev is not None:
                l=dma_gap if (nodes[prev]['d'].get('lds') and n['d'].get('lds')) else 4
                nodes[prev]['succ'].append((i,l)); n['pred'].append((prev,l))
            prev=i
    pr=[0]*len(nodes)
    for i in range(len(nodes)-1,-1,-1):
        n=nodes[i]; pr[i]=n['cost']+max([l+pr[j] for j,l in n['succ']],default=0)
        if n['d'].get('lds'): pr[i]+=100000
    npred=[len(n['pred']) for n in nodes]; ready_t=[0]*len(nodes)
    avail=[i for i in range(len(nodes)) if npred[i]==0]
    t=0; pipe=0; order=[]; cnt=0; ready_c=[0]*len(nodes)
    while avail:
        cand=[i for i in avail if ready_t[i]<=t and (nodes[i]['kind']!='mfma' or pipe<=t)]
        if not cand:
            t=min(max(ready_t[i], pipe if nodes[i]['kind']=='mfma' else 0) for i in avail); continue
        c2=[i for i in cand if ready_c[i]<=cnt]
        if c2: cand=c2
        else:
            alt=[i for i in avail if ready_c[i]<=cnt and i not in cand]
            need=min(ready_c[i]-cnt for i in cand)
            if alt:
                tt=min(max(ready_t[i], pipe if nodes[i]['kind']=='mfma' else 0) for i in alt)
                if tt-t<=4*need: t=tt; continue
            i=min(cand,key=lambda x:ready_c[x]); t+=4*(ready_c[i]-cnt); cnt=ready_c[i]; cand=[i]
        m=[i for i in cand if nodes[i]['kind']=='mfma']
        i=max(m,key=lambda x:pr[x]) if m else max(cand,key=lambda x:(pr[x],-x))
        n=nodes[i]; avail.remove(i); order.append(i); n['t']=t
        if n['kind']=='mfma': pipe=t+n['d']['passes']*4
        cnt+=len(n['lines'])
        for j,l in n['succ']:
            ready_t[j]=max(ready_t[j],t+l); npred[j]-=1
            ready_c[j]=max(ready_c[j],cnt+n.get('gaps',{}).get(j,0))
            if npred[j]==0: avail.append(j)
        t+=n['cost']
    if verbose: print('scheduled length',t,'cycles;',len(nodes),'nodes')
    if verbose==2:
        last=0
        for i in order:
            n=nodes[i]
            if n['kind']=='mfma':
                gap=n['t']-last
                if gap>0: print('  gap',gap,'before t=',n['t'],n['lines'][0][:70])
                last=n['t']+n['d']['passes']*4
    out=[]; q=[]
    for i in order:
        n=nodes[i]
        touch=n['r']|n['w']
        need=-1
        for j,dst in enumerate(q):
            if dst&touch: need=j
        if need>=0:
            rem=len(q)-need-1
            out.append(f"s_waitcnt lgkmcnt({min(rem,15)})"); q=q[need+1:] if rem<=15 else q[len(q)-15:]
        for l in n['lines']: out.append(l)
        if n['kind']=='ds':
            if len(q)>=15:
                out.insert(len(out)-len(n['lines']),f"s_waitcnt lgkmcnt(14)"); q=q[len(q)-14:]
            q.append(set(n['w']))
    return out,t
```

```python
from glib import E
from layout import *
from prep import wave_scan, OFF_NINFO
RXS=[18,18,20]; RB=[0,18,36]; RT=56
ASG=[2, 15, 14, 0, 0, 1, 14, 6, 11, 4, 7, 9, 5, 3, 10, 10, 0, 3, 0, 12, 7, 13, 5, 12, 8, 9, 2, 5, 8, 3, 4, 13, 2, 15, 4, 1, 11, 6, 12, 8, 13, 11, 10, 7, 15, 9, 6, 1, 14]
BUF0=0; ZS=ZSA; STG=BUF1; DUMP=STG+25088
ECAP=131072; SA=131072; SB=SA+12544; HIST=SB+12544; MISC=HIST+4096
DP=MISC+128
SLOWF=MISC+132
BMAX=MISC+256
K3_LDS=BMAX+1024
FL_XC=OFF_FL+8192
def gen_k3(NH=7, TS=False, PD=2, FORCE_SLOW=False, FORCE_SLOWSYNC=False, DBG=False, GATE=True, TMODE=0, EXP=''):
    e=E()
    vL=2; vD=6; v16=10; vC=11; ACC=12; AC=28; DAT=32; TMP=56; CD=64; CO=68; IDX=72; NV=128
    ool=[]
    def stamp(idx):
        if not TS: return
        e(f"s_memtime s[62:63]\ns_waitcnt lgkmcnt(0)\ns_sub_u32 s{76+idx}, s62, s60")
    def pstamp(idx):
        if TS!=2: return
        e(f"s_memtime s[62:63]\ns_waitcnt lgkmcnt(0)\ns_sub_u32 s{82+idx}, s62, s60")
    def entdma(ks):
        for k in ks:
            e(f"s_add_u32 m0, s56, {k*16384}\ns_add_u32 s3, s50, {k*16384}\nbuffer_load_dwordx4 v{v16}, s[12:15], s3 offen lds")
    def hstamp(idx):
        if TS!=1: return
        lab=e.lab('HS')
        e(f"s_cmp_lg_u32 s68, 3\ns_cbranch_scc1 {lab}\ns_memtime s[62:63]\ns_waitcnt lgkmcnt(0)\ns_sub_u32 s{82+idx}, s62, s60\n{lab}:")
    e(f"""
    s_cmp_ge_u32 s2, 256
    s_cbranch_scc1 K3_END
    s_load_dwordx2 s[4:5], s[0:1], 88
    s_load_dwordx2 s[6:7], s[0:1], 24
    s_memtime s[60:61]
    s_and_b32 s20, s2, 7
    s_lshl_b32 s20, s20, 2
    s_lshr_b32 s3, s2, 3
    s_and_b32 s3, s3, 3
    s_add_u32 s20, s20, s3          ; g
    s_lshr_b32 s21, s2, 5           ; p
    v_lshrrev_b32 v{TMP}, 6, v0
    v_and_b32 v1, 63, v0
    s_getreg_b32 s44, hwreg(HW_REG_XCC_ID, 0, 4)
    v_readfirstlane_b32 s22, v{TMP}   ; wave
    s_mul_i32 s41, s21, {PN}
    s_waitcnt lgkmcnt(0)
    s_lshl_b32 s3, s20, 6
    s_add_u32 s45, s3, {FL_XC}
    s_lshl_b32 s3, s21, 2
    s_add_u32 s3, s3, s45
    s_add_u32 s44, s44, 1
    v_mov_b32 v2, s3
    v_mov_b32 v3, s44
    v_cmp_eq_u32 vcc, 0, v0
    s_and_saveexec_b64 s[30:31], vcc
    s_cbranch_execz K3_X1
    global_store_dword v2, v3, s[4:5] sc1
    K3_X1:
    s_mov_b64 exec, s[30:31]
    s_add_u32 s8, s4, {OFF_NOFF}
    s_addc_u32 s9, s5, 0
    s_mov_b32 s10, {25088*16}
    s_mov_b32 s11, 0x20000
    s_mov_b32 s16, s6
    s_mov_b32 s17, s7
    s_mov_b32 s18, {N*2}
    s_mov_b32 s19, 0x20000
    v_mov_b32 v2, s41
    v_lshlrev_b32 v2, 4, v2
    buffer_load_dword v4, v2, s[8:11], 0 offen
    v_add_u32 v3, {3135*16+12}, v2
    buffer_load_dword v5, v3, s[8:11], 0 offen
    v_add_u32 v2, s41, v0
    v_lshlrev_b32 v2, 4, v2
    v_add_u32 v3, 16384, v2
    v_add_u32 v6, 32768, v2
    v_add_u32 v7, 49152, v2
    s_add_u32 s12, s4, {OFF_NINFO}
    s_addc_u32 s13, s5, 0
    s_mov_b32 s14, {25088*16}
    s_mov_b32 s15, 0x20000
    buffer_load_dwordx4 v[12:15], v2, s[12:15], 0 offen
    buffer_load_dwordx4 v[16:19], v3, s[12:15], 0 offen
    buffer_load_dwordx4 v[20:23], v6, s[12:15], 0 offen
    buffer_load_dwordx4 v[24:27], v7, s[12:15], 0 offen
    s_mov_b32 s42, {PN}
    s_cmp_eq_u32 s21, 7
    s_cselect_b32 s42, {N-7*PN}, s42
    v_lshlrev_b32 v{TMP}, 1, v0
    v_add_u32 v{TMP+1}, 2048, v{TMP}
    """)
    for t in range(2):
        e(f"""
        v_add_u32 v{TMP+2}, s41, v{TMP+t}
        v_lshlrev_b32 v{CO+t}, 3, v{TMP+2}
        v_lshlrev_b32 v{TMP+2}, 1, v{TMP+2}
        v_cmp_gt_u32 vcc, s42, v{TMP+t}
        v_mov_b32 v{TMP+3}, 0x7ffffff0
        s_nop 0
        v_cndmask_b32 v{CO+t}, v{TMP+3}, v{CO+t}, vcc
        v_cndmask_b32 v{TMP+2}, v{TMP+3}, v{TMP+2}, vcc
        buffer_load_dword v{CD+2*t}, v{TMP+2}, s[16:19], 0 offen
        """)
    e(f"""
    v_lshlrev_b32 v6, 2, v0
    v_mov_b32 v7, 0
    v_add_u32 v6, {HIST}, v6
    ds_write_b32 v6, v7
    v_mov_b32 v8, {SLOWF}
    ds_write_b32 v8, v7
    v_mov_b32 v7, {ZSI|(ZSI<<16)}
    v_mov_b32 v8, {DP}
    ds_write_b32 v8, v7
    v_lshlrev_b32 v{v16}, 4, v1
    s_waitcnt lgkmcnt(0)
    s_barrier
    s_waitcnt vmcnt(6)
    v_readfirstlane_b32 s46, v4
    v_readfirstlane_b32 s47, v5
    s_add_u32 s12, s4, {OFF_ENT}
    s_addc_u32 s13, s5, 0
    s_mov_b32 s15, 0x20000
    s_sub_u32 s48, s47, s46
    s_lshl_b32 s48, s48, 1            ; bytes
    s_lshl_b32 s14, s47, 1
    s_cmp_gt_u32 s48, {ECAP}
    s_cselect_b32 s49, 1, 0
    s_cselect_b32 s14, 0, s14
    s_lshl_b32 s50, s46, 1
    s_lshl_b32 s56, s22, 10
    s_add_u32 s50, s50, s56
    """)
    stamp(0)
    KEY=28; RNK=32; PKA=36; PKB=40
    e(f"v_mov_b32 v44, 0\nv_mov_b32 v45, 1\ns_mov_b32 s51, {HIST}\nv_cmp_gt_u32 s[52:53], 64, v0")
    for r in range(4):
        e(f"s_waitcnt vmcnt({(3-r)+2})")
        b=12+4*r
        if r==3: e(f"v_cndmask_b32 v{b+3}, 0, v{b+3}, s[52:53]")
        e(f"""v_or_b32 v44, v44, v{b+3}
        v_subrev_u32 v49, s46, v{b}
        v_lshlrev_b32 v49, 12, v49
        v_add_u32 v50, {1024*r}, v0
        v_or_b32 v{PKA+r}, v49, v50
        v_mov_b32 v{PKB+r}, v{b+1}
        v_add_u32 v{KEY+r}, s51, v{b+2}""")
        if r==3: e("s_mov_b64 s[30:31], exec\ns_mov_b64 exec, s[52:53]\ns_cbranch_execz K3_H3")
        e(f"ds_add_rtn_u32 v{RNK+r}, v{KEY+r}, v45")
        if r==3: e("K3_H3:\ns_mov_b64 exec, s[30:31]")
    entdma((0,1))
    pstamp(0)
    e(f"""
    v_cmp_ne_u32 vcc, 0, v44
    s_cmp_lg_u64 vcc, 0
    s_cselect_b32 s3, 1, 0
    s_or_b32 s49, s49, s3
    s_waitcnt lgkmcnt(0)
    s_barrier
    """)
    pstamp(1)
    entdma((2,3))
    e(f"""
    v_lshlrev_b32 v6, 2, v0
    v_add_u32 v6, {HIST}, v6
    ds_read_b32 v7, v6
    s_waitcnt lgkmcnt(0)
    v_mov_b32 v8, v7
    """)
    wave_scan(e,8,9)
    e(f"""
    s_nop 1
    v_readlane_b32 s3, v8, 63
    s_lshl_b32 s28, s22, 2
    s_add_u32 s28, s28, {MISC}
    v_mov_b32 v9, s28
    v_mov_b32 v46, s3
    ds_write_b32 v9, v46
    s_waitcnt lgkmcnt(0)
    s_barrier
    """)
    entdma((4,5))
    e(f"""
    v_lshlrev_b32 v9, 2, v1
    v_add_u32 v9, {MISC}, v9
    v_cmp_gt_u32 vcc, 16, v1
    v_mov_b32 v46, 0
    s_and_saveexec_b64 s[30:31], vcc
    ds_read_b32 v46, v9
    s_mov_b64 exec, s[30:31]
    s_waitcnt lgkmcnt(0)
    v_cmp_gt_u32 vcc, s22, v1
    s_nop 1
    v_cndmask_b32 v46, 0, v46, vcc
    """)
    wave_scan(e,46,47)
    e(f"""
    s_nop 1
    v_readlane_b32 s3, v46, 63
    v_sub_u32 v8, v8, v7
    v_add_u32 v8, s3, v8
    ds_write_b32 v6, v8
    s_waitcnt lgkmcnt(0)
    s_barrier
    """)
    pstamp(2)
    entdma((6,7))
    for r in range(3): e(f"ds_read_b32 v{12+r}, v{KEY+r}")
    e("s_mov_b64 s[30:31], exec\ns_mov_b64 exec, s[52:53]\ns_cbranch_execz K3_H4a\nds_read_b32 v15, v31\nK3_H4a:\ns_mov_b64 exec, s[30:31]\ns_waitcnt lgkmcnt(0)")
    for r in range(4):
        if r==3: e("s_mov_b64 s[30:31], exec\ns_mov_b64 exec, s[52:53]\ns_cbranch_execz K3_H4")
        e(f"""v_add_u32 v46, v{12+r}, v{RNK+r}
        v_lshlrev_b32 v47, 2, v46
        v_add_u32 v47, {SA}, v47
        ds_write_b32 v47, v{PKA+r}
        ds_write_b32 v47, v{PKB+r} offset:12544
""")
        if r==3: e("K3_H4:\ns_mov_b64 exec, s[30:31]")
    pstamp(3)
    e(f"""
    s_cmp_eq_u32 s49, 0
    s_cbranch_scc1 K3_NOSF
    v_mov_b32 v46, {SLOWF}
    v_mov_b32 v47, 1
    ds_write_b32 v46, v47
    K3_NOSF:
    s_waitcnt vmcnt(0) lgkmcnt(0)
    s_barrier
    """)
    stamp(1)
    wb=[[] for _ in range(16)]
    for bi,w in enumerate(ASG): wb[w].append(bi)
    e("s_mov_b32 s3, 0")
    for w in range(16):
        nb=len(wb[w]); lst=[0]*(4-nb)+wb[w]
        val=nb|(lst[0]<<4)|(lst[1]<<10)|(lst[2]<<16)|(lst[3]<<22)
        e(f"s_cmp_eq_u32 s22, {w}\ns_cselect_b32 s3, {val:#x}, s3")
    e("""s_and_b32 s39, s3, 15
    s_sub_u32 s38, 4, s39
    s_bfe_u32 s28, s3, 0x60004
    s_bfe_u32 s29, s3, 0x6000a
    s_bfe_u32 s30, s3, 0x60010
    s_bfe_u32 s31, s3, 0x60016""")
    QA=32; QP=36
    BM=12
    for s in range(4):
        e(f"s_lshl_b32 s3, s{28+s}, 8\ns_add_u32 s3, s3, {SA}\nv_lshl_add_u32 v46, v1, 2, s3\nds_read_b32 v{QA+s}, v46\nds_read_b32 v{QP+s}, v46 offset:12544")
        pass
    e("s_waitcnt lgkmcnt(0)")
    for s in range(3):
        lab=e.lab('IV')
        e(f"s_cmp_le_u32 s38, {s}\ns_cbranch_scc1 {lab}\nv_mov_b32 v{QP+s}, 0\nv_mov_b32 v{QA+s}, 0xfff\n{lab}:")
    CNT=40
    for s in range(4):
        e(f"v_and_b32 v{CNT+s}, 0x3ff, v{QP+s}\nv_bfe_u32 v{CNT+4+s}, v{QP+s}, 10, 10\nv_bfe_u32 v{CNT+8+s}, v{QP+s}, 20, 10")
    for s_ in range(4): e(f"v_lshl_or_b32 v{BM+s_}, v{CNT+4+s_}, 16, v{CNT+s_}")
    e(f"v_lshl_or_b32 v{BM+4}, v{CNT+9}, 16, v{CNT+8}\nv_lshl_or_b32 v{BM+5}, v{CNT+11}, 16, v{CNT+10}")
    for s_ in range(4):
        if s_<3: e(f"s_cmp_le_u32 s38, {s_}\ns_cselect_b32 s{52+s_}, 0x00010001, 0")
        else: e("s_mov_b32 s55, 0x00010001")
    e("s_pack_ll_b32_b16 s56, s52, s53\ns_pack_ll_b32_b16 s57, s54, s55")
    for w in range(6): e(f"v_pk_max_u16 v{BM+w}, v{BM+w}, s{52+w}")
    for ctl in ("row_shr:1 row_mask:0xf bank_mask:0xf bound_ctrl:0","row_shr:2 row_mask:0xf bank_mask:0xf bound_ctrl:0","row_shr:4 row_mask:0xf bank_mask:0xf bound_ctrl:0","row_shr:8 row_mask:0xf bank_mask:0xf bound_ctrl:0","row_bcast:15 row_mask:0xa bank_mask:0xf","row_bcast:31 row_mask:0xc bank_mask:0xf"):
        for w in range(6): e(f"v_mov_b32 v{BM+6+w}, 0" if 'bcast' in ctl else "")
        for w in range(6): e(f"v_mov_b32_dpp v{BM+6+w}, v{BM+w} {ctl}")
        for w in range(6): e(f"v_pk_max_u16 v{BM+w}, v{BM+w}, v{BM+6+w}")
    for w in range(6): e(f"v_readlane_b32 s{52+w}, v{BM+w}, 63")
    pstamp(4)
    e("s_or_b32 s3, s52, s53\ns_or_b32 s3, s3, s54\ns_or_b32 s3, s3, s55\ns_or_b32 s3, s3, s56\ns_or_b32 s3, s3, s57\ns_and_b32 s3, s3, 0xffe0ffe0\ns_cselect_b32 s3, 1, 0\ns_or_b32 s49, s49, s3")
    packs=[("s_pack_ll_b32_b16 s64, s52, s54","s_pack_ll_b32_b16 s65, s53, s55"),
           ("s_pack_hh_b32_b16 s64, s52, s54","s_pack_hh_b32_b16 s65, s53, s55"),
           ("s_pack_ll_b32_b16 s64, s56, s57","s_pack_hh_b32_b16 s65, s56, s57")]
    for X in range(3):
        e(packs[X][0]); e(packs[X][1])
        e(f"""s_lshl_b32 s65, s65, 8
        s_or_b32 s64, s64, s65
        s_mul_i32 s64, s64, 0x01010101
        s_lshr_b32 s{32+X}, s64, 24
        s_add_u32 s64, s64, 0x1f1f1f1f
        s_mov_b32 s{35+X}, 0
        s_bitset1_b32 s{35+X}, s64
        s_lshr_b32 s65, s64, 8
        s_bitset1_b32 s{35+X}, s65
        s_lshr_b32 s65, s64, 16
        s_bitset1_b32 s{35+X}, s65
        s_lshr_b32 s65, s64, 24
        s_bitset1_b32 s{35+X}, s65
        s_cmp_gt_u32 s{32+X}, {RXS[X]}
        s_cselect_b32 s3, 1, 0
        s_or_b32 s49, s49, s3""")
    e("s_lshl_b32 s56, s22, 10")
    if FORCE_SLOW: e("s_mov_b32 s49, 1")
    e(f"""
    s_cmp_eq_u32 s49, 0
    s_cbranch_scc1 K3_NOSF2
    v_mov_b32 v52, {SLOWF}
    v_mov_b32 v53, 1
    ds_write_b32 v52, v53
    K3_NOSF2:
    """)
    pstamp(5)
    for b in range(4):
        e(f"""v_and_b32 v{vL+b}, 0xfff, v{QA+b}
        v_add_u32 v{vD+b}, s41, v{vL+b}
        v_lshlrev_b32 v{vD+b}, 1, v{vD+b}
        v_cmp_eq_u32 vcc, 0xfff, v{vL+b}
        v_mov_b32 v52, 0x7ffffff0
        s_nop 0
        v_cndmask_b32 v{vD+b}, v{vD+b}, v52, vcc
        buffer_load_ushort v{vD+b}, v{vD+b}, s[16:19], 0 offen""")
    for s_ in range(4): e(f"v_lshrrev_b32 v{28+s_}, 12, v{QA+s_}\nv_lshlrev_b32 v{28+s_}, 1, v{28+s_}")
    e(f"v_mov_b32 v60, {DP}\nv_mov_b32 v61, {ZSI|(ZSI<<16):#x}")
    pstamp(6)
    QAd=[54,55,56,57]; QEn=[62,63,64,65]
    QEn=[12,13,14,15]; QAd=[16,17,18,19]; CAa=[20,21]; CE=22; TT=23
    for X in range(3):
        for s_ in range(4):
            e(f"v_mov_b32 v{QAd[s_]}, v{28+s_}\nv_lshl_add_u32 v{28+s_}, v{CNT+4*X+s_}, 2, v{28+s_}\nv_mov_b32 v{QEn[s_]}, v{28+s_}")
        def shift():
            t=""
            for s_ in range(3): t+=f"v_mov_b32 v{QAd[s_]}, v{QAd[s_+1]}\nv_mov_b32 v{QEn[s_]}, v{QEn[s_+1]}\n"
            return t
        for s_ in range(3):
            lab=e.lab('IS'); e(f"s_cmp_le_u32 s38, {s_}\ns_cbranch_scc1 {lab}\n"+shift()+f"{lab}:")
        e(f"v_mov_b32 v{CAa[0]}, v{QAd[0]}\nv_mov_b32 v{CE}, v{QEn[0]}")
        for r in range(RXS[X]):
            ca=CAa[r%2]; cn=CAa[(r+1)%2]
            up=f"BU_{X}_{r}"; bk=f"BB_{X}_{r}"
            e(f"""v_cmp_lt_u32 vcc, v{ca}, v{CE}
            s_bitcmp1_b32 s{35+X}, {r}
            v_add_u32 v{cn}, 4, v{ca}
            v_cndmask_b32 v{TT}, v60, v{ca}, vcc
            ds_read_b32 v{IDX+RB[X]+r}, v{TT}
            s_cbranch_scc1 {up}
            {bk}:""")
            nxt=f"BF_{X}_{r+1}"
            ool.append(f"{up}:\ns_cmp_le_u32 s{32+X}, {r+1}\ns_cbranch_scc1 {nxt}\n"+shift()+f"v_mov_b32 v{cn}, v{QAd[0]}\nv_mov_b32 v{CE}, v{QEn[0]}\ns_branch {bk}\n")
            if r%8==7: e("s_waitcnt lgkmcnt(4)")
        e(f"s_branch BF_{X}_{RXS[X]}")
        fill=""
        for r in range(1,RXS[X]): fill+=f"BF_{X}_{r}:\nv_mov_b32 v{IDX+RB[X]+r}, v61\n"
        e(fill+f"BF_{X}_{RXS[X]}:")
        pstamp(7+X)
    e(f"""s_waitcnt lgkmcnt(0)
    s_barrier
    v_mov_b32 v52, {SLOWF}
    ds_read_b32 v53, v52
    s_waitcnt lgkmcnt(0)
    v_readfirstlane_b32 s49, v53
    s_cmp_eq_u32 s49, 0
    s_cbranch_scc1 K3_SETUP2
    s_waitcnt vmcnt(0)""")
    e("K3_SLOWSETUP:")
    for s in range(4):
        e(f"s_add_u32 s3, s22, {16*s}\ns_lshl_b32 s3, s3, 6\nv_add_u32 v{vL+s}, s3, v1\nv_cmp_gt_u32 vcc, {PN}, v{vL+s}\nv_mov_b32 v46, 0xfff\ns_nop 0\nv_cndmask_b32 v{vL+s}, v46, v{vL+s}, vcc")
    for b in range(4):
        e(f"""v_add_u32 v{vD+b}, s41, v{vL+b}
        v_lshlrev_b32 v{vD+b}, 1, v{vD+b}
        v_cmp_eq_u32 vcc, 0xfff, v{vL+b}
        v_mov_b32 v52, 0x7ffffff0
        s_nop 0
        v_cndmask_b32 v{vD+b}, v{vD+b}, v52, vcc
        buffer_load_ushort v{vD+b}, v{vD+b}, s[16:19], 0 offen""")
    e("K3_SETUP2:")
    if DBG:
        lab=e.lab('DG')
        e(f"s_cmp_lg_u32 s2, 0\ns_cbranch_scc1 {lab}\ns_mul_i32 s3, s22, {64*256}\ns_add_u32 s3, s3, {OFF_DBG+4096}\nv_lshlrev_b32 v58, 2, v1\nv_add_u32 v58, s3, v58")
        for r in range(RT): e(f"global_store_dword v58, v{IDX+r}, s[4:5] offset:0\nv_add_u32 v58, 256, v58")
        for s_ in range(4): e(f"global_store_dword v58, v{vL+s_}, s[4:5]\nv_add_u32 v58, 256, v58")
        for k in range(8): e(f"v_writelane_b32 v60, s{32+k}, {k}")
        e(f"v_writelane_b32 v60, s49, 8\nv_writelane_b32 v60, s46, 9\nv_writelane_b32 v60, s48, 10")
        e(f"global_store_dword v58, v60, s[4:5]\ns_waitcnt vmcnt(0)\n{lab}:")
    stamp(2)
    for b in range(4):
        e(f"""v_cmp_eq_u32 vcc, 0xfff, v{vL+b}
        v_lshlrev_b32 v{vL+b}, 3, v{vL+b}
        v_add_u32 v{vL+b}, {STG}, v{vL+b}
        v_mov_b32 v{TMP+1}, {DUMP}
        v_cndmask_b32 v{vL+b}, v{vL+b}, v{TMP+1}, vcc""")
    e(f"""
    v_and_b32 v70, 7, v1
    v_lshlrev_b32 v70, 2, v70
    v_add_u32 v70, s45, v70
    global_load_dword v71, v70, s[4:5] sc1
    s_mov_b32 s50, 2
    s_waitcnt vmcnt(1)
    """)
    for b in range(4): e(f"v_lshlrev_b32 v{vD+b}, 16, v{vD+b}")
    for t in range(2): e(f"v_and_b32 v{CD+2*t+1}, 0xffff0000, v{CD+2*t}\nv_lshlrev_b32 v{CD+2*t}, 16, v{CD+2*t}")
    e(f"""
    v_lshrrev_b32 v{TMP}, 4, v1
    v_bfe_u32 v{TMP+1}, v1, 2, 2
    v_and_b32 v{TMP+2}, 1, v1
    v_lshlrev_b32 v{TMP+2}, 4, v{TMP+2}
    v_mov_b32 v{TMP+3}, 0x3f80
    v_lshlrev_b32 v{TMP+3}, v{TMP+2}, v{TMP+3}
    v_cmp_eq_u32 vcc, v{TMP}, v{TMP+1}
    s_nop 1
    v_cndmask_b32 v{TMP+3}, 0, v{TMP+3}, vcc
    v_bfe_u32 v{TMP+2}, v1, 1, 1
    v_cmp_eq_u32 vcc, 0, v{TMP+2}
    v_mov_b32 v{TMP+4}, 0
    s_nop 0
    v_cndmask_b32 v{AC}, 0, v{TMP+3}, vcc
    v_cndmask_b32 v{AC+1}, v{TMP+3}, v{TMP+4}, vcc
    v_mov_b32 v{AC+2}, v{AC}
    v_mov_b32 v{AC+3}, v{AC+1}
    v_lshlrev_b32 v{vC}, 4, v0
    v_add_u32 v{vC}, {STG}, v{vC}
    s_lshl_b32 s3, s20, 8
    s_add_u32 s66, s3, {OFF_FL}
    s_lshl_b32 s3, s21, 5
    s_add_u32 s67, s66, s3
    s_mov_b32 s11, 0x20000
    s_mov_b32 s15, 0x20000
    s_mov_b32 s27, 0x20000
    s_mov_b32 s10, {TS_STRIDE}
    s_mov_b32 s14, {N*8}
    s_mov_b32 s26, {N*8}
    s_mov_b32 s23, 0
    s_lshl_b32 s56, s22, 10
    s_mov_b32 s51, 0xffff0000
    v_mov_b32 v{TMP}, {ZS}
    v_mov_b32 v{TMP+2}, 0
    v_mov_b32 v{TMP+3}, 0
    ds_write_b64 v{TMP}, v[{TMP+2}:{TMP+3}]
    s_waitcnt lgkmcnt(0)
    """)
    stamp(3)
    e("K3_HOP:")
    if TS: e("s_mov_b32 s68, s23")
    e(f"""
    s_and_b32 s69, s23, 1
    s_lshl_b32 s3, s69, 5
    s_add_u32 s3, s3, s20
    s_mul_i32 s3, s3, {TS_STRIDE}
    s_add_u32 s8, s4, s3
    s_addc_u32 s9, s5, 0
    s_xor_b32 s69, s69, 1
    s_lshl_b32 s3, s69, 5
    s_add_u32 s3, s3, s20
    s_mul_i32 s3, s3, {TS_STRIDE}
    s_add_u32 s12, s4, s3
    s_addc_u32 s13, s5, 0
    s_add_u32 s3, s23, 1
    s_lshl_b32 s3, s3, 5
    s_add_u32 s3, s3, s20
    s_mul_i32 s3, s3, {TS_STRIDE}
    s_add_u32 s3, s3, {OFF_T}
    s_add_u32 s24, s4, s3
    s_addc_u32 s25, s5, 0
    s_cmp_lg_u32 s49, 0
    s_cbranch_scc1 K3_SLOWHOP
    """)
    def dma(goff, nins, ldsbase):
        rounds=(nins+15)//16
        for r in range(rounds):
            lab=None
            if (r+1)*16>nins:
                lab=e.lab('DS'); e(f"s_cmp_ge_u32 s22, {nins-r*16}\ns_cbranch_scc1 {lab}")
            e(f"s_lshl_b32 s3, s22, 10\ns_add_u32 m0, s3, {ldsbase+r*16384}\ns_add_u32 s3, s3, {goff+r*16384}\nbuffer_load_dwordx4 v{v16}, s[8:11], s3 offen sc1 lds")
            if lab: e(f"{lab}:")
    hstamp(0)
    dma(0,NA,BUF0)
    for i in range(16): e(f"v_mov_b32 v{ACC+i}, 0")
    def issue(X,g):
        s=g%(PD+1); out=[]
        for k in range(2):
            rr=IDX+RB[X]+2*g+k
            out.append(f"v_lshlrev_b32_sdwa v{TMP+2*k}, 3, v{rr} dst_sel:DWORD dst_unused:UNUSED_PAD src0_sel:DWORD src1_sel:WORD_0")
            if 'halfsdwa' not in EXP: out.append(f"v_lshlrev_b32_sdwa v{TMP+2*k+1}, 3, v{rr} dst_sel:DWORD dst_unused:UNUSED_PAD src0_sel:DWORD src1_sel:WORD_1")
        for k in range(2):
            d=DAT+8*s+4*k
            out.append(f"ds_read_b64 v[{d}:{d+1}], v{TMP+2*k}")
            out.append(f"ds_read_b64 v[{d+2}:{d+3}], v{TMP+2*k+1}")
        return out
    def dma1(k,goff,ldsbase,nins=None):
        return [f"s_add_u32 m0, s56, {ldsbase+k*16384}",f"s_add_u32 s3, s56, {goff+k*16384}",f"buffer_load_dwordx4 v{v16}, s[8:11], s3 offen sc1 lds"]
    def phase(X):
        RX=RXS[X]; NG=RX//2
        nd={0:(TH1*8,BUF1,NB),1:(TH2*8,BUF0,NC)}.get(X)
        e(f"s_mov_b32 s54, s{35+X}")
        if 'prio' in EXP: e("s_setprio 3")
        for g in range(PD): e("\n".join(issue(X,g)))
        if nd:
            rem=nd[2]-64
            lab=e.lab('DR'); e(f"s_cmp_ge_u32 s22, {rem}\ns_cbranch_scc1 {lab}\n"+"\n".join(dma1(4,*nd))+f"\n{lab}:")
        def mfma(b,r):
            d=DAT+8*((r//2)%(PD+1))+4*(r%2)
            return f"v_mfma_f32_16x16x32_bf16 v[{ACC+4*b}:{ACC+4*b+3}], v[{AC}:{AC+3}], v[{d}:{d+3}], v[{ACC+4*b}:{ACC+4*b+3}]"
        def body(b):
            out=[]; tail=[]
            for r in range(RX):
                g=r//2
                out.append(f"E_{X}_{b}_{r}:")
                if 'prio' in EXP and r in (4,8,12): out.append(f"s_setprio {2-(r//4-1)}")
                if r%2==0:
                    if g+PD<NG:
                        if b==3 and GATE:
                            out.append(f"s_cmp_le_u32 s{32+X}, {2*(g+PD)}")
                            out.append(f"s_cbranch_scc1 T_{X}_{r}")
                            tl=[f"T_{X}_{r}:"]
                            if nd and g<4: tl+=dma1(g,*nd)
                            tl+= ["s_waitcnt lgkmcnt(0)",f"s_branch M_{X}_{r}"]
                            tail+=tl
                        out+=issue(X,g+PD)
                        if nd and g<4: out+=dma1(g,*nd)
                        out.append(f"s_waitcnt lgkmcnt({4*PD})")
                        if b==3 and GATE: out.append(f"M_{X}_{r}:")
                    else:
                        if nd and g<4: out+=dma1(g,*nd)
                        out.append(f"s_waitcnt lgkmcnt({0 if (b==3 and GATE) else 4*(NG-1-g)})")
                out.append(mfma(b,r))
                if r<RX-1 and not ('nochk' in EXP and r%2==0):
                    out.append(f"s_bitcmp1_b32 s54, {r}")
                    out.append(f"s_cbranch_scc1 E_{X}_{b+1}_{r+1}" if b<3 else f"s_cbranch_scc1 PE_{X}")
            out.append(f"s_branch PE_{X}")
            return "\n".join(out+tail)+"\n"
        for b in range(1,4): e(f"s_cmp_eq_u32 s38, {b}"); e(f"s_cbranch_scc1 E_{X}_{b}_0")
        e(body(0))
        for b in range(1,4): ool.append(body(b))
        e(f"PE_{X}:")
        if 'prio' in EXP: e("s_setprio 0")
        if nd:
            for k in range(1,4):
                lab=e.lab('DR')
                e(f"s_cmp_gt_u32 s{32+X}, {2*k}\ns_cbranch_scc1 {lab}\n"+"\n".join(dma1(k,*nd))+f"\n{lab}:")
        e("s_waitcnt lgkmcnt(0)")
    e("s_waitcnt vmcnt(0)"); hstamp(1)
    e("s_barrier"); hstamp(2)
    phase(0); hstamp(3)
    e("s_waitcnt vmcnt(0)\ns_barrier"); hstamp(4)
    phase(1); hstamp(5)
    e("s_waitcnt vmcnt(0)\ns_barrier"); hstamp(6)
    phase(2); hstamp(7)
    e("K3_EPI:\ns_nop 7\ns_nop 1")
    for b in range(4):
        a=ACC+4*b; t=DAT+2*b
        for r in range(4): e(f"v_mul_f32 v{a+r}, v{a+r}, v{vD+b}")
        e(f"v_cvt_pk_bf16_f32 v{t}, v{a}, v{a+1}\nv_cvt_pk_bf16_f32 v{t+1}, v{a+2}, v{a+3}")
        e(f"ds_write_b64 v{vL+b}, v[{t}:{t+1}]")
    e("s_waitcnt lgkmcnt(0)\ns_barrier"); hstamp(8)
    e(f"ds_read_b128 v[{DAT}:{DAT+3}], v{vC}\nds_read_b128 v[{DAT+4}:{DAT+7}], v{vC} offset:16384")
    def tstores():
        for t in range(2):
            d=DAT+4*t
            e(f"buffer_store_dwordx4 v[{d}:{d+3}], v{CO+t}, s[24:27], 0 offen")
    e(f"s_add_u32 s23, s23, 1\ns_cmp_ge_u32 s23, {NH}\ns_cbranch_scc1 K3_FIN")
    for t in range(2):
        d=DAT+4*t; a=ACC+8*t; o=DAT+8+4*t
        e(f"s_waitcnt lgkmcnt({1-t})")
        for r in range(4):
            e(f"v_lshlrev_b32 v{a+2*r}, 16, v{d+r}\nv_and_b32 v{a+2*r+1}, s51, v{d+r}")
        for r in range(8): e(f"v_mul_f32 v{a+r}, v{a+r}, v{CD+2*t+(r//4)}")
        for r in range(4): e(f"v_cvt_pk_bf16_f32 v{o+r}, v{a+2*r}, v{a+2*r+1}")
    e(f"""s_cmp_lg_u32 s50, 2
    s_cbranch_scc1 K3_XD
    K3_XP:
    v_cmp_eq_u32 vcc, 0, v71
    s_cbranch_vccz K3_XE
    global_load_dword v71, v70, s[4:5] sc1
    s_waitcnt vmcnt(0)
    s_branch K3_XP
    K3_XE:
    v_cmp_ne_u32 vcc, s44, v71
    s_cmp_lg_u64 vcc, 0
    s_cselect_b32 s50, 1, 0""")
    if FORCE_SLOWSYNC: e("s_mov_b32 s50, 1")
    e("K3_XD:")
    e("s_cmp_lg_u32 s50, 0\ns_cbranch_scc1 K3_GS1")
    for t in range(2):
        o=DAT+8+4*t; e(f"buffer_store_dwordx4 v[{o}:{o+3}], v{CO+t}, s[12:15], 0 offen")
    e("s_branch K3_GS2\nK3_GS1:")
    for t in range(2):
        o=DAT+8+4*t; e(f"buffer_store_dwordx4 v[{o}:{o+3}], v{CO+t}, s[12:15], 0 offen sc1")
    e("K3_GS2:\ns_waitcnt vmcnt(0) lgkmcnt(0)"); hstamp(9); e("s_barrier")
    e("s_cmp_eq_u32 s22, 0\ns_cbranch_scc1 K3_W0")
    if TMODE==1: e("s_sleep 6")
    if TMODE in (0,1): tstores()
    e("s_branch K3_WAIT\nK3_W0:")
    e(f"""
    v_mov_b32 v{TMP}, s67
    v_mov_b32 v{TMP+1}, s23
    v_cmp_eq_u32 vcc, 0, v1
    s_and_saveexec_b64 s[30:31], vcc
    s_cmp_lg_u32 s50, 0
    s_cbranch_scc1 K3_FS1
    global_store_dword v{TMP}, v{TMP+1}, s[4:5]
    s_branch K3_FS2
    K3_FS1:
    global_store_dword v{TMP}, v{TMP+1}, s[4:5] sc1
    K3_FS2:
    s_mov_b64 exec, s[30:31]
    v_and_b32 v{TMP}, 7, v1
    v_lshlrev_b32 v{TMP}, 5, v{TMP}
    v_add_u32 v{TMP}, s66, v{TMP}
    K3_POLL:
    global_load_dword v{TMP+1}, v{TMP}, s[4:5] sc1
    s_waitcnt vmcnt(0)
    v_cmp_gt_u32 vcc, s23, v{TMP+1}
    s_cbranch_vccnz K3_POLL
    """)
    if TMODE in (0,1): tstores()
    e("K3_WAIT:\ns_barrier"); hstamp(10)
    if TMODE==2: tstores()
    if TS:
        lab=e.lab('TS')
        e(f"s_cmp_lg_u32 s68, 0\ns_cbranch_scc1 {lab}"); stamp(4); e(f"{lab}:")
    e("s_branch K3_HOP")
    e(f"""
    K3_SLOWHOP:
    s_add_u32 s52, s4, {OFF_NOFF}
    s_addc_u32 s53, s5, 0
    s_mov_b32 s54, {25088*16}
    s_mov_b32 s55, 0x20000
    s_add_u32 s56, s4, {OFF_ENT}
    s_addc_u32 s57, s5, 0
    s_mov_b32 s58, {ENT_BYTES}
    s_mov_b32 s59, 0x20000
    """)
    for s in range(4):
        L=e.lab('SL'); Lx=e.lab('SX')
        a=ACC+4*s
        e(f"""
        v_mov_b32 v{a}, 0
        v_mov_b32 v{a+1}, 0
        v_mov_b32 v{a+2}, 0
        v_mov_b32 v{a+3}, 0
        s_add_u32 s3, s22, {16*s}
        s_lshl_b32 s3, s3, 6
        v_add_u32 v{DAT}, s3, v1              ; local
        v_cmp_gt_u32 vcc, {PN}, v{DAT}
        s_and_saveexec_b64 s[30:31], vcc
        s_cbranch_execz {Lx}
        v_add_u32 v{DAT}, s41, v{DAT}
        v_lshlrev_b32 v{DAT}, 4, v{DAT}
        buffer_load_dwordx4 v[{DAT+4}:{DAT+7}], v{DAT}, s[52:55], 0 offen
        s_waitcnt vmcnt(0)
        v_mov_b32 v{DAT+1}, v{DAT+4}          ; pos
        {L}:
        v_cmp_lt_u32 vcc, v{DAT+1}, v{DAT+7}
        s_and_b64 exec, exec, vcc
        s_cbranch_execz {Lx}
        v_lshlrev_b32 v{DAT+2}, 1, v{DAT+1}
        buffer_load_ushort v{DAT+3}, v{DAT+2}, s[56:59], 0 offen
        s_waitcnt vmcnt(0)
        v_cmp_le_u32 vcc, v{DAT+5}, v{DAT+1}           ; pos>=offB
        v_subrev_u32 v{DAT+8}, {BADD}, v{DAT+3}
        s_nop 0
        v_cndmask_b32 v{DAT+9}, v{DAT+3}, v{DAT+8}, vcc
        v_cmp_le_u32 vcc, v{DAT+6}, v{DAT+1}           ; pos>=offC
        v_add_u32 v{DAT+8}, {TH2}, v{DAT+3}
        s_nop 0
        v_cndmask_b32 v{DAT+9}, v{DAT+9}, v{DAT+8}, vcc
        v_cmp_eq_u32 vcc, {ZSI}, v{DAT+3}
        v_lshlrev_b32 v{DAT+9}, 3, v{DAT+9}
        v_mov_b32 v{DAT+8}, 0x7ffffff0
        s_nop 0
        v_cndmask_b32 v{DAT+9}, v{DAT+9}, v{DAT+8}, vcc
        s_mov_b32 s10, {N*8}
        buffer_load_dwordx2 v[{DAT+10}:{DAT+11}], v{DAT+9}, s[8:11], 0 offen sc1
        s_waitcnt vmcnt(0)
        v_lshlrev_b32 v{DAT+12}, 16, v{DAT+10}
        v_and_b32 v{DAT+13}, s51, v{DAT+10}
        v_lshlrev_b32 v{DAT+14}, 16, v{DAT+11}
        v_and_b32 v{DAT+15}, s51, v{DAT+11}
        v_add_f32 v{a}, v{a}, v{DAT+12}
        v_add_f32 v{a+1}, v{a+1}, v{DAT+13}
        v_add_f32 v{a+2}, v{a+2}, v{DAT+14}
        v_add_f32 v{a+3}, v{a+3}, v{DAT+15}
        v_add_u32 v{DAT+1}, 1, v{DAT+1}
        s_branch {L}
        {Lx}:
        s_mov_b64 exec, s[30:31]
        """)
    e(f"s_mov_b32 s10, {TS_STRIDE}\ns_branch K3_EPI")
    for o in ool: e(o)
    e("K3_FIN:\ns_waitcnt lgkmcnt(0)")
    tstores()
    if TS:
        e(f"s_cmp_lg_u32 s2, 41\ns_cbranch_scc1 K3_END\ns_memtime s[62:63]\ns_waitcnt lgkmcnt(0)\ns_sub_u32 s81, s62, s60")
        for k in range(17): e(f"v_writelane_b32 v{TMP+7}, s{76+k}, {k}")
        e(f"s_lshl_b32 s3, s22, 7\ns_add_u32 s3, s3, {OFF_DBG}\nv_lshlrev_b32 v{TMP+6}, 2, v1\nv_add_u32 v{TMP+6}, s3, v{TMP+6}\nv_cmp_gt_u32 vcc, 17, v1\ns_and_saveexec_b64 s[30:31], vcc\nglobal_store_dword v{TMP+6}, v{TMP+7}, s[4:5]")
    e("K3_END:")
    return e.text(),NV,102
```

```python
N=25000; EDG=400000
TS_STRIDE=25344*8
OFF_G=0
OFF_T=2*32*TS_STRIDE
T_BYTES=8*32*TS_STRIDE
OFF_W=OFF_T+T_BYTES
OFF_CH=OFF_W+128*1024
NCH=100; CHE=4000
NBIN=128; BINN=196
OFF_OFFS=OFF_CH+EDG*4
OFF_ENT=OFF_OFFS+64*1024
ENT_BYTES=1024*1024
OFF_NOFF=OFF_ENT+ENT_BYTES
OFF_FL=OFF_NOFF+512*1024
OFF_DBG=OFF_FL+64*1024
PN=3136
def swap23(i): return (i&0x13)|((i&4)<<1)|((i&8)>>1)
TH1=5120; TH2=15104
BUF1=79872
ZSA=2*BUF1
ZSI=ZSA//8
BADD=BUF1//8-TH1
NA=TH1*8//1024; NB=(TH2-TH1)*8//1024; NC=((N-TH2)*8+1023)//1024
```

```python
import sys
sys.path.insert(0,'dev')
from glib import *
import hazard
def K(name,gen,**kw):
    r=gen(**kw); b,vg,sg=r[:3]; ag=r[3] if len(r)>3 else 0
    b,n=hazard.fix(b); return kernel_text(name,b,vg,sg,ag)
if __name__=='__main__':
    from prep import *
    what=sys.argv[1]
    L=[('prep1_kernel',K1_GRID,1024,K1_LDS),('prep2_kernel',K2_GRID,1024,K2_LDS)]
    Ks=[K('prep1_kernel',gen_k1),K('prep2_kernel',gen_k2)]
    if what in('123','all'):
        from k3 import *
        L.append(('hops_kernel',256,1024,K3_LDS)); Ks.append(K('hops_kernel',gen_k3,TS=(2 if 'tsp' in sys.argv else 1 if 'ts' in sys.argv else 0), DBG='dbg' in sys.argv, FORCE_SLOW='slow' in sys.argv, FORCE_SLOWSYNC='slowsync' in sys.argv, PD=(1 if 'pd1' in sys.argv else 2), GATE='nogate' not in sys.argv, TMODE=(1 if 't1' in sys.argv else 2 if 't2' in sys.argv else 0), EXP=' '.join(x for x in sys.argv if x in('nochk','halfsdwa','prio'))))
    if what=='all':
        if 'v3' in sys.argv: from k4v3 import gen_k4,K4_LDS,K4_BLOCK
        else: from k4v4 import gen_k4,K4_LDS,K4_BLOCK
        L.append(('final_kernel',256,K4_BLOCK,K4_LDS)); Ks.append(K('final_kernel',gen_k4,TS='ts4' in sys.argv,TSR=1))
    open(sys.argv[2],'w').write(file_text(L,Ks))
```

```python
from glib import E
from layout import *
import struct
OFF_NINFO=OFF_FL+1024*1024
def wave_scan(e,v,tmp=None):
    for sh in (1,2,4,8):
        e(f"v_add_u32_dpp v{v}, v{v}, v{v} row_shr:{sh} row_mask:0xf bank_mask:0xf bound_ctrl:0")
    e(f"v_add_u32_dpp v{v}, v{v}, v{v} row_bcast:15 row_mask:0xa bank_mask:0xf")
    e(f"v_add_u32_dpp v{v}, v{v}, v{v} row_bcast:31 row_mask:0xc bank_mask:0xf")
def allred32_f32(e,v,tmp):
    e(f"v_add_f32_dpp v{v}, v{v}, v{v} quad_perm:[1,0,3,2] row_mask:0xf bank_mask:0xf")
    e(f"v_add_f32_dpp v{v}, v{v}, v{v} quad_perm:[2,3,0,1] row_mask:0xf bank_mask:0xf")
    e(f"v_add_f32_dpp v{v}, v{v}, v{v} row_half_mirror row_mask:0xf bank_mask:0xf")
    e(f"v_add_f32_dpp v{v}, v{v}, v{v} row_mirror row_mask:0xf bank_mask:0xf")
    e(f"v_mov_b32 v{tmp}, v{v}\nv_permlane16_swap_b32 v{v}, v{tmp}\nv_add_f32 v{v}, v{v}, v{tmp}")
def head(e,grid,P):
    e(f"""
    s_cmp_ge_u32 s2, {grid}
    s_cbranch_scc1 {P}_END
    s_load_dwordx2 s[4:5], s[0:1], 88      ; ws
    v_lshrrev_b32 v2, 6, v0
    v_and_b32 v1, 63, v0
    s_nop 0
    v_readfirstlane_b32 s22, v2
    """)
def role_chunk(e,P):
    e(f"""
    s_load_dwordx4 s[8:11], s[0:1], 8
    s_mul_i32 s3, s2, {CHE*4}
    v_lshlrev_b32 v2, 4, v0
    v_add_u32 v2, s3, v2
    v_mov_b32 v3, 0
    v_lshlrev_b32 v4, 2, v0
    v_cmp_gt_u32 vcc, 128, v0
    s_and_saveexec_b64 s[30:31], vcc
    ds_write_b32 v4, v3
    s_mov_b64 exec, s[30:31]
    s_waitcnt lgkmcnt(0)
    s_mov_b32 s12, s8
    s_mov_b32 s13, s9
    s_mov_b32 s14, {EDG*4}
    s_mov_b32 s15, 0x20000
    s_mov_b32 s16, s10
    s_mov_b32 s17, s11
    s_mov_b32 s18, {EDG*4}
    s_mov_b32 s19, 0x20000
    v_cmp_gt_u32 vcc, {CHE//4}, v0
    s_and_saveexec_b64 s[30:31], vcc
    s_cbranch_execz {P}_C1
    buffer_load_dwordx4 v[8:11], v2, s[16:19], 0 offen     ; dst
    buffer_load_dwordx4 v[12:15], v2, s[12:15], 0 offen    ; src
    {P}_C1:
    s_mov_b64 exec, s[30:31]
    s_barrier
    s_mov_b32 s20, 21913099
    s_movk_i32 s21, 196
    s_and_saveexec_b64 s[30:31], vcc
    s_cbranch_execz {P}_C2
    s_waitcnt vmcnt(1)
    v_mov_b32 v3, 1
    """)
    for i in range(4):
        e(f"""v_mul_hi_u32 v{16+i}, v{8+i}, s20
        v_mul_lo_u32 v{20+i}, v{16+i}, s21
        v_sub_u32 v{20+i}, v{8+i}, v{20+i}
        v_lshlrev_b32 v{16+i}, 2, v{16+i}
        ds_add_rtn_u32 v{24+i}, v{16+i}, v3""")
    e(f"""
    {P}_C2:
    s_mov_b64 exec, s[30:31]
    s_waitcnt lgkmcnt(0)
    s_barrier
    s_cmp_lg_u32 s22, 0
    s_cbranch_scc1 {P}_C3
    v_lshlrev_b32 v4, 3, v1
    ds_read_b64 v[6:7], v4
    s_waitcnt lgkmcnt(0)
    v_add_u32 v5, v6, v7
    v_mov_b32 v28, v5
    """)
    wave_scan(e,28)
    e(f"""
    v_sub_u32 v28, v28, v5
    v_add_u32 v29, v28, v6
    ds_write_b64 v4, v[28:29] offset:1024
    v_mul_u32_u24 v5, {2*NCH*4}, v1
    s_lshl_b32 s3, s2, 2
    s_add_u32 s3, s3, {OFF_OFFS}
    v_add_u32 v5, s3, v5
    global_store_dword v5, v28, s[4:5]
    global_store_dword v5, v29, s[4:5] offset:{NCH*4}
    v_mov_b32 v6, {CHE}
    v_mov_b32 v5, s3
    v_add_u32 v5, {128*NCH*4}, v5
    v_cmp_eq_u32 vcc, 0, v1
    s_and_saveexec_b64 s[32:33], vcc
    global_store_dword v5, v6, s[4:5]
    s_mov_b64 exec, s[32:33]
    {P}_C3:
    s_waitcnt lgkmcnt(0)
    s_barrier
    v_cmp_gt_u32 vcc, {CHE//4}, v0
    s_and_saveexec_b64 s[30:31], vcc
    """)
    for i in range(4): e(f"ds_read_b32 v{28+i}, v{16+i} offset:1024")
    e("s_waitcnt vmcnt(0) lgkmcnt(0)")
    for i in range(4):
        e(f"""v_add_u32 v{28+i}, v{28+i}, v{24+i}
        v_lshlrev_b32 v{28+i}, 2, v{28+i}
        v_lshl_or_b32 v{12+i}, v{20+i}, 16, v{12+i}
        ds_write_b32 v{28+i}, v{12+i} offset:2048""")
    e(f"""s_mov_b64 exec, s[30:31]
    s_waitcnt lgkmcnt(0)
    s_barrier
    s_and_saveexec_b64 s[30:31], vcc
    s_cbranch_execz {P}_END
    v_lshlrev_b32 v4, 4, v0
    ds_read_b128 v[8:11], v4 offset:2048
    s_mul_i32 s3, s2, {CHE*4}
    s_add_u32 s3, s3, {OFF_CH}
    v_add_u32 v4, s3, v4
    s_waitcnt lgkmcnt(0)
    global_store_dwordx4 v4, v[8:11], s[4:5]
    s_endpgm""")
def role_x(e,P,wg0,task0,task1,wpw,doG=True,doT=True):
    e(f"""
    s_load_dwordx2 s[8:9], s[0:1], 0        ; x
    s_load_dwordx2 s[12:13], s[0:1], 24     ; dis
    s_cmp_ge_u32 s22, {wpw}
    s_cbranch_scc1 {P}_END
    s_sub_u32 s3, s2, {wg0}
    s_mul_i32 s3, s3, {wpw}
    s_add_u32 s3, s3, s22
    s_add_u32 s3, s3, {task0}
    s_cmp_ge_u32 s3, {task1}
    s_cbranch_scc1 {P}_END
    s_lshl_b32 s20, s3, 4                   ; n0
    v_and_b32 v2, 15, v1
    v_add_u32 v2, s20, v2                   ; node
    v_lshrrev_b32 v3, 4, v1                 ; c4
    v_lshlrev_b32 v4, 8, v2
    v_lshl_add_u32 v4, v3, 4, v4
    v_lshlrev_b32 v5, 1, v2
    s_waitcnt lgkmcnt(0)
    s_mov_b32 s10, {N*256}
    s_mov_b32 s11, 0x20000
    s_mov_b32 s14, {N*2}
    s_mov_b32 s15, 0x20000
    """)
    e("buffer_load_ushort v6, v5, s[12:15], 0 offen")
    for i in range(4): e(f"buffer_load_dwordx4 v[{8+4*i}:{11+4*i}], v4, s[8:11], 0 offen offset:{64*i}")
    e(f"""
    s_add_u32 s16, s4, {OFF_T}
    s_addc_u32 s17, s5, 0
    s_mov_b32 s18, {32*TS_STRIDE}
    s_mov_b32 s19, 0x20000
    s_add_u32 s24, s4, {OFF_G}
    s_addc_u32 s25, s5, 0
    s_mov_b32 s26, {32*TS_STRIDE}
    s_mov_b32 s27, 0x20000
    s_mov_b32 s21, {TS_STRIDE}
    v_and_b32 v7, 1, v1
    v_lshl_add_u32 v7, v3, 1, v7            ; 2*c4+parity
    v_mul_lo_u32 v7, v7, s21
    v_and_b32 v5, -2, v2
    v_lshl_add_u32 v7, v5, 3, v7
    s_mov_b32 s28, 0xffff0000
    s_mov_b32 s30, 0xaaaaaaaa
    s_mov_b32 s31, 0xaaaaaaaa
    s_waitcnt vmcnt(4)
    v_lshlrev_b32 v6, 16, v6
    """)
    def xch(d,o,t):
        e(f"""v_cndmask_b32 v{t}, v{d+2}, v{d}, s[30:31]
        v_cndmask_b32 v{t+1}, v{d+3}, v{d+1}, s[30:31]
        v_mov_b32_dpp v{t+2}, v{t} quad_perm:[1,0,3,2] row_mask:0xf bank_mask:0xf
        v_mov_b32_dpp v{t+3}, v{t+1} quad_perm:[1,0,3,2] row_mask:0xf bank_mask:0xf
        v_cndmask_b32 v{o}, v{d}, v{t+2}, s[30:31]
        v_cndmask_b32 v{o+1}, v{d+1}, v{t+3}, s[30:31]
        v_cndmask_b32 v{o+2}, v{t+2}, v{d+2}, s[30:31]
        v_cndmask_b32 v{o+3}, v{t+3}, v{d+3}, s[30:31]""")
    nst=int(doG)+int(doT)
    for i in range(4):
        b=8+4*i
        e(f"s_waitcnt vmcnt({(3-i)+nst*i})")
        e(f"s_mov_b32 s3, {8*i*TS_STRIDE}")
        if doG:
            for r in range(4):
                e(f"v_lshlrev_b32 v{24+2*r}, 16, v{b+r}\nv_and_b32 v{25+2*r}, s28, v{b+r}\nv_mul_f32 v{24+2*r}, v{24+2*r}, v6\nv_mul_f32 v{25+2*r}, v{25+2*r}, v6\nv_cvt_pk_bf16_f32 v{32+r}, v{24+2*r}, v{25+2*r}")
            xch(32,40+8*i,36)
            e(f"buffer_store_dwordx4 v[{40+8*i}:{43+8*i}], v7, s[24:27], s3 offen")
        if doT:
            xch(b,44+8*i,36)
            e(f"buffer_store_dwordx4 v[{44+8*i}:{47+8*i}], v7, s[16:19], s3 offen")
    e("s_endpgm")
ACC=64; CS=32768
def w_finish(e,center_right,scale,woff):
    e(f"v_add_f32 v8, v{ACC}, v{ACC+1}")
    for r in range(2,16): e(f"v_add_f32 v8, v8, v{ACC+r}")
    e("v_mov_b32 v12, v8\nv_permlane32_swap_b32 v8, v12\nv_add_f32 v8, v8, v12")
    e(f"v_and_b32 v13, 31, v1\nv_lshlrev_b32 v13, 2, v13\ns_lshl_b32 s3, s22, 7\nv_add_u32 v14, s3, v13\nds_write_b32 v14, v8 offset:{CS}")
    if center_right:
        e("v_add_f32 v9, v40, v41")
        for r in range(2,16): e(f"v_add_f32 v9, v9, v{40+r}")
        e("v_mov_b32 v12, v9\nv_permlane32_swap_b32 v9, v12\nv_add_f32 v9, v9, v12")
        e(f"v_bfe_u32 v14, v1, 2, 1\nv_lshlrev_b32 v14, 4, v14\nv_bfe_u32 v15, v1, 3, 2\nv_lshl_add_u32 v14, v15, 2, v14\nv_and_b32 v15, 3, v1\nv_add_u32 v14, v14, v15\nv_lshlrev_b32 v14, 2, v14\nv_add_u32 v14, s3, v14\nds_write_b32 v14, v9 offset:{CS+2048}")
    e("s_waitcnt lgkmcnt(0)\ns_barrier")
    e("s_and_b32 s3, s22, 3\ns_lshl_b32 s3, s3, 7\nv_add_u32 v14, s3, v13")
    for it in range(4): e(f"ds_read_b32 v{16+it}, v14 offset:{CS+512*it}")
    if center_right:
        e(f"v_lshlrev_b32 v15, 5, v1\nds_read_b128 v[20:23], v15 offset:{CS}\nds_read_b128 v[24:27], v15 offset:{CS+16}")
        e(f"s_lshr_b32 s3, s22, 2\ns_lshl_b32 s3, s3, 9\nv_lshrrev_b32 v15, 5, v1\nv_lshlrev_b32 v15, 6, v15\nv_add_u32 v15, s3, v15")
        for mt in range(4):
            for q in range(4): e(f"ds_read_b128 v[{84+16*(mt%2)+4*q}:{87+16*(mt%2)+4*q}], v15 offset:{CS+2048+128*mt+16*q}")
            if mt%2==1:
                e("s_waitcnt lgkmcnt(0)")
                for r in range(16):
                    if mt==1: e(f"v_add_f32 v{40+r}, v{84+r}, v{100+r}")
                    else: e(f"v_add_f32 v{84+r}, v{84+r}, v{100+r}\nv_add_f32 v{40+r}, v{40+r}, v{84+r}")
    e("s_waitcnt lgkmcnt(0)\ns_mov_b32 s3, 0x3c000000")
    e("v_add_f32 v8, v16, v17\nv_add_f32 v9, v18, v19\nv_add_f32 v8, v8, v9\nv_mul_f32 v8, s3, v8")
    if center_right:
        e("v_add_f32 v12, v20, v21")
        for k in range(2,8): e(f"v_add_f32 v12, v12, v{20+k}")
        allred32_f32(e,12,15)
        e("v_mov_b32 v15, v12\nv_permlane32_swap_b32 v12, v15\nv_add_f32 v12, v12, v15")
        e("v_mul_f32 v12, s3, v12\nv_mul_f32 v12, s3, v12\nv_sub_f32 v8, v8, v12")
        for r in range(16): e(f"v_fma_f32 v{40+r}, s3, v{40+r}, v8")
    e(f"s_mov_b32 s3, {scale:#x}")
    for r in range(16):
        a=ACC+r
        e(f"v_sub_f32 v{a}, v{a}, v{40+r}" if center_right else f"v_sub_f32 v{a}, v{a}, v8")
        if scale!=0x3f800000: e(f"v_mul_f32 v{a}, s3, v{a}")
    e(f"s_and_b32 s3, s22, 3\ns_lshl_b32 s3, s3, 13\ns_lshr_b32 s20, s22, 2\ns_lshl_b32 s20, s20, 11\ns_add_u32 s3, s3, s20\ns_add_u32 s3, s3, {OFF_W+woff}\nv_lshlrev_b32 v13, 4, v1\nv_add_u32 v13, s3, v13")
    for ee in range(2):
        for i in range(4): e(f"v_cvt_pk_bf16_f32 v{32+4*ee+i}, v{ACC+8*ee+2*i}, v{ACC+8*ee+2*i+1}")
        e(f"global_store_dwordx4 v13, v[{32+4*ee}:{35+4*ee}], s[4:5] offset:{ee*1024}")
    e("s_endpgm")
def rowaddr(e):
    e("""v_and_b32 v2, 0x13, v1
    v_bfe_u32 v3, v1, 2, 1
    v_lshl_or_b32 v2, v3, 3, v2
    v_bfe_u32 v3, v1, 3, 1
    v_lshl_or_b32 v2, v3, 2, v2
    v_lshlrev_b32 v3, 8, v2
    v_lshrrev_b32 v4, 5, v1
    v_lshl_add_u32 v3, v4, 4, v3""")
def two_srd(e,off):
    e(f"""s_load_dwordx4 s[8:11], s[0:1], {off}
    s_waitcnt lgkmcnt(0)
    s_mov_b32 s12, s8
    s_mov_b32 s13, s9
    s_mov_b32 s14, 32768
    s_mov_b32 s15, 0x20000
    s_mov_b32 s16, s10
    s_mov_b32 s17, s11
    s_mov_b32 s18, 32768
    s_mov_b32 s19, 0x20000""")
def stage(e,srd,ldsbase,r0):
    e(f"buffer_load_dwordx4 v[{r0}:{r0+3}], v90, {srd}, 0 offen\nbuffer_load_dwordx4 v[{r0+4}:{r0+7}], v91, {srd}, 0 offen")
def stage_addr(e):
    e("""v_lshlrev_b32 v90, 4, v0
    v_add_u32 v91, 16384, v90
    v_lshrrev_b32 v92, 4, v0
    v_and_b32 v93, 15, v92
    v_and_b32 v94, 15, v0
    v_xor_b32 v93, v93, v94
    v_lshlrev_b32 v93, 4, v93
    v_lshl_add_u32 v92, v92, 8, v93""")
def frag_addr(e,reg,tile_sreg):
    e(f"""v_and_b32 v2, 0x13, v1
    v_bfe_u32 v3, v1, 2, 1
    v_lshl_or_b32 v2, v3, 3, v2
    v_bfe_u32 v3, v1, 3, 1
    v_lshl_or_b32 v2, v3, 2, v2
    v_and_b32 v3, 15, v2
    v_lshrrev_b32 v4, 5, v1
    v_xor_b32 v{reg+1}, v3, v4
    v_lshlrev_b32 v{reg}, 8, v2
    v_add_u32 v{reg}, {tile_sreg}, v{reg}""")
def frag_read(e,dst,reg,es,base):
    e(f"v_xor_b32 v7, {2*es}, v{reg+1}\nv_lshl_add_u32 v7, v7, 4, v{reg}\nds_read_b128 v[{dst}:{dst+3}], v7 offset:{base}")
def role_wm(e):
    two_srd(e,32); stage_addr(e)
    stage(e,'s[12:15]',0,8); stage(e,'s[16:19]',32768,16)
    e("s_lshr_b32 s20, s22, 2\ns_lshl_b32 s20, s20, 13\ns_and_b32 s21, s22, 3\ns_lshl_b32 s21, s21, 13")
    frag_addr(e,56,'s20'); frag_addr(e,58,'s21')
    e("""s_waitcnt vmcnt(2)
    ds_write_b128 v92, v[8:11]
    ds_write_b128 v92, v[12:15] offset:16384
    s_waitcnt vmcnt(0)
    ds_write_b128 v92, v[16:19] offset:32768
    ds_write_b128 v92, v[20:23] offset:49152
    s_waitcnt lgkmcnt(0)
    s_barrier""")
    for es in range(8):
        frag_read(e,8+4*es,56,es,0); frag_read(e,84+4*es,58,es,32768)
        if es%4==3: e("s_waitcnt lgkmcnt(0)")
    e("s_barrier")
    for es in range(8):
        c="0" if es==0 else f"v[{ACC}:{ACC+15}]"
        e(f"v_mfma_f32_32x32x16_bf16 v[{ACC}:{ACC+15}], v[{8+4*es}:{11+4*es}], v[{84+4*es}:{87+4*es}], {c}")
        c="0" if es==0 else "v[40:55]"
        e(f"v_mfma_f32_32x32x16_bf16 v[40:55], v[{84+4*es}:{87+4*es}], v[{8+4*es}:{11+4*es}], {c}")
    sc=struct.unpack('<I',struct.pack('<f',1.4426950408889634/128**0.5))[0]
    w_finish(e,True,sc,0)
def role_wu(e):
    two_srd(e,48); stage_addr(e)
    stage(e,'s[12:15]',0,8); stage(e,'s[16:19]',32768,16)
    e("s_lshr_b32 s20, s22, 2\ns_lshl_b32 s20, s20, 13")
    frag_addr(e,56,'s20')
    e("""
    v_lshrrev_b32 v5, 5, v1
    v_lshlrev_b32 v5, 3, v5
    v_bfe_u32 v6, v1, 2, 2
    v_add_u32 v5, v5, v6
    v_lshlrev_b32 v5, 8, v5
    v_bfe_u32 v6, v1, 4, 1
    v_lshlrev_b32 v6, 4, v6
    v_and_b32 v7, 1, v1
    v_lshl_add_u32 v6, v7, 3, v6
    v_bfe_u32 v7, v1, 1, 1
    v_lshl_add_u32 v6, v7, 2, v6
    v_lshl_add_u32 v5, v6, 1, v5
    s_and_b32 s21, s22, 3
    s_lshl_b32 s21, s21, 6
    v_add_u32 v5, s21, v5
    s_waitcnt vmcnt(2)
    ds_write_b128 v92, v[8:11]
    ds_write_b128 v92, v[12:15] offset:16384
    s_waitcnt vmcnt(0)
    ds_write_b128 v90, v[16:19] offset:32768
    ds_write_b128 v91, v[20:23] offset:32768
    s_waitcnt lgkmcnt(0)
    s_barrier
    """)
    for es in range(8):
        frag_read(e,8+4*es,56,es,0)
        for jj in range(2):
            e(f"ds_read_b64_tr_b16 v[{84+4*es+2*jj}:{85+4*es+2*jj}], v5 offset:{32768+(16*es+4*jj)*256}")
        if es%4==3: e("s_waitcnt lgkmcnt(0)")
    e("s_barrier")
    for es in range(8):
        c="0" if es==0 else f"v[{ACC}:{ACC+15}]"
        e(f"v_mfma_f32_32x32x16_bf16 v[{ACC}:{ACC+15}], v[{8+4*es}:{11+4*es}], v[{84+4*es}:{87+4*es}], {c}")
    w_finish(e,False,0x3f800000,32768)
def role_sw(e,P):
    lg=struct.unpack('<I',struct.pack('<f',1.4426950408889634))[0]
    e(f"""
    s_load_dwordx2 s[8:9], s[0:1], 64       ; w_r
    v_mov_b32 v8, 0
    v_mov_b32 v9, 0
    v_mov_b32 v10, 0
    v_mov_b32 v11, 0
    v_lshlrev_b32 v2, 4, v0
    v_add_u32 v2, {OFF_FL}, v2
    s_waitcnt lgkmcnt(0)
    global_store_dwordx4 v2, v[8:11], s[4:5]
    s_cmp_lg_u32 s22, 0
    s_cbranch_scc1 {P}_SW2
    v_lshlrev_b32 v3, 2, v1
    global_load_dword v4, v3, s[8:9]
    s_waitcnt vmcnt(0)
    v_lshlrev_b32 v5, 16, v4
    v_and_b32 v6, 0xffff0000, v4
    v_add_f32 v7, v5, v6
    """)
    allred32_f32(e,7,12)
    e(f"""
    v_mov_b32 v12, v7
    v_permlane32_swap_b32 v7, v12
    v_add_f32 v7, v7, v12
    v_mul_f32 v7, 0x3c000000, v7
    v_sub_f32 v5, v5, v7
    v_sub_f32 v6, v6, v7
    v_mul_f32 v5, {lg:#x}, v5
    v_mul_f32 v6, {lg:#x}, v6
    v_cvt_pk_bf16_f32 v12, v5, v6
    v_lshlrev_b32 v13, 16, v12
    v_and_b32 v14, 0xffff0000, v12
    v_sub_f32 v5, v5, v13
    v_sub_f32 v6, v6, v14
    v_cvt_pk_bf16_f32 v13, v5, v6
    ds_write_b32 v3, v12 offset:256
    ds_write_b32 v3, v13 offset:512
    v_mov_b32 v12, 0x3f803f80
    v_mov_b32 v13, 0
    ds_write_b32 v3, v12
    ds_write_b32 v3, v13 offset:768
    {P}_SW2:
    s_waitcnt lgkmcnt(0)
    s_barrier
    s_cmp_ge_u32 s22, 8
    s_cbranch_scc1 {P}_END
    v_and_b32 v2, 3, v1
    v_lshlrev_b32 v2, 8, v2
    v_lshrrev_b32 v3, 5, v1
    v_lshl_add_u32 v2, v3, 4, v2
    s_lshl_b32 s3, s22, 5
    v_add_u32 v2, s3, v2
    ds_read_b128 v[8:11], v2
    v_bfe_u32 v3, v1, 4, 1
    v_bfe_u32 v4, v1, 2, 1
    v_cmp_eq_u32 vcc, v3, v4
    s_waitcnt lgkmcnt(0)
    v_cndmask_b32 v8, 0, v8, vcc
    v_cndmask_b32 v9, 0, v9, vcc
    v_cndmask_b32 v10, 0, v10, vcc
    v_cndmask_b32 v11, 0, v11, vcc
    s_lshl_b32 s3, s22, 10
    s_add_u32 s3, s3, {OFF_W+65536}
    v_lshlrev_b32 v2, 4, v1
    v_add_u32 v2, s3, v2
    global_store_dwordx4 v2, v[8:11], s[4:5]
    s_endpgm
    """)
TSK=False
def tstamp(e,idx):
    if TSK: e(f"s_memrealtime s[62:63]\ns_waitcnt lgkmcnt(0)\ns_mov_b32 s{70+idx}, s62")
def tdump(e,wg,n):
    if not TSK: return
    lab=e.lab('TD')
    e(f"s_cmp_lg_u32 s2, {wg}\ns_cbranch_scc1 {lab}")
    for k in range(n): e(f"v_writelane_b32 v100, s{70+k}, {k}")
    e(f"s_lshl_b32 s3, s22, 6\ns_add_u32 s3, s3, {OFF_DBG}\nv_lshlrev_b32 v101, 2, v1\nv_add_u32 v101, s3, v101\nv_cmp_gt_u32 vcc, {n}, v1\ns_and_saveexec_b64 s[30:31], vcc\nglobal_store_dword v101, v100, s[4:5]\ns_mov_b64 exec, s[30:31]\n{lab}:")
def role_csr(e,P):
    tstamp(e,0)
    C1=0; C2=2560; CU=5120; OX=7680; WT=10240; ES=10496; ECAPB=16384
    e(f"""
    v_mov_b32 v3, 0
    v_lshlrev_b32 v4, 2, v0
    v_cmp_gt_u32 vcc, 640, v0
    s_and_saveexec_b64 s[30:31], vcc
    ds_write_b32 v4, v3 offset:{C1}
    ds_write_b32 v4, v3 offset:{C2}
    ds_write_b32 v4, v3 offset:{CU}
    s_mov_b64 exec, s[30:31]
    s_waitcnt lgkmcnt(0)
    s_add_u32 s8, s4, {OFF_OFFS}
    s_addc_u32 s9, s5, 0
    s_mov_b32 s10, {129*NCH*4}
    s_mov_b32 s11, 0x20000
    s_add_u32 s12, s4, {OFF_CH}
    s_addc_u32 s13, s5, 0
    s_mov_b32 s14, {EDG*4}
    s_mov_b32 s15, 0x20000
    s_add_u32 s16, s4, {OFF_ENT}
    s_addc_u32 s17, s5, 0
    s_mov_b32 s18, {ENT_BYTES}
    s_mov_b32 s19, 0x20000
    s_mul_i32 s3, s2, {NCH*4}
    v_lshlrev_b32 v5, 4, v1
    v_add_u32 v5, s22, v5                 ; seg
    v_cmp_gt_u32 vcc, {NCH}, v5
    v_cmp_gt_u32 s[32:33], 7, v1
    s_and_b64 vcc, vcc, s[32:33]
    v_lshlrev_b32 v6, 2, v5
    v_add_u32 v6, s3, v6
    v_mov_b32 v7, 0x7ffffff0
    s_nop 0
    v_cndmask_b32 v6, v7, v6, vcc
    buffer_load_dword v8, v6, s[8:11], 0 offen
    buffer_load_dword v9, v6, s[8:11], 0 offen offset:{NCH*4}
    v_lshlrev_b32 v10, 2, v1
    v_add_u32 v10, s3, v10
    buffer_load_dword v11, v10, s[8:11], 0 offen
    v_cmp_gt_u32 s[34:35], {NCH-64}, v1
    v_add_u32 v12, 256, v10
    v_cndmask_b32 v12, v7, v12, s[34:35]
    buffer_load_dword v12, v12, s[8:11], 0 offen
    s_waitcnt vmcnt(2)
    v_sub_u32 v9, v9, v8
    v_mul_u32_u24 v5, {CHE}, v5
    v_add_u32 v8, v8, v5
    """)
    tstamp(e,1)
    for i in range(7): e(f"v_readlane_b32 s{40+i}, v8, {i}\nv_readlane_b32 s{48+i}, v9, {i}")
    R=16
    for i in range(7):
        e(f"""v_add_u32 v13, s{40+i}, v1
        v_lshlrev_b32 v13, 2, v13
        v_cmp_gt_u32 vcc, s{48+i}, v1
        s_nop 1
        v_cndmask_b32 v13, v7, v13, vcc
        buffer_load_dword v{R+i}, v13, s[12:15], 0 offen""")
    e("s_waitcnt vmcnt(7)\nv_add_u32 v11, v11, v12")
    wave_scan(e,11)
    e("s_nop 1\nv_readlane_b32 s24, v11, 63\ns_barrier")
    tstamp(e,2)
    CI=24; RK=32; VL=40
    def decode(rec,ci,vl,t):
        e(f"""v_lshrrev_b32 v{ci}, 16, v{rec}
        v_and_b32 v{vl}, 0xffff, v{rec}
        v_cmp_le_u32 vcc, s28, v{vl}
        v_cmp_le_u32 s[36:37], s27, v{vl}
        v_mul_u32_u24 v{ci}, 3, v{ci}
        v_add_u32 v{t}, {BADD}, v{vl}
        v_subrev_u32 v{t+1}, {TH2}, v{vl}
        v_cndmask_b32 v{vl}, v{vl}, v{t}, vcc
        v_cndmask_b32 v{vl}, v{vl}, v{t+1}, s[36:37]
        v_addc_co_u32 v{ci}, vcc, 0, v{ci}, vcc
        v_addc_co_u32 v{ci}, vcc, 0, v{ci}, s[36:37]
        v_lshlrev_b32 v{ci}, 2, v{ci}""")
    e(f"v_mov_b32 v3, 1\ns_movk_i32 s27, {TH2}\ns_movk_i32 s28, {TH1}")
    for i in range(7):
        e(f"s_waitcnt vmcnt({6-i})")
        decode(R+i,CI+i,VL+i,14)
        e(f"""v_cmp_gt_u32 vcc, s{48+i}, v1
        s_and_saveexec_b64 s[30:31], vcc
        ds_add_rtn_u32 v{RK+i}, v{CI+i}, v3 offset:{C1}
        s_mov_b64 exec, s[30:31]""")
    def remainder(final):
        for i in range(7):
            L=e.lab(P+'RM'); Lx=e.lab(P+'RX')
            e(f"""s_cmp_le_u32 s{48+i}, 64
            s_cbranch_scc1 {Lx}
            s_mov_b32 s25, 64
            {L}:
            v_add_u32 v13, s25, v1
            v_cmp_gt_u32 vcc, s{48+i}, v13
            s_and_saveexec_b64 s[30:31], vcc
            s_cbranch_execz {L}_s
            v_add_u32 v13, s{40+i}, v13
            v_lshlrev_b32 v13, 2, v13
            buffer_load_dword v48, v13, s[12:15], 0 offen
            s_waitcnt vmcnt(0)""")
            decode(48,49,50,14)
            if not final: e(f"ds_add_u32 v49, v3 offset:{C2}")
            else:
                e(f"""ds_add_rtn_u32 v51, v49, v3 offset:{CU}
                ds_read_b32 v52, v49 offset:{OX}
                ds_read_b32 v53, v49 offset:{C1}
                s_waitcnt lgkmcnt(0)
                v_add3_u32 v51, v51, v52, v53
                v_lshlrev_b32 v51, 1, v51""")
                if final==2: e("v_add_u32 v51, s39, v51\nds_write_b16 v51, v50")
                else: e("buffer_store_short v50, v51, s[16:19], 0 offen")
            e(f"""{L}_s:
            s_mov_b64 exec, s[30:31]
            s_add_u32 s25, s25, 64
            s_cmp_lt_u32 s25, s{48+i}
            s_cbranch_scc1 {L}
            {Lx}:""")
    remainder(False)
    tstamp(e,3)
    e("s_waitcnt lgkmcnt(0)\ns_barrier")
    tstamp(e,4)
    e(f"""
    s_cmp_ge_u32 s22, 4
    s_cbranch_scc1 {P}_N1
    v_mul_u32_u24 v4, 12, v0
    ds_read_b32 v48, v4 offset:{C1}
    ds_read_b32 v49, v4 offset:{C1+4}
    ds_read_b32 v50, v4 offset:{C1+8}
    ds_read_b32 v51, v4 offset:{C2}
    ds_read_b32 v52, v4 offset:{C2+4}
    ds_read_b32 v53, v4 offset:{C2+8}
    v_cmp_gt_u32 vcc, 196, v0
    s_waitcnt lgkmcnt(0)
    """)
    for k in range(3):
        e(f"v_add_u32 v{48+k}, v{48+k}, v{51+k}\nv_cndmask_b32 v{48+k}, 0, v{48+k}, vcc\nv_add_u32 v{54+k}, 1, v{48+k}\nv_and_b32 v{54+k}, -2, v{54+k}")
    e("v_add3_u32 v57, v54, v55, v56\nv_mov_b32 v58, v57")
    wave_scan(e,58)
    e(f"""
    s_nop 1
    v_readlane_b32 s3, v58, 63
    s_lshl_b32 s25, s22, 2
    v_mov_b32 v59, s25
    v_mov_b32 v60, s3
    ds_write_b32 v59, v60 offset:{WT}
    {P}_N1:
    s_waitcnt lgkmcnt(0)
    s_barrier
    s_cmp_ge_u32 s22, 4
    s_cbranch_scc1 {P}_P2
    v_mov_b32 v59, 0
    ds_read_b128 v[60:63], v59 offset:{WT}
    v_sub_u32 v58, v58, v57
    s_mul_i32 s3, s2, 590
    s_add_u32 s3, s3, s24
    s_add_u32 s3, s3, 1
    s_and_b32 s26, s3, -2
    s_waitcnt lgkmcnt(0)
    v_readfirstlane_b32 s40, v60
    v_readfirstlane_b32 s41, v61
    v_readfirstlane_b32 s42, v62
    s_cmp_ge_u32 s22, 1
    s_cselect_b32 s40, s40, 0
    s_cmp_ge_u32 s22, 2
    s_cselect_b32 s41, s41, 0
    s_cmp_ge_u32 s22, 3
    s_cselect_b32 s42, s42, 0
    s_add_u32 s26, s26, s40
    s_add_u32 s26, s26, s41
    s_add_u32 s26, s26, s42
    v_add_u32 v64, s26, v58               ; offA
    v_add_u32 v65, v64, v54               ; offB
    v_add_u32 v66, v65, v55               ; offC
    v_add_u32 v67, v66, v56               ; end
    v_cmp_eq_u32 vcc, 0, v0
    s_and_saveexec_b64 s[30:31], vcc
    ds_write_b32 v59, v64 offset:{WT+16}
    s_mov_b64 exec, s[30:31]
    v_cmp_eq_u32 vcc, 195, v0
    s_and_saveexec_b64 s[30:31], vcc
    ds_write_b32 v59, v67 offset:{WT+20}
    s_mov_b64 exec, s[30:31]
    v_cmp_gt_u32 vcc, 196, v0
    s_and_saveexec_b64 s[30:31], vcc
    s_cbranch_execz {P}_N2
    ds_write_b32 v4, v64 offset:{OX}
    ds_write_b32 v4, v65 offset:{OX+4}
    ds_write_b32 v4, v66 offset:{OX+8}
    s_mul_i32 s3, s2, {196*16}
    v_lshlrev_b32 v5, 4, v0
    v_add_u32 v5, s3, v5
    v_add_u32 v6, {OFF_NOFF}, v5
    global_store_dwordx4 v6, v[64:67], s[4:5]
    v_lshrrev_b32 v54, 1, v54
    v_lshrrev_b32 v55, 1, v55
    v_lshrrev_b32 v56, 1, v56
    v_or3_b32 v71, v54, v55, v56
    v_lshrrev_b32 v71, 10, v71
    v_mov_b32 v68, v64
    v_lshl_or_b32 v69, v55, 10, v54
    v_lshl_or_b32 v69, v56, 20, v69
    v_min_u32 v55, 7, v55
    v_min_u32 v56, 7, v56
    v_min_u32 v54, 15, v54
    v_and_b32 v72, 1, v55
    v_sub_u32 v73, 7, v56
    v_cmp_eq_u32 vcc, 1, v72
    v_cndmask_b32 v56, v56, v73, vcc
    v_lshl_or_b32 v56, v55, 3, v56
    v_and_b32 v72, 1, v56
    v_sub_u32 v73, 15, v54
    v_cmp_eq_u32 vcc, 1, v72
    v_cndmask_b32 v54, v54, v73, vcc
    v_lshl_or_b32 v54, v56, 4, v54
    v_lshlrev_b32 v70, 2, v54
    v_add_u32 v6, {OFF_NINFO}, v5
    global_store_dwordx4 v6, v[68:71], s[4:5]
    """)
    e(f"""
    {P}_N2:
    s_mov_b64 exec, s[30:31]
    {P}_P2:
    s_waitcnt lgkmcnt(0)
    s_barrier
    """)
    tstamp(e,5)
    e(f"""
    v_mov_b32 v59, 0
    ds_read_b64 v[60:61], v59 offset:{WT+16}
    s_waitcnt lgkmcnt(0)
    v_readfirstlane_b32 s26, v60        ; EB
    v_readfirstlane_b32 s29, v61        ; end
    s_sub_u32 s38, s29, s26
    s_lshl_b32 s38, s38, 1              ; bytes
    s_cmp_gt_u32 s38, {ECAPB}
    s_cbranch_scc1 {P}_DIRECT
    """)
    e(f"s_lshl_b32 s39, s26, 1\ns_sub_u32 s39, {ES}, s39")
    for i in range(7):
        e(f"""v_cmp_gt_u32 vcc, s{48+i}, v1
        s_and_saveexec_b64 s[30:31], vcc
        ds_read_b32 v{R+i}, v{CI+i} offset:{OX}
        s_mov_b64 exec, s[30:31]""")
    e(f"""s_cmp_ge_u32 s22, 4
    s_cbranch_scc1 {P}_NP1
    v_cmp_gt_u32 vcc, 196, v0
    s_and_saveexec_b64 s[32:33], vcc
    s_cbranch_execz {P}_NP0
    v_mov_b32 v72, {ZSI}""")
    for k in range(3):
        e(f"""v_and_b32 v73, 1, v{48+k}
        v_cmp_eq_u32 vcc, 1, v73
        v_add_u32 v73, v{64+k}, v{48+k}
        v_lshlrev_b32 v73, 1, v73
        v_add_u32 v73, s39, v73
        s_and_saveexec_b64 s[30:31], vcc
        ds_write_b16 v73, v72
        s_mov_b64 exec, s[30:31]""")
    e(f"{P}_NP0:\ns_mov_b64 exec, s[32:33]\n{P}_NP1:\ns_waitcnt lgkmcnt(0)")
    for i in range(7):
        e(f"""v_add_u32 v13, v{R+i}, v{RK+i}
        v_lshlrev_b32 v13, 1, v13
        v_add_u32 v13, s39, v13
        v_cmp_gt_u32 vcc, s{48+i}, v1
        s_and_saveexec_b64 s[30:31], vcc
        ds_write_b16 v13, v{VL+i}
        s_mov_b64 exec, s[30:31]""")
    remainder(2)
    e(f"""s_waitcnt lgkmcnt(0)
    s_barrier
    v_lshlrev_b32 v4, 4, v0
    v_cmp_gt_u32 vcc, s38, v4
    s_and_saveexec_b64 s[30:31], vcc
    s_cbranch_execz {P}_END
    ds_read_b128 v[8:11], v4 offset:{ES}
    s_lshl_b32 s18, s29, 1
    s_lshl_b32 s3, s26, 1
    s_waitcnt lgkmcnt(0)
    buffer_store_dwordx4 v[8:11], v4, s[16:19], s3 offen
    """)
    tstamp(e,6)
    if TSK: e("s_waitcnt vmcnt(0)")
    tstamp(e,7)
    tdump(e,5,8)
    e(f"s_endpgm\n{P}_DIRECT:")
    e(f"""s_cmp_ge_u32 s22, 4
    s_cbranch_scc1 {P}_NQ1
    v_cmp_gt_u32 vcc, 196, v0
    s_and_saveexec_b64 s[32:33], vcc
    s_cbranch_execz {P}_NQ0
    v_mov_b32 v72, {ZSI}
    v_mov_b32 v74, 0x7ffffff0""")
    for k in range(3):
        e(f"""v_and_b32 v73, 1, v{48+k}
        v_cmp_eq_u32 vcc, 1, v73
        v_add_u32 v73, v{64+k}, v{48+k}
        v_lshlrev_b32 v73, 1, v73
        v_cndmask_b32 v73, v74, v73, vcc
        buffer_store_short v72, v73, s[16:19], 0 offen""")
    e(f"{P}_NQ0:\ns_mov_b64 exec, s[32:33]\n{P}_NQ1:")
    for i in range(7):
        e(f"""v_cmp_gt_u32 vcc, s{48+i}, v1
        s_and_saveexec_b64 s[30:31], vcc
        ds_read_b32 v{R+i}, v{CI+i} offset:{OX}
        s_mov_b64 exec, s[30:31]""")
    e("s_waitcnt lgkmcnt(0)\nv_mov_b32 v94, 0x7ffffff0")
    for i in range(7):
        e(f"""v_add_u32 v13, v{R+i}, v{RK+i}
        v_lshlrev_b32 v13, 1, v13
        v_cmp_gt_u32 vcc, s{48+i}, v1
        s_nop 1
        v_cndmask_b32 v13, v94, v13, vcc
        buffer_store_short v{VL+i}, v13, s[16:19], 0 offen""")
    remainder(True)
    e("s_endpgm")
XW=16
K1_XWG0=103; K1_GRID=K1_XWG0+(1563+XW-1)//XW
K2_GRID=128
K1_LDS=64*1024; K2_LDS=28*1024
def gen_k1():
    e=E(); head(e,K1_GRID,'K1')
    e(f"s_cmp_ge_u32 s2, {K1_XWG0}\ns_cbranch_scc1 K1_X\ns_cmp_eq_u32 s2, 100\ns_cbranch_scc1 K1_WM\ns_cmp_eq_u32 s2, 101\ns_cbranch_scc1 K1_WU\ns_cmp_eq_u32 s2, 102\ns_cbranch_scc1 K1_SW")
    role_chunk(e,'K1')
    e("K1_X:"); role_x(e,'K1',K1_XWG0,0,1563,XW,True,True)
    e("K1_SW:"); role_sw(e,'K1')
    e("K1_WM:"); role_wm(e)
    e("K1_WU:"); role_wu(e)
    e("K1_END:")
    return e.text(),128,40
def gen_k2():
    e=E(); head(e,K2_GRID,'K2')
    role_csr(e,'K2')
    e("K2_END:")
    return e.text(),104,88
```

```python
import sys
sys.path.insert(0,'dev')
from glib import *
import hazard
def K(name,gen,**kw):
    r=gen(**kw); b,vg,sg=r[:3]; ag=r[3] if len(r)>3 else 0
    b,n=hazard.fix(b); return kernel_text(name,b,vg,sg,ag)
if __name__=='__main__':
    from prep import *
    import prep as _p
    _p.XTOUCH='xtouch' in sys.argv
    what=sys.argv[1]
    if 'sep' in sys.argv:
        L=[('prep1_kernel',K1_GRID,1024,K1_LDS),('prep2_kernel',K2_GRID,1024,K2_LDS)]
        Ks=[K('prep1_kernel',gen_k1),K('prep2_kernel',gen_k2)]
    else:
        L=[('prep_kernel',P_GRID,1024,P_LDS)]
        Ks=[K('prep_kernel',gen_prep)]
    if what in('123','all'):
        from k3 import *
        L.append(('hops_kernel',256,1024,K3_LDS)); Ks.append(K('hops_kernel',gen_k3,TS=(2 if 'tsp' in sys.argv else 1 if 'ts' in sys.argv else 0), DBG='dbg' in sys.argv, FORCE_SLOW='slow' in sys.argv, FORCE_SLOWSYNC='slowsync' in sys.argv, PD=(1 if 'pd1' in sys.argv else 2), GATE='nogate' not in sys.argv, TMODE=(1 if 't1' in sys.argv else 2 if 't2' in sys.argv else 0), EXP=' '.join(x for x in sys.argv if x in('nochk','halfsdwa','prio','touch','touch0','notouch','tnt','tsc1','tsc01','ttouch'))))
    if what=='all':
        if 'v3' in sys.argv: from k4v3 import gen_k4,K4_LDS,K4_BLOCK
        else: from k4v4 import gen_k4,K4_LDS,K4_BLOCK
        L.append(('final_kernel',256,K4_BLOCK,K4_LDS)); Ks.append(K('final_kernel',gen_k4,TS='ts4' in sys.argv,TSR=1))
    open(sys.argv[2],'w').write(file_text(L,Ks))
```

```python
from glib import E
from layout import *
import struct
OFF_NINFO=OFF_FL+1024*1024
def wave_scan(e,v,tmp=None):
    for sh in (1,2,4,8):
        e(f"v_add_u32_dpp v{v}, v{v}, v{v} row_shr:{sh} row_mask:0xf bank_mask:0xf bound_ctrl:0")
    e(f"v_add_u32_dpp v{v}, v{v}, v{v} row_bcast:15 row_mask:0xa bank_mask:0xf")
    e(f"v_add_u32_dpp v{v}, v{v}, v{v} row_bcast:31 row_mask:0xc bank_mask:0xf")
def allred32_f32(e,v,tmp):
    e(f"v_add_f32_dpp v{v}, v{v}, v{v} quad_perm:[1,0,3,2] row_mask:0xf bank_mask:0xf")
    e(f"v_add_f32_dpp v{v}, v{v}, v{v} quad_perm:[2,3,0,1] row_mask:0xf bank_mask:0xf")
    e(f"v_add_f32_dpp v{v}, v{v}, v{v} row_half_mirror row_mask:0xf bank_mask:0xf")
    e(f"v_add_f32_dpp v{v}, v{v}, v{v} row_mirror row_mask:0xf bank_mask:0xf")
    e(f"v_mov_b32 v{tmp}, v{v}\nv_permlane16_swap_b32 v{v}, v{tmp}\nv_add_f32 v{v}, v{v}, v{tmp}")
def head(e,grid,P):
    e(f"""
    s_cmp_ge_u32 s2, {grid}
    s_cbranch_scc1 {P}_END
    s_load_dwordx2 s[4:5], s[0:1], 88      ; ws
    v_lshrrev_b32 v2, 6, v0
    v_and_b32 v1, 63, v0
    s_nop 0
    v_readfirstlane_b32 s22, v2
    """)
TSK=False
def tstamp(e,idx):
    if TSK: e(f"s_memrealtime s[62:63]\ns_waitcnt lgkmcnt(0)\ns_mov_b32 s{70+idx}, s62")
def tdump(e,wg,n):
    if not TSK: return
    lab=e.lab('TD')
    e(f"s_cmp_lg_u32 s2, {wg}\ns_cbranch_scc1 {lab}")
    for k in range(n): e(f"v_writelane_b32 v100, s{70+k}, {k}")
    e(f"s_lshl_b32 s3, s22, 6\ns_add_u32 s3, s3, {OFF_DBG}\nv_lshlrev_b32 v101, 2, v1\nv_add_u32 v101, s3, v101\nv_cmp_gt_u32 vcc, {n}, v1\ns_and_saveexec_b64 s[30:31], vcc\nglobal_store_dword v101, v100, s[4:5]\ns_mov_b64 exec, s[30:31]\n{lab}:")
def role_chunk(e,P,MERGED=False):
    SC=' sc1' if MERGED else ''
    tstamp(e,8)
    e(f"""
    s_load_dwordx4 s[8:11], s[0:1], 8
    s_mul_i32 s3, s2, {CHE*4}
    v_lshlrev_b32 v2, 4, v0
    v_add_u32 v2, s3, v2
    v_mov_b32 v3, 0
    v_lshlrev_b32 v4, 2, v0
    v_cmp_gt_u32 vcc, 128, v0
    s_and_saveexec_b64 s[30:31], vcc
    ds_write_b32 v4, v3
    s_mov_b64 exec, s[30:31]
    s_waitcnt lgkmcnt(0)
    s_mov_b32 s12, s8
    s_mov_b32 s13, s9
    s_mov_b32 s14, {EDG*4}
    s_mov_b32 s15, 0x20000
    s_mov_b32 s16, s10
    s_mov_b32 s17, s11
    s_mov_b32 s18, {EDG*4}
    s_mov_b32 s19, 0x20000
    v_cmp_gt_u32 vcc, {CHE//4}, v0
    s_and_saveexec_b64 s[30:31], vcc
    s_cbranch_execz {P}_C1
    buffer_load_dwordx4 v[8:11], v2, s[16:19], 0 offen     ; dst
    buffer_load_dwordx4 v[12:15], v2, s[12:15], 0 offen    ; src
    {P}_C1:
    s_mov_b64 exec, s[30:31]
    s_barrier
    s_mov_b32 s20, 21913099
    s_movk_i32 s21, 196
    s_and_saveexec_b64 s[30:31], vcc
    s_cbranch_execz {P}_C2
    s_waitcnt vmcnt(1)
    v_mov_b32 v3, 1
    """)
    for i in range(4):
        e(f"""v_mul_hi_u32 v{16+i}, v{8+i}, s20
        v_mul_lo_u32 v{20+i}, v{16+i}, s21
        v_sub_u32 v{20+i}, v{8+i}, v{20+i}
        v_lshlrev_b32 v{16+i}, 2, v{16+i}
        ds_add_rtn_u32 v{24+i}, v{16+i}, v3""")
    e(f"""
    {P}_C2:
    s_mov_b64 exec, s[30:31]
    s_waitcnt lgkmcnt(0)
    s_barrier
    s_cmp_lg_u32 s22, 0
    s_cbranch_scc1 {P}_C3
    v_lshlrev_b32 v4, 3, v1
    ds_read_b64 v[6:7], v4
    s_waitcnt lgkmcnt(0)
    v_add_u32 v5, v6, v7
    v_mov_b32 v28, v5
    """)
    wave_scan(e,28)
    e(f"""
    v_sub_u32 v28, v28, v5
    v_add_u32 v29, v28, v6
    ds_write_b64 v4, v[28:29] offset:1024
    v_mul_u32_u24 v5, {2*NCH*4}, v1
    s_lshl_b32 s3, s2, 2
    s_add_u32 s3, s3, {OFF_OFFS}
    v_add_u32 v5, s3, v5
    global_store_dword v5, v28, s[4:5]{SC}
    global_store_dword v5, v29, s[4:5] offset:{NCH*4}{SC}
    v_mov_b32 v6, {CHE}
    v_mov_b32 v5, s3
    v_add_u32 v5, {128*NCH*4}, v5
    v_cmp_eq_u32 vcc, 0, v1
    s_and_saveexec_b64 s[32:33], vcc
    global_store_dword v5, v6, s[4:5]{SC}
    s_mov_b64 exec, s[32:33]
    {P}_C3:
    s_waitcnt lgkmcnt(0)
    s_barrier
    v_cmp_gt_u32 vcc, {CHE//4}, v0
    s_and_saveexec_b64 s[30:31], vcc
    """)
    for i in range(4): e(f"ds_read_b32 v{28+i}, v{16+i} offset:1024")
    e("s_waitcnt vmcnt(0) lgkmcnt(0)")
    for i in range(4):
        e(f"""v_add_u32 v{28+i}, v{28+i}, v{24+i}
        v_lshlrev_b32 v{28+i}, 2, v{28+i}
        v_lshl_or_b32 v{12+i}, v{20+i}, 16, v{12+i}
        ds_write_b32 v{28+i}, v{12+i} offset:2048""")
    e(f"""s_mov_b64 exec, s[30:31]
    s_waitcnt lgkmcnt(0)
    s_barrier
    s_and_saveexec_b64 s[30:31], vcc
    s_cbranch_execz {P}_C4
    v_lshlrev_b32 v4, 4, v0
    ds_read_b128 v[8:11], v4 offset:2048
    s_mul_i32 s3, s2, {CHE*4}
    s_add_u32 s3, s3, {OFF_CH}
    v_add_u32 v4, s3, v4
    s_waitcnt lgkmcnt(0)
    global_store_dwordx4 v4, v[8:11], s[4:5]{SC}
    {P}_C4:
    s_mov_b64 exec, s[30:31]""")
    if not MERGED: e("s_endpgm"); return
    tstamp(e,9)
    e("s_waitcnt vmcnt(0)")
    tstamp(e,10)
    e(f"""s_barrier
    s_load_dwordx2 s[6:7], s[0:1], 80
    s_and_b32 s3, s2, 3
    s_lshl_b32 s3, s3, 5
    v_mov_b32 v4, s3
    v_mov_b32 v5, 1
    s_waitcnt lgkmcnt(0)
    v_cmp_eq_u32 vcc, 0, v0
    s_and_saveexec_b64 s[30:31], vcc
    s_cbranch_execz {P}_C5
    global_atomic_add v4, v5, s[6:7] sc1
    {P}_C5:
    s_mov_b64 exec, s[30:31]""")
def role_x(e,P,wg0,task0,task1,wpw,doG=True,doT=True):
    e(f"""
    s_load_dwordx2 s[8:9], s[0:1], 0        ; x
    s_load_dwordx2 s[12:13], s[0:1], 24     ; dis
    s_cmp_ge_u32 s22, {wpw}
    s_cbranch_scc1 {P}_END
    s_sub_u32 s3, s2, {wg0}
    s_mul_i32 s3, s3, {wpw}
    s_add_u32 s3, s3, s22
    s_add_u32 s3, s3, {task0}
    s_cmp_ge_u32 s3, {task1}
    s_cbranch_scc1 {P}_END
    s_lshl_b32 s20, s3, 4                   ; n0
    v_and_b32 v2, 15, v1
    v_add_u32 v2, s20, v2                   ; node
    v_lshrrev_b32 v3, 4, v1                 ; c4
    v_lshlrev_b32 v4, 8, v2
    v_lshl_add_u32 v4, v3, 4, v4
    v_lshlrev_b32 v5, 1, v2
    s_waitcnt lgkmcnt(0)
    s_mov_b32 s10, {N*256}
    s_mov_b32 s11, 0x20000
    s_mov_b32 s14, {N*2}
    s_mov_b32 s15, 0x20000
    """)
    e("buffer_load_ushort v6, v5, s[12:15], 0 offen")
    for i in range(4): e(f"buffer_load_dwordx4 v[{8+4*i}:{11+4*i}], v4, s[8:11], 0 offen offset:{64*i}")
    e(f"""
    s_add_u32 s16, s4, {OFF_T}
    s_addc_u32 s17, s5, 0
    s_mov_b32 s18, {32*TS_STRIDE}
    s_mov_b32 s19, 0x20000
    s_add_u32 s24, s4, {OFF_G}
    s_addc_u32 s25, s5, 0
    s_mov_b32 s26, {32*TS_STRIDE}
    s_mov_b32 s27, 0x20000
    s_mov_b32 s21, {TS_STRIDE}
    v_and_b32 v7, 1, v1
    v_lshl_add_u32 v7, v3, 1, v7            ; 2*c4+parity
    v_mul_lo_u32 v7, v7, s21
    v_and_b32 v5, -2, v2
    v_lshl_add_u32 v7, v5, 3, v7
    s_mov_b32 s28, 0xffff0000
    s_mov_b32 s30, 0xaaaaaaaa
    s_mov_b32 s31, 0xaaaaaaaa
    s_waitcnt vmcnt(4)
    v_lshlrev_b32 v6, 16, v6
    """)
    def xch(d,o,t):
        e(f"""v_cndmask_b32 v{t}, v{d+2}, v{d}, s[30:31]
        v_cndmask_b32 v{t+1}, v{d+3}, v{d+1}, s[30:31]
        v_mov_b32_dpp v{t+2}, v{t} quad_perm:[1,0,3,2] row_mask:0xf bank_mask:0xf
        v_mov_b32_dpp v{t+3}, v{t+1} quad_perm:[1,0,3,2] row_mask:0xf bank_mask:0xf
        v_cndmask_b32 v{o}, v{d}, v{t+2}, s[30:31]
        v_cndmask_b32 v{o+1}, v{d+1}, v{t+3}, s[30:31]
        v_cndmask_b32 v{o+2}, v{t+2}, v{d+2}, s[30:31]
        v_cndmask_b32 v{o+3}, v{t+3}, v{d+3}, s[30:31]""")
    nst=int(doG)+int(doT)
    for i in range(4):
        b=8+4*i
        e(f"s_waitcnt vmcnt({(3-i)+nst*i})")
        e(f"s_mov_b32 s3, {8*i*TS_STRIDE}")
        if doG:
            for r in range(4):
                e(f"v_lshlrev_b32 v{24+2*r}, 16, v{b+r}\nv_and_b32 v{25+2*r}, s28, v{b+r}\nv_mul_f32 v{24+2*r}, v{24+2*r}, v6\nv_mul_f32 v{25+2*r}, v{25+2*r}, v6\nv_cvt_pk_bf16_f32 v{32+r}, v{24+2*r}, v{25+2*r}")
            xch(32,40+8*i,36)
            e(f"buffer_store_dwordx4 v[{40+8*i}:{43+8*i}], v7, s[24:27], s3 offen")
        if doT:
            xch(b,44+8*i,36)
            e(f"buffer_store_dwordx4 v[{44+8*i}:{47+8*i}], v7, s[16:19], s3 offen")
    e("s_endpgm")
ACC=64; CS=32768
def w_finish(e,center_right,scale,woff):
    e(f"v_add_f32 v8, v{ACC}, v{ACC+1}")
    for r in range(2,16): e(f"v_add_f32 v8, v8, v{ACC+r}")
    e("v_mov_b32 v12, v8\nv_permlane32_swap_b32 v8, v12\nv_add_f32 v8, v8, v12")
    e(f"v_and_b32 v13, 31, v1\nv_lshlrev_b32 v13, 2, v13\ns_lshl_b32 s3, s22, 7\nv_add_u32 v14, s3, v13\nds_write_b32 v14, v8 offset:{CS}")
    if center_right:
        e("v_add_f32 v9, v40, v41")
        for r in range(2,16): e(f"v_add_f32 v9, v9, v{40+r}")
        e("v_mov_b32 v12, v9\nv_permlane32_swap_b32 v9, v12\nv_add_f32 v9, v9, v12")
        e(f"v_bfe_u32 v14, v1, 2, 1\nv_lshlrev_b32 v14, 4, v14\nv_bfe_u32 v15, v1, 3, 2\nv_lshl_add_u32 v14, v15, 2, v14\nv_and_b32 v15, 3, v1\nv_add_u32 v14, v14, v15\nv_lshlrev_b32 v14, 2, v14\nv_add_u32 v14, s3, v14\nds_write_b32 v14, v9 offset:{CS+2048}")
    e("s_waitcnt lgkmcnt(0)\ns_barrier")
    e("s_and_b32 s3, s22, 3\ns_lshl_b32 s3, s3, 7\nv_add_u32 v14, s3, v13")
    for it in range(4): e(f"ds_read_b32 v{16+it}, v14 offset:{CS+512*it}")
    if center_right:
        e(f"v_lshlrev_b32 v15, 5, v1\nds_read_b128 v[20:23], v15 offset:{CS}\nds_read_b128 v[24:27], v15 offset:{CS+16}")
        e(f"s_lshr_b32 s3, s22, 2\ns_lshl_b32 s3, s3, 9\nv_lshrrev_b32 v15, 5, v1\nv_lshlrev_b32 v15, 6, v15\nv_add_u32 v15, s3, v15")
        for mt in range(4):
            for q in range(4): e(f"ds_read_b128 v[{84+16*(mt%2)+4*q}:{87+16*(mt%2)+4*q}], v15 offset:{CS+2048+128*mt+16*q}")
            if mt%2==1:
                e("s_waitcnt lgkmcnt(0)")
                for r in range(16):
                    if mt==1: e(f"v_add_f32 v{40+r}, v{84+r}, v{100+r}")
                    else: e(f"v_add_f32 v{84+r}, v{84+r}, v{100+r}\nv_add_f32 v{40+r}, v{40+r}, v{84+r}")
    e("s_waitcnt lgkmcnt(0)\ns_mov_b32 s3, 0x3c000000")
    e("v_add_f32 v8, v16, v17\nv_add_f32 v9, v18, v19\nv_add_f32 v8, v8, v9\nv_mul_f32 v8, s3, v8")
    if center_right:
        e("v_add_f32 v12, v20, v21")
        for k in range(2,8): e(f"v_add_f32 v12, v12, v{20+k}")
        allred32_f32(e,12,15)
        e("v_mov_b32 v15, v12\nv_permlane32_swap_b32 v12, v15\nv_add_f32 v12, v12, v15")
        e("v_mul_f32 v12, s3, v12\nv_mul_f32 v12, s3, v12\nv_sub_f32 v8, v8, v12")
        for r in range(16): e(f"v_fma_f32 v{40+r}, s3, v{40+r}, v8")
    e(f"s_mov_b32 s3, {scale:#x}")
    for r in range(16):
        a=ACC+r
        e(f"v_sub_f32 v{a}, v{a}, v{40+r}" if center_right else f"v_sub_f32 v{a}, v{a}, v8")
        if scale!=0x3f800000: e(f"v_mul_f32 v{a}, s3, v{a}")
    e(f"s_and_b32 s3, s22, 3\ns_lshl_b32 s3, s3, 13\ns_lshr_b32 s20, s22, 2\ns_lshl_b32 s20, s20, 11\ns_add_u32 s3, s3, s20\ns_add_u32 s3, s3, {OFF_W+woff}\nv_lshlrev_b32 v13, 4, v1\nv_add_u32 v13, s3, v13")
    for ee in range(2):
        for i in range(4): e(f"v_cvt_pk_bf16_f32 v{32+4*ee+i}, v{ACC+8*ee+2*i}, v{ACC+8*ee+2*i+1}")
        e(f"global_store_dwordx4 v13, v[{32+4*ee}:{35+4*ee}], s[4:5] offset:{ee*1024}")
    e("s_endpgm")
def rowaddr(e):
    e("""v_and_b32 v2, 0x13, v1
    v_bfe_u32 v3, v1, 2, 1
    v_lshl_or_b32 v2, v3, 3, v2
    v_bfe_u32 v3, v1, 3, 1
    v_lshl_or_b32 v2, v3, 2, v2
    v_lshlrev_b32 v3, 8, v2
    v_lshrrev_b32 v4, 5, v1
    v_lshl_add_u32 v3, v4, 4, v3""")
def two_srd(e,off):
    e(f"""s_load_dwordx4 s[8:11], s[0:1], {off}
    s_waitcnt lgkmcnt(0)
    s_mov_b32 s12, s8
    s_mov_b32 s13, s9
    s_mov_b32 s14, 32768
    s_mov_b32 s15, 0x20000
    s_mov_b32 s16, s10
    s_mov_b32 s17, s11
    s_mov_b32 s18, 32768
    s_mov_b32 s19, 0x20000""")
def stage(e,srd,ldsbase,r0):
    e(f"buffer_load_dwordx4 v[{r0}:{r0+3}], v90, {srd}, 0 offen\nbuffer_load_dwordx4 v[{r0+4}:{r0+7}], v91, {srd}, 0 offen")
def stage_addr(e):
    e("""v_lshlrev_b32 v90, 4, v0
    v_add_u32 v91, 16384, v90
    v_lshrrev_b32 v92, 4, v0
    v_and_b32 v93, 15, v92
    v_and_b32 v94, 15, v0
    v_xor_b32 v93, v93, v94
    v_lshlrev_b32 v93, 4, v93
    v_lshl_add_u32 v92, v92, 8, v93""")
def frag_addr(e,reg,tile_sreg):
    e(f"""v_and_b32 v2, 0x13, v1
    v_bfe_u32 v3, v1, 2, 1
    v_lshl_or_b32 v2, v3, 3, v2
    v_bfe_u32 v3, v1, 3, 1
    v_lshl_or_b32 v2, v3, 2, v2
    v_and_b32 v3, 15, v2
    v_lshrrev_b32 v4, 5, v1
    v_xor_b32 v{reg+1}, v3, v4
    v_lshlrev_b32 v{reg}, 8, v2
    v_add_u32 v{reg}, {tile_sreg}, v{reg}""")
def frag_read(e,dst,reg,es,base):
    e(f"v_xor_b32 v7, {2*es}, v{reg+1}\nv_lshl_add_u32 v7, v7, 4, v{reg}\nds_read_b128 v[{dst}:{dst+3}], v7 offset:{base}")
def role_wm(e):
    two_srd(e,32); stage_addr(e)
    stage(e,'s[12:15]',0,8); stage(e,'s[16:19]',32768,16)
    e("s_lshr_b32 s20, s22, 2\ns_lshl_b32 s20, s20, 13\ns_and_b32 s21, s22, 3\ns_lshl_b32 s21, s21, 13")
    frag_addr(e,56,'s20'); frag_addr(e,58,'s21')
    e("""s_waitcnt vmcnt(2)
    ds_write_b128 v92, v[8:11]
    ds_write_b128 v92, v[12:15] offset:16384
    s_waitcnt vmcnt(0)
    ds_write_b128 v92, v[16:19] offset:32768
    ds_write_b128 v92, v[20:23] offset:49152
    s_waitcnt lgkmcnt(0)
    s_barrier""")
    for es in range(8):
        frag_read(e,8+4*es,56,es,0); frag_read(e,84+4*es,58,es,32768)
        if es%4==3: e("s_waitcnt lgkmcnt(0)")
    e("s_barrier")
    for es in range(8):
        c="0" if es==0 else f"v[{ACC}:{ACC+15}]"
        e(f"v_mfma_f32_32x32x16_bf16 v[{ACC}:{ACC+15}], v[{8+4*es}:{11+4*es}], v[{84+4*es}:{87+4*es}], {c}")
        c="0" if es==0 else "v[40:55]"
        e(f"v_mfma_f32_32x32x16_bf16 v[40:55], v[{84+4*es}:{87+4*es}], v[{8+4*es}:{11+4*es}], {c}")
    sc=struct.unpack('<I',struct.pack('<f',1.4426950408889634/128**0.5))[0]
    w_finish(e,True,sc,0)
def role_wu(e):
    two_srd(e,48); stage_addr(e)
    stage(e,'s[12:15]',0,8); stage(e,'s[16:19]',32768,16)
    e("s_lshr_b32 s20, s22, 2\ns_lshl_b32 s20, s20, 13")
    frag_addr(e,56,'s20')
    e("""
    v_lshrrev_b32 v5, 5, v1
    v_lshlrev_b32 v5, 3, v5
    v_bfe_u32 v6, v1, 2, 2
    v_add_u32 v5, v5, v6
    v_lshlrev_b32 v5, 8, v5
    v_bfe_u32 v6, v1, 4, 1
    v_lshlrev_b32 v6, 4, v6
    v_and_b32 v7, 1, v1
    v_lshl_add_u32 v6, v7, 3, v6
    v_bfe_u32 v7, v1, 1, 1
    v_lshl_add_u32 v6, v7, 2, v6
    v_lshl_add_u32 v5, v6, 1, v5
    s_and_b32 s21, s22, 3
    s_lshl_b32 s21, s21, 6
    v_add_u32 v5, s21, v5
    s_waitcnt vmcnt(2)
    ds_write_b128 v92, v[8:11]
    ds_write_b128 v92, v[12:15] offset:16384
    s_waitcnt vmcnt(0)
    ds_write_b128 v90, v[16:19] offset:32768
    ds_write_b128 v91, v[20:23] offset:32768
    s_waitcnt lgkmcnt(0)
    s_barrier
    """)
    for es in range(8):
        frag_read(e,8+4*es,56,es,0)
        for jj in range(2):
            e(f"ds_read_b64_tr_b16 v[{84+4*es+2*jj}:{85+4*es+2*jj}], v5 offset:{32768+(16*es+4*jj)*256}")
        if es%4==3: e("s_waitcnt lgkmcnt(0)")
    e("s_barrier")
    for es in range(8):
        c="0" if es==0 else f"v[{ACC}:{ACC+15}]"
        e(f"v_mfma_f32_32x32x16_bf16 v[{ACC}:{ACC+15}], v[{8+4*es}:{11+4*es}], v[{84+4*es}:{87+4*es}], {c}")
    w_finish(e,False,0x3f800000,32768)
def role_sw(e,P):
    lg=struct.unpack('<I',struct.pack('<f',1.4426950408889634))[0]
    e(f"""
    s_load_dwordx2 s[8:9], s[0:1], 64       ; w_r
    v_mov_b32 v8, 0
    v_mov_b32 v9, 0
    v_mov_b32 v10, 0
    v_mov_b32 v11, 0
    v_lshlrev_b32 v2, 4, v0
    v_add_u32 v2, {OFF_FL}, v2
    s_waitcnt lgkmcnt(0)
    global_store_dwordx4 v2, v[8:11], s[4:5]
    s_cmp_lg_u32 s22, 0
    s_cbranch_scc1 {P}_SW2
    v_lshlrev_b32 v3, 2, v1
    global_load_dword v4, v3, s[8:9]
    s_waitcnt vmcnt(0)
    v_lshlrev_b32 v5, 16, v4
    v_and_b32 v6, 0xffff0000, v4
    v_add_f32 v7, v5, v6
    """)
    allred32_f32(e,7,12)
    e(f"""
    v_mov_b32 v12, v7
    v_permlane32_swap_b32 v7, v12
    v_add_f32 v7, v7, v12
    v_mul_f32 v7, 0x3c000000, v7
    v_sub_f32 v5, v5, v7
    v_sub_f32 v6, v6, v7
    v_mul_f32 v5, {lg:#x}, v5
    v_mul_f32 v6, {lg:#x}, v6
    v_cvt_pk_bf16_f32 v12, v5, v6
    v_lshlrev_b32 v13, 16, v12
    v_and_b32 v14, 0xffff0000, v12
    v_sub_f32 v5, v5, v13
    v_sub_f32 v6, v6, v14
    v_cvt_pk_bf16_f32 v13, v5, v6
    ds_write_b32 v3, v12 offset:256
    ds_write_b32 v3, v13 offset:512
    v_mov_b32 v12, 0x3f803f80
    v_mov_b32 v13, 0
    ds_write_b32 v3, v12
    ds_write_b32 v3, v13 offset:768
    {P}_SW2:
    s_waitcnt lgkmcnt(0)
    s_barrier
    s_cmp_ge_u32 s22, 8
    s_cbranch_scc1 {P}_END
    v_and_b32 v2, 3, v1
    v_lshlrev_b32 v2, 8, v2
    v_lshrrev_b32 v3, 5, v1
    v_lshl_add_u32 v2, v3, 4, v2
    s_lshl_b32 s3, s22, 5
    v_add_u32 v2, s3, v2
    ds_read_b128 v[8:11], v2
    v_bfe_u32 v3, v1, 4, 1
    v_bfe_u32 v4, v1, 2, 1
    v_cmp_eq_u32 vcc, v3, v4
    s_waitcnt lgkmcnt(0)
    v_cndmask_b32 v8, 0, v8, vcc
    v_cndmask_b32 v9, 0, v9, vcc
    v_cndmask_b32 v10, 0, v10, vcc
    v_cndmask_b32 v11, 0, v11, vcc
    s_lshl_b32 s3, s22, 10
    s_add_u32 s3, s3, {OFF_W+65536}
    v_lshlrev_b32 v2, 4, v1
    v_add_u32 v2, s3, v2
    global_store_dwordx4 v2, v[8:11], s[4:5]
    s_endpgm
    """)
def role_csr(e,P,MERGED=False):
    SC=' sc1' if MERGED else ''
    tstamp(e,0)
    if MERGED:
        e(f"""s_load_dwordx2 s[6:7], s[0:1], 80
        s_waitcnt lgkmcnt(0)
        s_cmp_lg_u32 s22, 0
        s_cbranch_scc1 {P}_W1
        s_cmp_lg_u32 s2, {NCH}
        s_cbranch_scc1 {P}_W2
        v_and_b32 v4, 3, v1
        v_lshlrev_b32 v4, 5, v4
        {P}_W0:
        global_load_dword v5, v4, s[6:7] sc1
        s_waitcnt vmcnt(0)
        v_cmp_gt_u32 vcc, {NCH//4}, v5
        s_cbranch_vccnz {P}_W0
        v_mov_b32 v4, 128
        v_mov_b32 v5, 1
        v_cmp_eq_u32 vcc, 0, v1
        s_and_saveexec_b64 s[30:31], vcc
        global_store_dword v4, v5, s[6:7] sc1
        s_mov_b64 exec, s[30:31]
        s_branch {P}_W1
        {P}_W2:
        v_mov_b32 v4, 128
        {P}_W3:
        global_load_dword v5, v4, s[6:7] sc1
        s_waitcnt vmcnt(0)
        v_cmp_eq_u32 vcc, 0, v5
        s_cbranch_vccnz {P}_W3
        {P}_W1:
        s_barrier""")
    tstamp(e,11)
    C1=0; C2=2560; CU=5120; OX=7680; WT=10240; ES=10496; ECAPB=16384
    e(f"""
    v_mov_b32 v3, 0
    v_lshlrev_b32 v4, 2, v0
    v_cmp_gt_u32 vcc, 640, v0
    s_and_saveexec_b64 s[30:31], vcc
    ds_write_b32 v4, v3 offset:{C1}
    ds_write_b32 v4, v3 offset:{C2}
    ds_write_b32 v4, v3 offset:{CU}
    s_mov_b64 exec, s[30:31]
    s_waitcnt lgkmcnt(0)
    s_add_u32 s8, s4, {OFF_OFFS}
    s_addc_u32 s9, s5, 0
    s_mov_b32 s10, {129*NCH*4}
    s_mov_b32 s11, 0x20000
    s_add_u32 s12, s4, {OFF_CH}
    s_addc_u32 s13, s5, 0
    s_mov_b32 s14, {EDG*4}
    s_mov_b32 s15, 0x20000
    s_add_u32 s16, s4, {OFF_ENT}
    s_addc_u32 s17, s5, 0
    s_mov_b32 s18, {ENT_BYTES}
    s_mov_b32 s19, 0x20000
    s_mul_i32 s3, s2, {NCH*4}
    v_lshlrev_b32 v5, 4, v1
    v_add_u32 v5, s22, v5                 ; seg
    v_cmp_gt_u32 vcc, {NCH}, v5
    v_cmp_gt_u32 s[32:33], 7, v1
    s_and_b64 vcc, vcc, s[32:33]
    v_lshlrev_b32 v6, 2, v5
    v_add_u32 v6, s3, v6
    v_mov_b32 v7, 0x7ffffff0
    s_nop 0
    v_cndmask_b32 v6, v7, v6, vcc
    buffer_load_dword v8, v6, s[8:11], 0 offen{SC}
    buffer_load_dword v9, v6, s[8:11], 0 offen offset:{NCH*4}{SC}
    v_lshlrev_b32 v10, 2, v1
    v_add_u32 v10, s3, v10
    buffer_load_dword v11, v10, s[8:11], 0 offen{SC}
    v_cmp_gt_u32 s[34:35], {NCH-64}, v1
    v_add_u32 v12, 256, v10
    v_cndmask_b32 v12, v7, v12, s[34:35]
    buffer_load_dword v12, v12, s[8:11], 0 offen{SC}
    s_waitcnt vmcnt(2)
    v_sub_u32 v9, v9, v8
    v_mul_u32_u24 v5, {CHE}, v5
    v_add_u32 v8, v8, v5
    """)
    tstamp(e,1)
    for i in range(7): e(f"v_readlane_b32 s{40+i}, v8, {i}\nv_readlane_b32 s{48+i}, v9, {i}")
    R=16
    for i in range(7):
        e(f"""v_add_u32 v13, s{40+i}, v1
        v_lshlrev_b32 v13, 2, v13
        v_cmp_gt_u32 vcc, s{48+i}, v1
        s_nop 1
        v_cndmask_b32 v13, v7, v13, vcc
        buffer_load_dword v{R+i}, v13, s[12:15], 0 offen{SC}""")
    e("s_waitcnt vmcnt(7)\nv_add_u32 v11, v11, v12")
    wave_scan(e,11)
    e("s_nop 1\nv_readlane_b32 s24, v11, 63\ns_barrier")
    tstamp(e,2)
    CI=24; RK=32; VL=40
    def decode(rec,ci,vl,t):
        e(f"""v_lshrrev_b32 v{ci}, 16, v{rec}
        v_and_b32 v{vl}, 0xffff, v{rec}
        v_cmp_le_u32 vcc, s28, v{vl}
        v_cmp_le_u32 s[36:37], s27, v{vl}
        v_mul_u32_u24 v{ci}, 3, v{ci}
        v_add_u32 v{t}, {BADD}, v{vl}
        v_subrev_u32 v{t+1}, {TH2}, v{vl}
        v_cndmask_b32 v{vl}, v{vl}, v{t}, vcc
        v_cndmask_b32 v{vl}, v{vl}, v{t+1}, s[36:37]
        v_addc_co_u32 v{ci}, vcc, 0, v{ci}, vcc
        v_addc_co_u32 v{ci}, vcc, 0, v{ci}, s[36:37]
        v_lshlrev_b32 v{ci}, 2, v{ci}""")
    e(f"v_mov_b32 v3, 1\ns_movk_i32 s27, {TH2}\ns_movk_i32 s28, {TH1}")
    for i in range(7):
        e(f"s_waitcnt vmcnt({6-i})")
        decode(R+i,CI+i,VL+i,14)
        e(f"""v_cmp_gt_u32 vcc, s{48+i}, v1
        s_and_saveexec_b64 s[30:31], vcc
        ds_add_rtn_u32 v{RK+i}, v{CI+i}, v3 offset:{C1}
        s_mov_b64 exec, s[30:31]""")
    def remainder(final):
        for i in range(7):
            L=e.lab(P+'RM'); Lx=e.lab(P+'RX')
            e(f"""s_cmp_le_u32 s{48+i}, 64
            s_cbranch_scc1 {Lx}
            s_mov_b32 s25, 64
            {L}:
            v_add_u32 v13, s25, v1
            v_cmp_gt_u32 vcc, s{48+i}, v13
            s_and_saveexec_b64 s[30:31], vcc
            s_cbranch_execz {L}_s
            v_add_u32 v13, s{40+i}, v13
            v_lshlrev_b32 v13, 2, v13
            buffer_load_dword v48, v13, s[12:15], 0 offen{SC}
            s_waitcnt vmcnt(0)""")
            decode(48,49,50,14)
            if not final: e(f"ds_add_u32 v49, v3 offset:{C2}")
            else:
                e(f"""ds_add_rtn_u32 v51, v49, v3 offset:{CU}
                ds_read_b32 v52, v49 offset:{OX}
                ds_read_b32 v53, v49 offset:{C1}
                s_waitcnt lgkmcnt(0)
                v_add3_u32 v51, v51, v52, v53
                v_lshlrev_b32 v51, 1, v51""")
                if final==2: e("v_add_u32 v51, s39, v51\nds_write_b16 v51, v50")
                else: e("buffer_store_short v50, v51, s[16:19], 0 offen")
            e(f"""{L}_s:
            s_mov_b64 exec, s[30:31]
            s_add_u32 s25, s25, 64
            s_cmp_lt_u32 s25, s{48+i}
            s_cbranch_scc1 {L}
            {Lx}:""")
    remainder(False)
    tstamp(e,3)
    e("s_waitcnt lgkmcnt(0)\ns_barrier")
    tstamp(e,4)
    e(f"""
    s_cmp_ge_u32 s22, 4
    s_cbranch_scc1 {P}_N1
    v_mul_u32_u24 v4, 12, v0
    ds_read_b32 v48, v4 offset:{C1}
    ds_read_b32 v49, v4 offset:{C1+4}
    ds_read_b32 v50, v4 offset:{C1+8}
    ds_read_b32 v51, v4 offset:{C2}
    ds_read_b32 v52, v4 offset:{C2+4}
    ds_read_b32 v53, v4 offset:{C2+8}
    v_cmp_gt_u32 vcc, 196, v0
    s_waitcnt lgkmcnt(0)
    """)
    for k in range(3):
        e(f"v_add_u32 v{48+k}, v{48+k}, v{51+k}\nv_cndmask_b32 v{48+k}, 0, v{48+k}, vcc\nv_add_u32 v{54+k}, 1, v{48+k}\nv_and_b32 v{54+k}, -2, v{54+k}")
    e("v_add3_u32 v57, v54, v55, v56\nv_mov_b32 v58, v57")
    wave_scan(e,58)
    e(f"""
    s_nop 1
    v_readlane_b32 s3, v58, 63
    s_lshl_b32 s25, s22, 2
    v_mov_b32 v59, s25
    v_mov_b32 v60, s3
    ds_write_b32 v59, v60 offset:{WT}
    {P}_N1:
    s_waitcnt lgkmcnt(0)
    s_barrier
    s_cmp_ge_u32 s22, 4
    s_cbranch_scc1 {P}_P2
    v_mov_b32 v59, 0
    ds_read_b128 v[60:63], v59 offset:{WT}
    v_sub_u32 v58, v58, v57
    s_mul_i32 s3, s2, 590
    s_add_u32 s3, s3, s24
    s_add_u32 s3, s3, 1
    s_and_b32 s26, s3, -2
    s_waitcnt lgkmcnt(0)
    v_readfirstlane_b32 s40, v60
    v_readfirstlane_b32 s41, v61
    v_readfirstlane_b32 s42, v62
    s_cmp_ge_u32 s22, 1
    s_cselect_b32 s40, s40, 0
    s_cmp_ge_u32 s22, 2
    s_cselect_b32 s41, s41, 0
    s_cmp_ge_u32 s22, 3
    s_cselect_b32 s42, s42, 0
    s_add_u32 s26, s26, s40
    s_add_u32 s26, s26, s41
    s_add_u32 s26, s26, s42
    v_add_u32 v64, s26, v58               ; offA
    v_add_u32 v65, v64, v54               ; offB
    v_add_u32 v66, v65, v55               ; offC
    v_add_u32 v67, v66, v56               ; end
    v_cmp_eq_u32 vcc, 0, v0
    s_and_saveexec_b64 s[30:31], vcc
    ds_write_b32 v59, v64 offset:{WT+16}
    s_mov_b64 exec, s[30:31]
    v_cmp_eq_u32 vcc, 195, v0
    s_and_saveexec_b64 s[30:31], vcc
    ds_write_b32 v59, v67 offset:{WT+20}
    s_mov_b64 exec, s[30:31]
    v_cmp_gt_u32 vcc, 196, v0
    s_and_saveexec_b64 s[30:31], vcc
    s_cbranch_execz {P}_N2
    ds_write_b32 v4, v64 offset:{OX}
    ds_write_b32 v4, v65 offset:{OX+4}
    ds_write_b32 v4, v66 offset:{OX+8}
    s_mul_i32 s3, s2, {196*16}
    v_lshlrev_b32 v5, 4, v0
    v_add_u32 v5, s3, v5
    v_add_u32 v6, {OFF_NOFF}, v5
    global_store_dwordx4 v6, v[64:67], s[4:5]
    v_lshrrev_b32 v54, 1, v54
    v_lshrrev_b32 v55, 1, v55
    v_lshrrev_b32 v56, 1, v56
    v_or3_b32 v71, v54, v55, v56
    v_lshrrev_b32 v71, 10, v71
    v_mov_b32 v68, v64
    v_lshl_or_b32 v69, v55, 10, v54
    v_lshl_or_b32 v69, v56, 20, v69
    v_min_u32 v55, 7, v55
    v_min_u32 v56, 7, v56
    v_min_u32 v54, 15, v54
    v_and_b32 v72, 1, v55
    v_sub_u32 v73, 7, v56
    v_cmp_eq_u32 vcc, 1, v72
    v_cndmask_b32 v56, v56, v73, vcc
    v_lshl_or_b32 v56, v55, 3, v56
    v_and_b32 v72, 1, v56
    v_sub_u32 v73, 15, v54
    v_cmp_eq_u32 vcc, 1, v72
    v_cndmask_b32 v54, v54, v73, vcc
    v_lshl_or_b32 v54, v56, 4, v54
    v_lshlrev_b32 v70, 2, v54
    v_add_u32 v6, {OFF_NINFO}, v5
    global_store_dwordx4 v6, v[68:71], s[4:5]
    """)
    e(f"""
    {P}_N2:
    s_mov_b64 exec, s[30:31]
    {P}_P2:
    s_waitcnt lgkmcnt(0)
    s_barrier
    """)
    tstamp(e,5)
    e(f"""
    v_mov_b32 v59, 0
    ds_read_b64 v[60:61], v59 offset:{WT+16}
    s_waitcnt lgkmcnt(0)
    v_readfirstlane_b32 s26, v60        ; EB
    v_readfirstlane_b32 s29, v61        ; end
    s_sub_u32 s38, s29, s26
    s_lshl_b32 s38, s38, 1              ; bytes
    s_cmp_gt_u32 s38, {ECAPB}
    s_cbranch_scc1 {P}_DIRECT
    """)
    e(f"s_lshl_b32 s39, s26, 1\ns_sub_u32 s39, {ES}, s39")
    for i in range(7):
        e(f"""v_cmp_gt_u32 vcc, s{48+i}, v1
        s_and_saveexec_b64 s[30:31], vcc
        ds_read_b32 v{R+i}, v{CI+i} offset:{OX}
        s_mov_b64 exec, s[30:31]""")
    e(f"""s_cmp_ge_u32 s22, 4
    s_cbranch_scc1 {P}_NP1
    v_cmp_gt_u32 vcc, 196, v0
    s_and_saveexec_b64 s[32:33], vcc
    s_cbranch_execz {P}_NP0
    v_mov_b32 v72, {ZSI}""")
    for k in range(3):
        e(f"""v_and_b32 v73, 1, v{48+k}
        v_cmp_eq_u32 vcc, 1, v73
        v_add_u32 v73, v{64+k}, v{48+k}
        v_lshlrev_b32 v73, 1, v73
        v_add_u32 v73, s39, v73
        s_and_saveexec_b64 s[30:31], vcc
        ds_write_b16 v73, v72
        s_mov_b64 exec, s[30:31]""")
    e(f"{P}_NP0:\ns_mov_b64 exec, s[32:33]\n{P}_NP1:\ns_waitcnt lgkmcnt(0)")
    for i in range(7):
        e(f"""v_add_u32 v13, v{R+i}, v{RK+i}
        v_lshlrev_b32 v13, 1, v13
        v_add_u32 v13, s39, v13
        v_cmp_gt_u32 vcc, s{48+i}, v1
        s_and_saveexec_b64 s[30:31], vcc
        ds_write_b16 v13, v{VL+i}
        s_mov_b64 exec, s[30:31]""")
    remainder(2)
    e(f"""s_waitcnt lgkmcnt(0)
    s_barrier
    v_lshlrev_b32 v4, 4, v0
    v_cmp_gt_u32 vcc, s38, v4
    s_and_saveexec_b64 s[30:31], vcc
    s_cbranch_execz {P}_END
    ds_read_b128 v[8:11], v4 offset:{ES}
    s_lshl_b32 s18, s29, 1
    s_lshl_b32 s3, s26, 1
    s_waitcnt lgkmcnt(0)
    buffer_store_dwordx4 v[8:11], v4, s[16:19], s3 offen
    """)
    tstamp(e,6)
    if TSK: e("s_waitcnt vmcnt(0)")
    tstamp(e,7)
    tdump(e,5,12)
    e(f"s_endpgm\n{P}_DIRECT:")
    e(f"""s_cmp_ge_u32 s22, 4
    s_cbranch_scc1 {P}_NQ1
    v_cmp_gt_u32 vcc, 196, v0
    s_and_saveexec_b64 s[32:33], vcc
    s_cbranch_execz {P}_NQ0
    v_mov_b32 v72, {ZSI}
    v_mov_b32 v74, 0x7ffffff0""")
    for k in range(3):
        e(f"""v_and_b32 v73, 1, v{48+k}
        v_cmp_eq_u32 vcc, 1, v73
        v_add_u32 v73, v{64+k}, v{48+k}
        v_lshlrev_b32 v73, 1, v73
        v_cndmask_b32 v73, v74, v73, vcc
        buffer_store_short v72, v73, s[16:19], 0 offen""")
    e(f"{P}_NQ0:\ns_mov_b64 exec, s[32:33]\n{P}_NQ1:")
    for i in range(7):
        e(f"""v_cmp_gt_u32 vcc, s{48+i}, v1
        s_and_saveexec_b64 s[30:31], vcc
        ds_read_b32 v{R+i}, v{CI+i} offset:{OX}
        s_mov_b64 exec, s[30:31]""")
    e("s_waitcnt lgkmcnt(0)\nv_mov_b32 v94, 0x7ffffff0")
    for i in range(7):
        e(f"""v_add_u32 v13, v{R+i}, v{RK+i}
        v_lshlrev_b32 v13, 1, v13
        v_cmp_gt_u32 vcc, s{48+i}, v1
        s_nop 1
        v_cndmask_b32 v13, v94, v13, vcc
        buffer_store_short v{VL+i}, v13, s[16:19], 0 offen""")
    remainder(True)
    e("s_endpgm")
XW=16
P_WM=128; P_WU=129; P_SW=130; P_X0=131; P_GRID=P_X0+(1563+XW-1)//XW
P_LDS=64*1024
def gen_prep():
    e=E(); head(e,P_GRID,'KP')
    e(f"""s_cmp_ge_u32 s2, {P_X0}
    s_cbranch_scc1 KP_X
    s_cmp_eq_u32 s2, {P_WM}
    s_cbranch_scc1 KP_WM
    s_cmp_eq_u32 s2, {P_WU}
    s_cbranch_scc1 KP_WU
    s_cmp_eq_u32 s2, {P_SW}
    s_cbranch_scc1 KP_SW
    s_cmp_ge_u32 s2, {NCH}
    s_cbranch_scc1 KP_CSR""")
    role_chunk(e,'KC',True)
    e("KP_CSR:"); role_csr(e,'KP',True)
    e("KP_X:"); role_x(e,'KP',P_X0,0,1563,XW,True,True)
    e("KP_SW:"); role_sw(e,'KP')
    e("KP_WM:"); role_wm(e)
    e("KP_WU:"); role_wu(e)
    e("KP_END:")
    return e.text(),128,88
K1_XWG0=103; K1_GRID=K1_XWG0+(1563+XW-1)//XW
K2_GRID=128
K1_LDS=64*1024; K2_LDS=28*1024
def gen_k1():
    e=E(); head(e,K1_GRID,'K1')
    e(f"s_cmp_ge_u32 s2, {K1_XWG0}\ns_cbranch_scc1 K1_X\ns_cmp_eq_u32 s2, 100\ns_cbranch_scc1 K1_WM\ns_cmp_eq_u32 s2, 101\ns_cbranch_scc1 K1_WU\ns_cmp_eq_u32 s2, 102\ns_cbranch_scc1 K1_SW")
    role_chunk(e,'K1')
    e("K1_X:"); role_x(e,'K1',K1_XWG0,0,1563,XW,True,True)
    e("K1_SW:"); role_sw(e,'K1')
    e("K1_WM:"); role_wm(e)
    e("K1_WU:"); role_wu(e)
    e("K1_END:")
    return e.text(),128,40
def gen_k2():
    e=E(); head(e,K2_GRID,'K2')
    role_csr(e,'K2')
    e("K2_END:")
    return e.text(),104,88
```

```python
from glib import E
from layout import *
from prep import wave_scan, OFF_NINFO
RXS=[18,18,20]; RB=[0,18,36]; RT=56
ASG=[2, 15, 14, 0, 0, 1, 14, 6, 11, 4, 7, 9, 5, 3, 10, 10, 0, 3, 0, 12, 7, 13, 5, 12, 8, 9, 2, 5, 8, 3, 4, 13, 2, 15, 4, 1, 11, 6, 12, 8, 13, 11, 10, 7, 15, 9, 6, 1, 14]
BUF0=0; ZS=ZSA; STG=BUF1; DUMP=STG+25088
ECAP=131072; SA=131072; SB=SA+12544; HIST=SB+12544; MISC=HIST+4096
DP=MISC+128
SLOWF=MISC+132
BMAX=MISC+256
K3_LDS=BMAX+1024
FL_XC=OFF_FL+8192
def gen_k3(NH=7, TS=False, PD=2, FORCE_SLOW=False, FORCE_SLOWSYNC=False, DBG=False, GATE=True, TMODE=0, EXP=''):
    e=E()
    vL=2; vD=6; v16=10; vC=11; ACC=12; AC=28; DAT=32; TMP=56; CD=64; CO=68; IDX=72; NV=128
    ool=[]
    def stamp(idx):
        if not TS: return
        e(f"s_memtime s[62:63]\ns_waitcnt lgkmcnt(0)\ns_sub_u32 s{76+idx}, s62, s60")
    def pstamp(idx):
        if TS!=2: return
        e(f"s_memtime s[62:63]\ns_waitcnt lgkmcnt(0)\ns_sub_u32 s{82+idx}, s62, s60")
    def entdma(ks):
        for k in ks:
            e(f"s_add_u32 m0, s56, {k*16384}\ns_add_u32 s3, s50, {k*16384}\nbuffer_load_dwordx4 v{v16}, s[12:15], s3 offen lds")
    def hstamp(idx):
        if TS!=1: return
        lab=e.lab('HS')
        e(f"s_cmp_lg_u32 s68, 3\ns_cbranch_scc1 {lab}\ns_memtime s[62:63]\ns_waitcnt lgkmcnt(0)\ns_sub_u32 s{82+idx}, s62, s60\n{lab}:")
    e(f"""
    s_cmp_ge_u32 s2, 256
    s_cbranch_scc1 K3_END
    s_load_dwordx2 s[4:5], s[0:1], 88
    s_load_dwordx2 s[6:7], s[0:1], 24
    s_memtime s[60:61]
    s_and_b32 s20, s2, 7
    s_lshl_b32 s20, s20, 2
    s_lshr_b32 s3, s2, 3
    s_and_b32 s3, s3, 3
    s_add_u32 s20, s20, s3          ; g
    s_lshr_b32 s21, s2, 5           ; p
    v_lshrrev_b32 v{TMP}, 6, v0
    v_and_b32 v1, 63, v0
    s_getreg_b32 s44, hwreg(HW_REG_XCC_ID, 0, 4)
    v_readfirstlane_b32 s22, v{TMP}   ; wave
    s_mul_i32 s41, s21, {PN}
    s_waitcnt lgkmcnt(0)
    s_lshl_b32 s3, s20, 6
    s_add_u32 s45, s3, {FL_XC}
    s_lshl_b32 s3, s21, 2
    s_add_u32 s3, s3, s45
    s_add_u32 s44, s44, 1
    v_mov_b32 v2, s3
    v_mov_b32 v3, s44
    v_cmp_eq_u32 vcc, 0, v0
    s_and_saveexec_b64 s[30:31], vcc
    s_cbranch_execz K3_X1
    global_store_dword v2, v3, s[4:5] sc1
    K3_X1:
    s_mov_b64 exec, s[30:31]
    s_add_u32 s8, s4, {OFF_NOFF}
    s_addc_u32 s9, s5, 0
    s_mov_b32 s10, {25088*16}
    s_mov_b32 s11, 0x20000
    s_mov_b32 s16, s6
    s_mov_b32 s17, s7
    s_mov_b32 s18, {N*2}
    s_mov_b32 s19, 0x20000
    v_mov_b32 v2, s41
    v_lshlrev_b32 v2, 4, v2
    buffer_load_dword v4, v2, s[8:11], 0 offen
    v_add_u32 v3, {3135*16+12}, v2
    buffer_load_dword v5, v3, s[8:11], 0 offen
    v_add_u32 v2, s41, v0
    v_lshlrev_b32 v2, 4, v2
    v_add_u32 v3, 16384, v2
    v_add_u32 v6, 32768, v2
    v_add_u32 v7, 49152, v2
    s_add_u32 s12, s4, {OFF_NINFO}
    s_addc_u32 s13, s5, 0
    s_mov_b32 s14, {25088*16}
    s_mov_b32 s15, 0x20000
    buffer_load_dwordx4 v[12:15], v2, s[12:15], 0 offen
    buffer_load_dwordx4 v[16:19], v3, s[12:15], 0 offen
    buffer_load_dwordx4 v[20:23], v6, s[12:15], 0 offen
    buffer_load_dwordx4 v[24:27], v7, s[12:15], 0 offen
    s_mov_b32 s42, {PN}
    s_cmp_eq_u32 s21, 7
    s_cselect_b32 s42, {N-7*PN}, s42
    v_lshlrev_b32 v{TMP}, 1, v0
    v_add_u32 v{TMP+1}, 2048, v{TMP}
    """)
    for t in range(2):
        e(f"""
        v_add_u32 v{TMP+2}, s41, v{TMP+t}
        v_lshlrev_b32 v{CO+t}, 3, v{TMP+2}
        v_lshlrev_b32 v{TMP+2}, 1, v{TMP+2}
        v_cmp_gt_u32 vcc, s42, v{TMP+t}
        v_mov_b32 v{TMP+3}, 0x7ffffff0
        s_nop 0
        v_cndmask_b32 v{CO+t}, v{TMP+3}, v{CO+t}, vcc
        v_cndmask_b32 v{TMP+2}, v{TMP+3}, v{TMP+2}, vcc
        buffer_load_dword v{CD+2*t}, v{TMP+2}, s[16:19], 0 offen
        """)
    e(f"""
    """)
    if 'notouch' not in EXP: e(f"""
    s_add_u32 s3, s20, 32
    s_mul_i32 s3, s3, {TS_STRIDE}
    s_lshl_b32 s28, s41, 3
    s_add_u32 s3, s3, s28
    v_lshlrev_b32 v{TMP+2}, 7, v0
    v_add_u32 v{TMP+2}, s3, v{TMP+2}
    v_cmp_gt_u32 vcc, 196, v0
    v_mov_b32 v{TMP+3}, 0x7ffffff0
    s_add_u32 s52, s4, {OFF_G}
    s_addc_u32 s53, s5, 0
    s_mov_b32 s54, {2*32*TS_STRIDE}
    s_mov_b32 s55, 0x20000
    v_cndmask_b32 v{TMP+2}, v{TMP+3}, v{TMP+2}, vcc
    buffer_load_dword v{TMP+3}, v{TMP+2}, s[52:55], 0 offen
    """)
    e(f"""
    """)
    if 'touch0' in EXP:
        e(f"v_subrev_u32 v{TMP+2}, {32*TS_STRIDE}, v{TMP+2}\nbuffer_load_dword v{TMP+3}, v{TMP+2}, s[52:55], 0 offen")
    e(f"""
    v_lshlrev_b32 v6, 2, v0
    v_mov_b32 v7, 0
    v_add_u32 v6, {HIST}, v6
    ds_write_b32 v6, v7
    v_mov_b32 v8, {SLOWF}
    ds_write_b32 v8, v7
    v_mov_b32 v7, {ZSI|(ZSI<<16)}
    v_mov_b32 v8, {DP}
    ds_write_b32 v8, v7
    v_lshlrev_b32 v{v16}, 4, v1
    s_waitcnt lgkmcnt(0)
    s_barrier
    s_waitcnt vmcnt({6+(0 if 'notouch' in EXP else 1)+(1 if 'touch0' in EXP else 0)})
    v_readfirstlane_b32 s46, v4
    v_readfirstlane_b32 s47, v5
    s_add_u32 s12, s4, {OFF_ENT}
    s_addc_u32 s13, s5, 0
    s_mov_b32 s15, 0x20000
    s_sub_u32 s48, s47, s46
    s_lshl_b32 s48, s48, 1            ; bytes
    s_lshl_b32 s14, s47, 1
    s_cmp_gt_u32 s48, {ECAP}
    s_cselect_b32 s49, 1, 0
    s_cselect_b32 s14, 0, s14
    s_lshl_b32 s50, s46, 1
    s_lshl_b32 s56, s22, 10
    s_add_u32 s50, s50, s56
    """)
    stamp(0)
    KEY=28; RNK=32; PKA=36; PKB=40
    e(f"v_mov_b32 v44, 0\nv_mov_b32 v45, 1\ns_mov_b32 s51, {HIST}\nv_cmp_gt_u32 s[52:53], 64, v0")
    for r in range(4):
        e(f"s_waitcnt vmcnt({(3-r)+2+(0 if 'notouch' in EXP else 1)+(1 if 'touch0' in EXP else 0)})")
        b=12+4*r
        if r==3: e(f"v_cndmask_b32 v{b+3}, 0, v{b+3}, s[52:53]")
        e(f"""v_or_b32 v44, v44, v{b+3}
        v_subrev_u32 v49, s46, v{b}
        v_lshlrev_b32 v49, 12, v49
        v_add_u32 v50, {1024*r}, v0
        v_or_b32 v{PKA+r}, v49, v50
        v_mov_b32 v{PKB+r}, v{b+1}
        v_add_u32 v{KEY+r}, s51, v{b+2}""")
        if r==3: e("s_mov_b64 s[30:31], exec\ns_mov_b64 exec, s[52:53]\ns_cbranch_execz K3_H3")
        e(f"ds_add_rtn_u32 v{RNK+r}, v{KEY+r}, v45")
        if r==3: e("K3_H3:\ns_mov_b64 exec, s[30:31]")
    entdma((0,1))
    pstamp(0)
    e(f"""
    v_cmp_ne_u32 vcc, 0, v44
    s_cmp_lg_u64 vcc, 0
    s_cselect_b32 s3, 1, 0
    s_or_b32 s49, s49, s3
    s_waitcnt lgkmcnt(0)
    s_barrier
    """)
    pstamp(1)
    entdma((2,3))
    e(f"""
    v_lshlrev_b32 v6, 2, v0
    v_add_u32 v6, {HIST}, v6
    ds_read_b32 v7, v6
    s_waitcnt lgkmcnt(0)
    v_mov_b32 v8, v7
    """)
    wave_scan(e,8,9)
    e(f"""
    s_nop 1
    v_readlane_b32 s3, v8, 63
    s_lshl_b32 s28, s22, 2
    s_add_u32 s28, s28, {MISC}
    v_mov_b32 v9, s28
    v_mov_b32 v46, s3
    ds_write_b32 v9, v46
    s_waitcnt lgkmcnt(0)
    s_barrier
    """)
    entdma((4,5))
    e(f"""
    v_lshlrev_b32 v9, 2, v1
    v_add_u32 v9, {MISC}, v9
    v_cmp_gt_u32 vcc, 16, v1
    v_mov_b32 v46, 0
    s_and_saveexec_b64 s[30:31], vcc
    ds_read_b32 v46, v9
    s_mov_b64 exec, s[30:31]
    s_waitcnt lgkmcnt(0)
    v_cmp_gt_u32 vcc, s22, v1
    s_nop 1
    v_cndmask_b32 v46, 0, v46, vcc
    """)
    wave_scan(e,46,47)
    e(f"""
    s_nop 1
    v_readlane_b32 s3, v46, 63
    v_sub_u32 v8, v8, v7
    v_add_u32 v8, s3, v8
    ds_write_b32 v6, v8
    s_waitcnt lgkmcnt(0)
    s_barrier
    """)
    pstamp(2)
    entdma((6,7))
    for r in range(3): e(f"ds_read_b32 v{12+r}, v{KEY+r}")
    e("s_mov_b64 s[30:31], exec\ns_mov_b64 exec, s[52:53]\ns_cbranch_execz K3_H4a\nds_read_b32 v15, v31\nK3_H4a:\ns_mov_b64 exec, s[30:31]\ns_waitcnt lgkmcnt(0)")
    for r in range(4):
        if r==3: e("s_mov_b64 s[30:31], exec\ns_mov_b64 exec, s[52:53]\ns_cbranch_execz K3_H4")
        e(f"""v_add_u32 v46, v{12+r}, v{RNK+r}
        v_lshlrev_b32 v47, 2, v46
        v_add_u32 v47, {SA}, v47
        ds_write_b32 v47, v{PKA+r}
        ds_write_b32 v47, v{PKB+r} offset:12544
""")
        if r==3: e("K3_H4:\ns_mov_b64 exec, s[30:31]")
    pstamp(3)
    e(f"""
    s_cmp_eq_u32 s49, 0
    s_cbranch_scc1 K3_NOSF
    v_mov_b32 v46, {SLOWF}
    v_mov_b32 v47, 1
    ds_write_b32 v46, v47
    K3_NOSF:
    s_waitcnt vmcnt(0) lgkmcnt(0)
    s_barrier
    """)
    stamp(1)
    wb=[[] for _ in range(16)]
    for bi,w in enumerate(ASG): wb[w].append(bi)
    e("s_mov_b32 s3, 0")
    for w in range(16):
        nb=len(wb[w]); lst=[0]*(4-nb)+wb[w]
        val=nb|(lst[0]<<4)|(lst[1]<<10)|(lst[2]<<16)|(lst[3]<<22)
        e(f"s_cmp_eq_u32 s22, {w}\ns_cselect_b32 s3, {val:#x}, s3")
    e("""s_and_b32 s39, s3, 15
    s_sub_u32 s38, 4, s39
    s_bfe_u32 s28, s3, 0x60004
    s_bfe_u32 s29, s3, 0x6000a
    s_bfe_u32 s30, s3, 0x60010
    s_bfe_u32 s31, s3, 0x60016""")
    QA=32; QP=36
    BM=12
    for s in range(4):
        e(f"s_lshl_b32 s3, s{28+s}, 8\ns_add_u32 s3, s3, {SA}\nv_lshl_add_u32 v46, v1, 2, s3\nds_read_b32 v{QA+s}, v46\nds_read_b32 v{QP+s}, v46 offset:12544")
        pass
    e("s_waitcnt lgkmcnt(0)")
    for s in range(3):
        lab=e.lab('IV')
        e(f"s_cmp_le_u32 s38, {s}\ns_cbranch_scc1 {lab}\nv_mov_b32 v{QP+s}, 0\nv_mov_b32 v{QA+s}, 0xfff\n{lab}:")
    CNT=40
    for s in range(4):
        e(f"v_and_b32 v{CNT+s}, 0x3ff, v{QP+s}\nv_bfe_u32 v{CNT+4+s}, v{QP+s}, 10, 10\nv_bfe_u32 v{CNT+8+s}, v{QP+s}, 20, 10")
    for s_ in range(4): e(f"v_lshl_or_b32 v{BM+s_}, v{CNT+4+s_}, 16, v{CNT+s_}")
    e(f"v_lshl_or_b32 v{BM+4}, v{CNT+9}, 16, v{CNT+8}\nv_lshl_or_b32 v{BM+5}, v{CNT+11}, 16, v{CNT+10}")
    for s_ in range(4):
        if s_<3: e(f"s_cmp_le_u32 s38, {s_}\ns_cselect_b32 s{52+s_}, 0x00010001, 0")
        else: e("s_mov_b32 s55, 0x00010001")
    e("s_pack_ll_b32_b16 s56, s52, s53\ns_pack_ll_b32_b16 s57, s54, s55")
    for w in range(6): e(f"v_pk_max_u16 v{BM+w}, v{BM+w}, s{52+w}")
    for ctl in ("row_shr:1 row_mask:0xf bank_mask:0xf bound_ctrl:0","row_shr:2 row_mask:0xf bank_mask:0xf bound_ctrl:0","row_shr:4 row_mask:0xf bank_mask:0xf bound_ctrl:0","row_shr:8 row_mask:0xf bank_mask:0xf bound_ctrl:0","row_bcast:15 row_mask:0xa bank_mask:0xf","row_bcast:31 row_mask:0xc bank_mask:0xf"):
        for w in range(6): e(f"v_mov_b32 v{BM+6+w}, 0" if 'bcast' in ctl else "")
        for w in range(6): e(f"v_mov_b32_dpp v{BM+6+w}, v{BM+w} {ctl}")
        for w in range(6): e(f"v_pk_max_u16 v{BM+w}, v{BM+w}, v{BM+6+w}")
    for w in range(6): e(f"v_readlane_b32 s{52+w}, v{BM+w}, 63")
    pstamp(4)
    e("s_or_b32 s3, s52, s53\ns_or_b32 s3, s3, s54\ns_or_b32 s3, s3, s55\ns_or_b32 s3, s3, s56\ns_or_b32 s3, s3, s57\ns_and_b32 s3, s3, 0xffe0ffe0\ns_cselect_b32 s3, 1, 0\ns_or_b32 s49, s49, s3")
    packs=[("s_pack_ll_b32_b16 s64, s52, s54","s_pack_ll_b32_b16 s65, s53, s55"),
           ("s_pack_hh_b32_b16 s64, s52, s54","s_pack_hh_b32_b16 s65, s53, s55"),
           ("s_pack_ll_b32_b16 s64, s56, s57","s_pack_hh_b32_b16 s65, s56, s57")]
    for X in range(3):
        e(packs[X][0]); e(packs[X][1])
        e(f"""s_lshl_b32 s65, s65, 8
        s_or_b32 s64, s64, s65
        s_mul_i32 s64, s64, 0x01010101
        s_lshr_b32 s{32+X}, s64, 24
        s_add_u32 s64, s64, 0x1f1f1f1f
        s_mov_b32 s{35+X}, 0
        s_bitset1_b32 s{35+X}, s64
        s_lshr_b32 s65, s64, 8
        s_bitset1_b32 s{35+X}, s65
        s_lshr_b32 s65, s64, 16
        s_bitset1_b32 s{35+X}, s65
        s_lshr_b32 s65, s64, 24
        s_bitset1_b32 s{35+X}, s65
        s_cmp_gt_u32 s{32+X}, {RXS[X]}
        s_cselect_b32 s3, 1, 0
        s_or_b32 s49, s49, s3""")
    e("s_lshl_b32 s56, s22, 10")
    if FORCE_SLOW: e("s_mov_b32 s49, 1")
    e(f"""
    s_cmp_eq_u32 s49, 0
    s_cbranch_scc1 K3_NOSF2
    v_mov_b32 v52, {SLOWF}
    v_mov_b32 v53, 1
    ds_write_b32 v52, v53
    K3_NOSF2:
    """)
    pstamp(5)
    for b in range(4):
        e(f"""v_and_b32 v{vL+b}, 0xfff, v{QA+b}
        v_add_u32 v{vD+b}, s41, v{vL+b}
        v_lshlrev_b32 v{vD+b}, 1, v{vD+b}
        v_cmp_eq_u32 vcc, 0xfff, v{vL+b}
        v_mov_b32 v52, 0x7ffffff0
        s_nop 0
        v_cndmask_b32 v{vD+b}, v{vD+b}, v52, vcc
        buffer_load_ushort v{vD+b}, v{vD+b}, s[16:19], 0 offen""")
    for s_ in range(4): e(f"v_lshrrev_b32 v{28+s_}, 12, v{QA+s_}\nv_lshlrev_b32 v{28+s_}, 1, v{28+s_}")
    e(f"v_mov_b32 v60, {DP}\nv_mov_b32 v61, {ZSI|(ZSI<<16):#x}")
    pstamp(6)
    QAd=[54,55,56,57]; QEn=[62,63,64,65]
    QEn=[12,13,14,15]; QAd=[16,17,18,19]; CAa=[20,21]; CE=22; TT=23
    for X in range(3):
        for s_ in range(4):
            e(f"v_mov_b32 v{QAd[s_]}, v{28+s_}\nv_lshl_add_u32 v{28+s_}, v{CNT+4*X+s_}, 2, v{28+s_}\nv_mov_b32 v{QEn[s_]}, v{28+s_}")
        def shift():
            t=""
            for s_ in range(3): t+=f"v_mov_b32 v{QAd[s_]}, v{QAd[s_+1]}\nv_mov_b32 v{QEn[s_]}, v{QEn[s_+1]}\n"
            return t
        for s_ in range(3):
            lab=e.lab('IS'); e(f"s_cmp_le_u32 s38, {s_}\ns_cbranch_scc1 {lab}\n"+shift()+f"{lab}:")
        e(f"v_mov_b32 v{CAa[0]}, v{QAd[0]}\nv_mov_b32 v{CE}, v{QEn[0]}")
        for r in range(RXS[X]):
            ca=CAa[r%2]; cn=CAa[(r+1)%2]
            up=f"BU_{X}_{r}"; bk=f"BB_{X}_{r}"
            e(f"""v_cmp_lt_u32 vcc, v{ca}, v{CE}
            s_bitcmp1_b32 s{35+X}, {r}
            v_add_u32 v{cn}, 4, v{ca}
            v_cndmask_b32 v{TT}, v60, v{ca}, vcc
            ds_read_b32 v{IDX+RB[X]+r}, v{TT}
            s_cbranch_scc1 {up}
            {bk}:""")
            nxt=f"BF_{X}_{r+1}"
            ool.append(f"{up}:\ns_cmp_le_u32 s{32+X}, {r+1}\ns_cbranch_scc1 {nxt}\n"+shift()+f"v_mov_b32 v{cn}, v{QAd[0]}\nv_mov_b32 v{CE}, v{QEn[0]}\ns_branch {bk}\n")
            if r%8==7: e("s_waitcnt lgkmcnt(4)")
        e(f"s_branch BF_{X}_{RXS[X]}")
        fill=""
        for r in range(1,RXS[X]): fill+=f"BF_{X}_{r}:\nv_mov_b32 v{IDX+RB[X]+r}, v61\n"
        e(fill+f"BF_{X}_{RXS[X]}:")
        pstamp(7+X)
    e(f"""s_waitcnt lgkmcnt(0)
    s_barrier
    v_mov_b32 v52, {SLOWF}
    ds_read_b32 v53, v52
    s_waitcnt lgkmcnt(0)
    v_readfirstlane_b32 s49, v53
    s_cmp_eq_u32 s49, 0
    s_cbranch_scc1 K3_SETUP2
    s_waitcnt vmcnt(0)""")
    e("K3_SLOWSETUP:")
    for s in range(4):
        e(f"s_add_u32 s3, s22, {16*s}\ns_lshl_b32 s3, s3, 6\nv_add_u32 v{vL+s}, s3, v1\nv_cmp_gt_u32 vcc, {PN}, v{vL+s}\nv_mov_b32 v46, 0xfff\ns_nop 0\nv_cndmask_b32 v{vL+s}, v46, v{vL+s}, vcc")
    for b in range(4):
        e(f"""v_add_u32 v{vD+b}, s41, v{vL+b}
        v_lshlrev_b32 v{vD+b}, 1, v{vD+b}
        v_cmp_eq_u32 vcc, 0xfff, v{vL+b}
        v_mov_b32 v52, 0x7ffffff0
        s_nop 0
        v_cndmask_b32 v{vD+b}, v{vD+b}, v52, vcc
        buffer_load_ushort v{vD+b}, v{vD+b}, s[16:19], 0 offen""")
    e("K3_SETUP2:")
    if DBG:
        lab=e.lab('DG')
        e(f"s_cmp_lg_u32 s2, 0\ns_cbranch_scc1 {lab}\ns_mul_i32 s3, s22, {64*256}\ns_add_u32 s3, s3, {OFF_DBG+4096}\nv_lshlrev_b32 v58, 2, v1\nv_add_u32 v58, s3, v58")
        for r in range(RT): e(f"global_store_dword v58, v{IDX+r}, s[4:5] offset:0\nv_add_u32 v58, 256, v58")
        for s_ in range(4): e(f"global_store_dword v58, v{vL+s_}, s[4:5]\nv_add_u32 v58, 256, v58")
        for k in range(8): e(f"v_writelane_b32 v60, s{32+k}, {k}")
        e(f"v_writelane_b32 v60, s49, 8\nv_writelane_b32 v60, s46, 9\nv_writelane_b32 v60, s48, 10")
        e(f"global_store_dword v58, v60, s[4:5]\ns_waitcnt vmcnt(0)\n{lab}:")
    stamp(2)
    for b in range(4):
        e(f"""v_cmp_eq_u32 vcc, 0xfff, v{vL+b}
        v_lshlrev_b32 v{vL+b}, 3, v{vL+b}
        v_add_u32 v{vL+b}, {STG}, v{vL+b}
        v_mov_b32 v{TMP+1}, {DUMP}
        v_cndmask_b32 v{vL+b}, v{vL+b}, v{TMP+1}, vcc""")
    e(f"""
    v_and_b32 v70, 7, v1
    v_lshlrev_b32 v70, 2, v70
    v_add_u32 v70, s45, v70
    global_load_dword v71, v70, s[4:5] sc1
    s_mov_b32 s50, 2
    s_waitcnt vmcnt(1)
    """)
    for b in range(4): e(f"v_lshlrev_b32 v{vD+b}, 16, v{vD+b}")
    for t in range(2): e(f"v_and_b32 v{CD+2*t+1}, 0xffff0000, v{CD+2*t}\nv_lshlrev_b32 v{CD+2*t}, 16, v{CD+2*t}")
    e(f"""
    v_lshrrev_b32 v{TMP}, 4, v1
    v_bfe_u32 v{TMP+1}, v1, 2, 2
    v_and_b32 v{TMP+2}, 1, v1
    v_lshlrev_b32 v{TMP+2}, 4, v{TMP+2}
    v_mov_b32 v{TMP+3}, 0x3f80
    v_lshlrev_b32 v{TMP+3}, v{TMP+2}, v{TMP+3}
    v_cmp_eq_u32 vcc, v{TMP}, v{TMP+1}
    s_nop 1
    v_cndmask_b32 v{TMP+3}, 0, v{TMP+3}, vcc
    v_bfe_u32 v{TMP+2}, v1, 1, 1
    v_cmp_eq_u32 vcc, 0, v{TMP+2}
    v_mov_b32 v{TMP+4}, 0
    s_nop 0
    v_cndmask_b32 v{AC}, 0, v{TMP+3}, vcc
    v_cndmask_b32 v{AC+1}, v{TMP+3}, v{TMP+4}, vcc
    v_mov_b32 v{AC+2}, v{AC}
    v_mov_b32 v{AC+3}, v{AC+1}
    v_lshlrev_b32 v{vC}, 4, v0
    v_add_u32 v{vC}, {STG}, v{vC}
    v_lshlrev_b32 v{TMP+6}, 7, v0
    s_lshl_b32 s3, s41, 3
    v_add_u32 v{TMP+6}, s3, v{TMP+6}
    v_cmp_gt_u32 vcc, 196, v0
    v_mov_b32 v{TMP+5}, 0x7ffffff0
    s_nop 0
    v_cndmask_b32 v{TMP+6}, v{TMP+5}, v{TMP+6}, vcc
    s_lshl_b32 s3, s20, 8
    s_add_u32 s66, s3, {OFF_FL}
    s_lshl_b32 s3, s21, 5
    s_add_u32 s67, s66, s3
    s_mov_b32 s11, 0x20000
    s_mov_b32 s15, 0x20000
    s_mov_b32 s27, 0x20000
    s_mov_b32 s10, {TS_STRIDE}
    s_mov_b32 s14, {N*8}
    s_mov_b32 s26, {N*8}
    s_mov_b32 s23, 0
    s_lshl_b32 s56, s22, 10
    s_mov_b32 s51, 0xffff0000
    v_mov_b32 v{TMP}, {ZS}
    v_mov_b32 v{TMP+2}, 0
    v_mov_b32 v{TMP+3}, 0
    ds_write_b64 v{TMP}, v[{TMP+2}:{TMP+3}]
    s_waitcnt lgkmcnt(0)
    """)
    stamp(3)
    e("K3_HOP:")
    if TS: e("s_mov_b32 s68, s23")
    e(f"""
    s_and_b32 s69, s23, 1
    s_lshl_b32 s3, s69, 5
    s_add_u32 s3, s3, s20
    s_mul_i32 s3, s3, {TS_STRIDE}
    s_add_u32 s8, s4, s3
    s_addc_u32 s9, s5, 0
    s_xor_b32 s69, s69, 1
    s_lshl_b32 s3, s69, 5
    s_add_u32 s3, s3, s20
    s_mul_i32 s3, s3, {TS_STRIDE}
    s_add_u32 s12, s4, s3
    s_addc_u32 s13, s5, 0
    s_add_u32 s3, s23, 1
    s_lshl_b32 s3, s3, 5
    s_add_u32 s3, s3, s20
    s_mul_i32 s3, s3, {TS_STRIDE}
    s_add_u32 s3, s3, {OFF_T}
    s_add_u32 s24, s4, s3
    s_addc_u32 s25, s5, 0
    s_cmp_lg_u32 s49, 0
    s_cbranch_scc1 K3_SLOWHOP
    """)
    def dma(goff, nins, ldsbase):
        rounds=(nins+15)//16
        for r in range(rounds):
            lab=None
            if (r+1)*16>nins:
                lab=e.lab('DS'); e(f"s_cmp_ge_u32 s22, {nins-r*16}\ns_cbranch_scc1 {lab}")
            e(f"s_lshl_b32 s3, s22, 10\ns_add_u32 m0, s3, {ldsbase+r*16384}\ns_add_u32 s3, s3, {goff+r*16384}\nbuffer_load_dwordx4 v{v16}, s[8:11], s3 offen sc1 lds")
            if lab: e(f"{lab}:")
    hstamp(0)
    dma(0,NA,BUF0)
    for i in range(16): e(f"v_mov_b32 v{ACC+i}, 0")
    def issue(X,g):
        s=g%(PD+1); out=[]
        for k in range(2):
            rr=IDX+RB[X]+2*g+k
            out.append(f"v_lshlrev_b32_sdwa v{TMP+2*k}, 3, v{rr} dst_sel:DWORD dst_unused:UNUSED_PAD src0_sel:DWORD src1_sel:WORD_0")
            if 'halfsdwa' not in EXP: out.append(f"v_lshlrev_b32_sdwa v{TMP+2*k+1}, 3, v{rr} dst_sel:DWORD dst_unused:UNUSED_PAD src0_sel:DWORD src1_sel:WORD_1")
        for k in range(2):
            d=DAT+8*s+4*k
            out.append(f"ds_read_b64 v[{d}:{d+1}], v{TMP+2*k}")
            out.append(f"ds_read_b64 v[{d+2}:{d+3}], v{TMP+2*k+1}")
        return out
    def dma1(k,goff,ldsbase,nins=None):
        return [f"s_add_u32 m0, s56, {ldsbase+k*16384}",f"s_add_u32 s3, s56, {goff+k*16384}",f"buffer_load_dwordx4 v{v16}, s[8:11], s3 offen sc1 lds"]
    def phase(X):
        RX=RXS[X]; NG=RX//2
        nd={0:(TH1*8,BUF1,NB),1:(TH2*8,BUF0,NC)}.get(X)
        e(f"s_mov_b32 s54, s{35+X}")
        if 'prio' in EXP: e("s_setprio 3")
        for g in range(PD): e("\n".join(issue(X,g)))
        if nd:
            rem=nd[2]-64
            lab=e.lab('DR'); e(f"s_cmp_ge_u32 s22, {rem}\ns_cbranch_scc1 {lab}\n"+"\n".join(dma1(4,*nd))+f"\n{lab}:")
        def mfma(b,r):
            d=DAT+8*((r//2)%(PD+1))+4*(r%2)
            return f"v_mfma_f32_16x16x32_bf16 v[{ACC+4*b}:{ACC+4*b+3}], v[{AC}:{AC+3}], v[{d}:{d+3}], v[{ACC+4*b}:{ACC+4*b+3}]"
        def body(b):
            out=[]; tail=[]
            for r in range(RX):
                g=r//2
                out.append(f"E_{X}_{b}_{r}:")
                if 'prio' in EXP and r in (4,8,12): out.append(f"s_setprio {2-(r//4-1)}")
                if r%2==0:
                    if g+PD<NG:
                        if b==3 and GATE:
                            out.append(f"s_cmp_le_u32 s{32+X}, {2*(g+PD)}")
                            out.append(f"s_cbranch_scc1 T_{X}_{r}")
                            tl=[f"T_{X}_{r}:"]
                            if nd and g<4: tl+=dma1(g,*nd)
                            tl+= ["s_waitcnt lgkmcnt(0)",f"s_branch M_{X}_{r}"]
                            tail+=tl
                        out+=issue(X,g+PD)
                        if nd and g<4: out+=dma1(g,*nd)
                        out.append(f"s_waitcnt lgkmcnt({4*PD})")
                        if b==3 and GATE: out.append(f"M_{X}_{r}:")
                    else:
                        if nd and g<4: out+=dma1(g,*nd)
                        out.append(f"s_waitcnt lgkmcnt({0 if (b==3 and GATE) else 4*(NG-1-g)})")
                out.append(mfma(b,r))
                if r<RX-1 and not ('nochk' in EXP and r%2==0):
                    out.append(f"s_bitcmp1_b32 s54, {r}")
                    out.append(f"s_cbranch_scc1 E_{X}_{b+1}_{r+1}" if b<3 else f"s_cbranch_scc1 PE_{X}")
            out.append(f"s_branch PE_{X}")
            return "\n".join(out+tail)+"\n"
        for b in range(1,4): e(f"s_cmp_eq_u32 s38, {b}"); e(f"s_cbranch_scc1 E_{X}_{b}_0")
        e(body(0))
        for b in range(1,4): ool.append(body(b))
        e(f"PE_{X}:")
        if 'prio' in EXP: e("s_setprio 0")
        if nd:
            for k in range(1,4):
                lab=e.lab('DR')
                e(f"s_cmp_gt_u32 s{32+X}, {2*k}\ns_cbranch_scc1 {lab}\n"+"\n".join(dma1(k,*nd))+f"\n{lab}:")
        e("s_waitcnt lgkmcnt(0)")
    e("s_waitcnt vmcnt(0)"); hstamp(1)
    e("s_barrier"); hstamp(2)
    if 'ttouch' in EXP:
        e(f"buffer_load_dword v{TMP+7}, v{TMP+6}, s[24:27], 0 offen")
    phase(0); hstamp(3)
    e("s_waitcnt vmcnt(0)\ns_barrier"); hstamp(4)
    phase(1); hstamp(5)
    e("s_waitcnt vmcnt(0)\ns_barrier"); hstamp(6)
    phase(2); hstamp(7)
    e("K3_EPI:\ns_nop 7\ns_nop 1")
    for b in range(4):
        a=ACC+4*b; t=DAT+2*b
        for r in range(4): e(f"v_mul_f32 v{a+r}, v{a+r}, v{vD+b}")
        e(f"v_cvt_pk_bf16_f32 v{t}, v{a}, v{a+1}\nv_cvt_pk_bf16_f32 v{t+1}, v{a+2}, v{a+3}")
        e(f"ds_write_b64 v{vL+b}, v[{t}:{t+1}]")
    e("s_waitcnt lgkmcnt(0)\ns_barrier"); hstamp(8)
    e(f"ds_read_b128 v[{DAT}:{DAT+3}], v{vC}\nds_read_b128 v[{DAT+4}:{DAT+7}], v{vC} offset:16384")
    def tstores():
        for t in range(2):
            d=DAT+4*t
            e(f"buffer_store_dwordx4 v[{d}:{d+3}], v{CO+t}, s[24:27], 0 offen"+(" nt" if 'tnt' in EXP else " sc1" if 'tsc1' in EXP else " sc0 sc1" if 'tsc01' in EXP else ""))
    e(f"s_add_u32 s23, s23, 1\ns_cmp_ge_u32 s23, {NH}\ns_cbranch_scc1 K3_FIN")
    for t in range(2):
        d=DAT+4*t; a=ACC+8*t; o=DAT+8+4*t
        e(f"s_waitcnt lgkmcnt({1-t})")
        for r in range(4):
            e(f"v_lshlrev_b32 v{a+2*r}, 16, v{d+r}\nv_and_b32 v{a+2*r+1}, s51, v{d+r}")
        for r in range(8): e(f"v_mul_f32 v{a+r}, v{a+r}, v{CD+2*t+(r//4)}")
        for r in range(4): e(f"v_cvt_pk_bf16_f32 v{o+r}, v{a+2*r}, v{a+2*r+1}")
    e(f"""s_cmp_lg_u32 s50, 2
    s_cbranch_scc1 K3_XD
    K3_XP:
    v_cmp_eq_u32 vcc, 0, v71
    s_cbranch_vccz K3_XE
    global_load_dword v71, v70, s[4:5] sc1
    s_waitcnt vmcnt(0)
    s_branch K3_XP
    K3_XE:
    v_cmp_ne_u32 vcc, s44, v71
    s_cmp_lg_u64 vcc, 0
    s_cselect_b32 s50, 1, 0""")
    if FORCE_SLOWSYNC: e("s_mov_b32 s50, 1")
    e("K3_XD:")
    e("s_cmp_lg_u32 s50, 0\ns_cbranch_scc1 K3_GS1")
    for t in range(2):
        o=DAT+8+4*t; e(f"buffer_store_dwordx4 v[{o}:{o+3}], v{CO+t}, s[12:15], 0 offen")
    e("s_branch K3_GS2\nK3_GS1:")
    for t in range(2):
        o=DAT+8+4*t; e(f"buffer_store_dwordx4 v[{o}:{o+3}], v{CO+t}, s[12:15], 0 offen sc1")
    e("K3_GS2:\ns_waitcnt vmcnt(0) lgkmcnt(0)"); hstamp(9); e("s_barrier")
    e("s_cmp_eq_u32 s22, 0\ns_cbranch_scc1 K3_W0")
    if TMODE==1: e("s_sleep 6")
    if TMODE in (0,1): tstores()
    e("s_branch K3_WAIT\nK3_W0:")
    e(f"""
    v_mov_b32 v{TMP}, s67
    v_mov_b32 v{TMP+1}, s23
    v_cmp_eq_u32 vcc, 0, v1
    s_and_saveexec_b64 s[30:31], vcc
    s_cmp_lg_u32 s50, 0
    s_cbranch_scc1 K3_FS1
    global_store_dword v{TMP}, v{TMP+1}, s[4:5]
    s_branch K3_FS2
    K3_FS1:
    global_store_dword v{TMP}, v{TMP+1}, s[4:5] sc1
    K3_FS2:
    s_mov_b64 exec, s[30:31]
    v_and_b32 v{TMP}, 7, v1
    v_lshlrev_b32 v{TMP}, 5, v{TMP}
    v_add_u32 v{TMP}, s66, v{TMP}
    K3_POLL:
    global_load_dword v{TMP+1}, v{TMP}, s[4:5] sc1
    s_waitcnt vmcnt(0)
    v_cmp_gt_u32 vcc, s23, v{TMP+1}
    s_cbranch_vccnz K3_POLL
    """)
    if TMODE in (0,1): tstores()
    e("K3_WAIT:\ns_barrier"); hstamp(10)
    if TMODE==2: tstores()
    if TS:
        lab=e.lab('TS')
        e(f"s_cmp_lg_u32 s68, 0\ns_cbranch_scc1 {lab}"); stamp(4); e(f"{lab}:")
    e("s_branch K3_HOP")
    e(f"""
    K3_SLOWHOP:
    s_add_u32 s52, s4, {OFF_NOFF}
    s_addc_u32 s53, s5, 0
    s_mov_b32 s54, {25088*16}
    s_mov_b32 s55, 0x20000
    s_add_u32 s56, s4, {OFF_ENT}
    s_addc_u32 s57, s5, 0
    s_mov_b32 s58, {ENT_BYTES}
    s_mov_b32 s59, 0x20000
    """)
    for s in range(4):
        L=e.lab('SL'); Lx=e.lab('SX')
        a=ACC+4*s
        e(f"""
        v_mov_b32 v{a}, 0
        v_mov_b32 v{a+1}, 0
        v_mov_b32 v{a+2}, 0
        v_mov_b32 v{a+3}, 0
        s_add_u32 s3, s22, {16*s}
        s_lshl_b32 s3, s3, 6
        v_add_u32 v{DAT}, s3, v1              ; local
        v_cmp_gt_u32 vcc, {PN}, v{DAT}
        s_and_saveexec_b64 s[30:31], vcc
        s_cbranch_execz {Lx}
        v_add_u32 v{DAT}, s41, v{DAT}
        v_lshlrev_b32 v{DAT}, 4, v{DAT}
        buffer_load_dwordx4 v[{DAT+4}:{DAT+7}], v{DAT}, s[52:55], 0 offen
        s_waitcnt vmcnt(0)
        v_mov_b32 v{DAT+1}, v{DAT+4}          ; pos
        {L}:
        v_cmp_lt_u32 vcc, v{DAT+1}, v{DAT+7}
        s_and_b64 exec, exec, vcc
        s_cbranch_execz {Lx}
        v_lshlrev_b32 v{DAT+2}, 1, v{DAT+1}
        buffer_load_ushort v{DAT+3}, v{DAT+2}, s[56:59], 0 offen
        s_waitcnt vmcnt(0)
        v_cmp_le_u32 vcc, v{DAT+5}, v{DAT+1}           ; pos>=offB
        v_subrev_u32 v{DAT+8}, {BADD}, v{DAT+3}
        s_nop 0
        v_cndmask_b32 v{DAT+9}, v{DAT+3}, v{DAT+8}, vcc
        v_cmp_le_u32 vcc, v{DAT+6}, v{DAT+1}           ; pos>=offC
        v_add_u32 v{DAT+8}, {TH2}, v{DAT+3}
        s_nop 0
        v_cndmask_b32 v{DAT+9}, v{DAT+9}, v{DAT+8}, vcc
        v_cmp_eq_u32 vcc, {ZSI}, v{DAT+3}
        v_lshlrev_b32 v{DAT+9}, 3, v{DAT+9}
        v_mov_b32 v{DAT+8}, 0x7ffffff0
        s_nop 0
        v_cndmask_b32 v{DAT+9}, v{DAT+9}, v{DAT+8}, vcc
        s_mov_b32 s10, {N*8}
        buffer_load_dwordx2 v[{DAT+10}:{DAT+11}], v{DAT+9}, s[8:11], 0 offen sc1
        s_waitcnt vmcnt(0)
        v_lshlrev_b32 v{DAT+12}, 16, v{DAT+10}
        v_and_b32 v{DAT+13}, s51, v{DAT+10}
        v_lshlrev_b32 v{DAT+14}, 16, v{DAT+11}
        v_and_b32 v{DAT+15}, s51, v{DAT+11}
        v_add_f32 v{a}, v{a}, v{DAT+12}
        v_add_f32 v{a+1}, v{a+1}, v{DAT+13}
        v_add_f32 v{a+2}, v{a+2}, v{DAT+14}
        v_add_f32 v{a+3}, v{a+3}, v{DAT+15}
        v_add_u32 v{DAT+1}, 1, v{DAT+1}
        s_branch {L}
        {Lx}:
        s_mov_b64 exec, s[30:31]
        """)
    e(f"s_mov_b32 s10, {TS_STRIDE}\ns_branch K3_EPI")
    for o in ool: e(o)
    e("K3_FIN:\ns_waitcnt lgkmcnt(0)")
    tstores()
    if TS:
        e(f"s_cmp_lg_u32 s2, 41\ns_cbranch_scc1 K3_END\ns_memtime s[62:63]\ns_waitcnt lgkmcnt(0)\ns_sub_u32 s81, s62, s60")
        for k in range(17): e(f"v_writelane_b32 v{TMP+7}, s{76+k}, {k}")
        e(f"s_lshl_b32 s3, s22, 7\ns_add_u32 s3, s3, {OFF_DBG}\nv_lshlrev_b32 v{TMP+6}, 2, v1\nv_add_u32 v{TMP+6}, s3, v{TMP+6}\nv_cmp_gt_u32 vcc, 17, v1\ns_and_saveexec_b64 s[30:31], vcc\nglobal_store_dword v{TMP+6}, v{TMP+7}, s[4:5]")
    e("K3_END:")
    return e.text(),NV,102
```

```python
from glib import E
from layout import *
import struct
OFF_NINFO=OFF_FL+1024*1024
def wave_scan(e,v,tmp=None):
    for sh in (1,2,4,8):
        e(f"v_add_u32_dpp v{v}, v{v}, v{v} row_shr:{sh} row_mask:0xf bank_mask:0xf bound_ctrl:0")
    e(f"v_add_u32_dpp v{v}, v{v}, v{v} row_bcast:15 row_mask:0xa bank_mask:0xf")
    e(f"v_add_u32_dpp v{v}, v{v}, v{v} row_bcast:31 row_mask:0xc bank_mask:0xf")
def allred32_f32(e,v,tmp):
    e(f"v_add_f32_dpp v{v}, v{v}, v{v} quad_perm:[1,0,3,2] row_mask:0xf bank_mask:0xf")
    e(f"v_add_f32_dpp v{v}, v{v}, v{v} quad_perm:[2,3,0,1] row_mask:0xf bank_mask:0xf")
    e(f"v_add_f32_dpp v{v}, v{v}, v{v} row_half_mirror row_mask:0xf bank_mask:0xf")
    e(f"v_add_f32_dpp v{v}, v{v}, v{v} row_mirror row_mask:0xf bank_mask:0xf")
    e(f"v_mov_b32 v{tmp}, v{v}\nv_permlane16_swap_b32 v{v}, v{tmp}\nv_add_f32 v{v}, v{v}, v{tmp}")
def head(e,grid,P):
    e(f"""
    s_cmp_ge_u32 s2, {grid}
    s_cbranch_scc1 {P}_END
    s_load_dwordx2 s[4:5], s[0:1], 88      ; ws
    v_lshrrev_b32 v2, 6, v0
    v_and_b32 v1, 63, v0
    s_nop 0
    v_readfirstlane_b32 s22, v2
    """)
TSK=False
def tstamp(e,idx):
    if TSK: e(f"s_memrealtime s[62:63]\ns_waitcnt lgkmcnt(0)\ns_mov_b32 s{70+idx}, s62")
def tdump(e,wg,n):
    if not TSK: return
    lab=e.lab('TD')
    e(f"s_cmp_lg_u32 s2, {wg}\ns_cbranch_scc1 {lab}")
    for k in range(n): e(f"v_writelane_b32 v100, s{70+k}, {k}")
    e(f"s_lshl_b32 s3, s22, 6\ns_add_u32 s3, s3, {OFF_DBG}\nv_lshlrev_b32 v101, 2, v1\nv_add_u32 v101, s3, v101\nv_cmp_gt_u32 vcc, {n}, v1\ns_and_saveexec_b64 s[30:31], vcc\nglobal_store_dword v101, v100, s[4:5]\ns_mov_b64 exec, s[30:31]\n{lab}:")
def role_chunk(e,P,MERGED=False):
    SC=' sc1' if MERGED else ''
    tstamp(e,8)
    e(f"""
    s_load_dwordx4 s[8:11], s[0:1], 8
    s_mul_i32 s3, s2, {CHE*4}
    v_lshlrev_b32 v2, 4, v0
    v_add_u32 v2, s3, v2
    v_mov_b32 v3, 0
    v_lshlrev_b32 v4, 2, v0
    v_cmp_gt_u32 vcc, 128, v0
    s_and_saveexec_b64 s[30:31], vcc
    ds_write_b32 v4, v3
    s_mov_b64 exec, s[30:31]
    s_waitcnt lgkmcnt(0)
    s_mov_b32 s12, s8
    s_mov_b32 s13, s9
    s_mov_b32 s14, {EDG*4}
    s_mov_b32 s15, 0x20000
    s_mov_b32 s16, s10
    s_mov_b32 s17, s11
    s_mov_b32 s18, {EDG*4}
    s_mov_b32 s19, 0x20000
    v_cmp_gt_u32 vcc, {CHE//4}, v0
    s_and_saveexec_b64 s[30:31], vcc
    s_cbranch_execz {P}_C1
    buffer_load_dwordx4 v[8:11], v2, s[16:19], 0 offen     ; dst
    buffer_load_dwordx4 v[12:15], v2, s[12:15], 0 offen    ; src
    {P}_C1:
    s_mov_b64 exec, s[30:31]
    s_barrier
    s_mov_b32 s20, 21913099
    s_movk_i32 s21, 196
    s_and_saveexec_b64 s[30:31], vcc
    s_cbranch_execz {P}_C2
    s_waitcnt vmcnt(1)
    v_mov_b32 v3, 1
    """)
    for i in range(4):
        e(f"""v_mul_hi_u32 v{16+i}, v{8+i}, s20
        v_mul_lo_u32 v{20+i}, v{16+i}, s21
        v_sub_u32 v{20+i}, v{8+i}, v{20+i}
        v_lshlrev_b32 v{16+i}, 2, v{16+i}
        ds_add_rtn_u32 v{24+i}, v{16+i}, v3""")
    e(f"""
    {P}_C2:
    s_mov_b64 exec, s[30:31]
    s_waitcnt lgkmcnt(0)
    s_barrier
    s_cmp_lg_u32 s22, 0
    s_cbranch_scc1 {P}_C3
    v_lshlrev_b32 v4, 3, v1
    ds_read_b64 v[6:7], v4
    s_waitcnt lgkmcnt(0)
    v_add_u32 v5, v6, v7
    v_mov_b32 v28, v5
    """)
    wave_scan(e,28)
    e(f"""
    v_sub_u32 v28, v28, v5
    v_add_u32 v29, v28, v6
    ds_write_b64 v4, v[28:29] offset:1024
    v_mul_u32_u24 v5, {2*NCH*4}, v1
    s_lshl_b32 s3, s2, 2
    s_add_u32 s3, s3, {OFF_OFFS}
    v_add_u32 v5, s3, v5
    global_store_dword v5, v28, s[4:5]{SC}
    global_store_dword v5, v29, s[4:5] offset:{NCH*4}{SC}
    v_mov_b32 v6, {CHE}
    v_mov_b32 v5, s3
    v_add_u32 v5, {128*NCH*4}, v5
    v_cmp_eq_u32 vcc, 0, v1
    s_and_saveexec_b64 s[32:33], vcc
    global_store_dword v5, v6, s[4:5]{SC}
    s_mov_b64 exec, s[32:33]
    {P}_C3:
    s_waitcnt lgkmcnt(0)
    s_barrier
    v_cmp_gt_u32 vcc, {CHE//4}, v0
    s_and_saveexec_b64 s[30:31], vcc
    """)
    for i in range(4): e(f"ds_read_b32 v{28+i}, v{16+i} offset:1024")
    e("s_waitcnt vmcnt(0) lgkmcnt(0)")
    for i in range(4):
        e(f"""v_add_u32 v{28+i}, v{28+i}, v{24+i}
        v_lshlrev_b32 v{28+i}, 2, v{28+i}
        v_lshl_or_b32 v{12+i}, v{20+i}, 16, v{12+i}
        ds_write_b32 v{28+i}, v{12+i} offset:2048""")
    e(f"""s_mov_b64 exec, s[30:31]
    s_waitcnt lgkmcnt(0)
    s_barrier
    s_and_saveexec_b64 s[30:31], vcc
    s_cbranch_execz {P}_C4
    v_lshlrev_b32 v4, 4, v0
    ds_read_b128 v[8:11], v4 offset:2048
    s_mul_i32 s3, s2, {CHE*4}
    s_add_u32 s3, s3, {OFF_CH}
    v_add_u32 v4, s3, v4
    s_waitcnt lgkmcnt(0)
    global_store_dwordx4 v4, v[8:11], s[4:5]{SC}
    {P}_C4:
    s_mov_b64 exec, s[30:31]""")
    if not MERGED: e("s_endpgm"); return
    tstamp(e,9)
    e("s_waitcnt vmcnt(0)")
    tstamp(e,10)
    e(f"""s_barrier
    s_load_dwordx2 s[6:7], s[0:1], 80
    s_and_b32 s3, s2, 3
    s_lshl_b32 s3, s3, 5
    v_mov_b32 v4, s3
    v_mov_b32 v5, 1
    s_waitcnt lgkmcnt(0)
    v_cmp_eq_u32 vcc, 0, v0
    s_and_saveexec_b64 s[30:31], vcc
    s_cbranch_execz {P}_C5
    global_atomic_add v4, v5, s[6:7] sc1
    {P}_C5:
    s_mov_b64 exec, s[30:31]""")
def role_x(e,P,wg0,task0,task1,wpw,doG=True,doT=True):
    e(f"""
    s_load_dwordx2 s[8:9], s[0:1], 0        ; x
    s_load_dwordx2 s[12:13], s[0:1], 24     ; dis
    s_cmp_ge_u32 s22, {wpw}
    s_cbranch_scc1 {P}_END
    s_sub_u32 s3, s2, {wg0}
    s_mul_i32 s3, s3, {wpw}
    s_add_u32 s3, s3, s22
    s_add_u32 s3, s3, {task0}
    s_cmp_ge_u32 s3, {task1}
    s_cbranch_scc1 {P}_END
    s_lshl_b32 s20, s3, 4                   ; n0
    v_and_b32 v2, 15, v1
    v_add_u32 v2, s20, v2                   ; node
    v_lshrrev_b32 v3, 4, v1                 ; c4
    v_lshlrev_b32 v4, 8, v2
    v_lshl_add_u32 v4, v3, 4, v4
    v_lshlrev_b32 v5, 1, v2
    s_waitcnt lgkmcnt(0)
    s_mov_b32 s10, {N*256}
    s_mov_b32 s11, 0x20000
    s_mov_b32 s14, {N*2}
    s_mov_b32 s15, 0x20000
    """)
    e("buffer_load_ushort v6, v5, s[12:15], 0 offen")
    for i in range(4): e(f"buffer_load_dwordx4 v[{8+4*i}:{11+4*i}], v4, s[8:11], 0 offen offset:{64*i}")
    if XTOUCH and doG:
        e(f"""s_add_u32 s32, s4, {OFF_G+32*TS_STRIDE}
        s_addc_u32 s33, s5, 0
        s_mov_b32 s34, {32*TS_STRIDE}
        s_mov_b32 s35, 0x20000
        s_mov_b32 s21, {TS_STRIDE}
        v_mul_lo_u32 v72, v1, s21
        s_lshl_b32 s3, s20, 3
        v_add_u32 v72, s3, v72
        buffer_load_dword v73, v72, s[32:35], 0 offen""")
    e(f"""
    s_add_u32 s16, s4, {OFF_T}
    s_addc_u32 s17, s5, 0
    s_mov_b32 s18, {32*TS_STRIDE}
    s_mov_b32 s19, 0x20000
    s_add_u32 s24, s4, {OFF_G}
    s_addc_u32 s25, s5, 0
    s_mov_b32 s26, {32*TS_STRIDE}
    s_mov_b32 s27, 0x20000
    s_mov_b32 s21, {TS_STRIDE}
    v_and_b32 v7, 1, v1
    v_lshl_add_u32 v7, v3, 1, v7            ; 2*c4+parity
    v_mul_lo_u32 v7, v7, s21
    v_and_b32 v5, -2, v2
    v_lshl_add_u32 v7, v5, 3, v7
    s_mov_b32 s28, 0xffff0000
    s_mov_b32 s30, 0xaaaaaaaa
    s_mov_b32 s31, 0xaaaaaaaa
    s_waitcnt vmcnt({5 if (XTOUCH and doG) else 4})
    v_lshlrev_b32 v6, 16, v6
    """)
    def xch(d,o,t):
        e(f"""v_cndmask_b32 v{t}, v{d+2}, v{d}, s[30:31]
        v_cndmask_b32 v{t+1}, v{d+3}, v{d+1}, s[30:31]
        v_mov_b32_dpp v{t+2}, v{t} quad_perm:[1,0,3,2] row_mask:0xf bank_mask:0xf
        v_mov_b32_dpp v{t+3}, v{t+1} quad_perm:[1,0,3,2] row_mask:0xf bank_mask:0xf
        v_cndmask_b32 v{o}, v{d}, v{t+2}, s[30:31]
        v_cndmask_b32 v{o+1}, v{d+1}, v{t+3}, s[30:31]
        v_cndmask_b32 v{o+2}, v{t+2}, v{d+2}, s[30:31]
        v_cndmask_b32 v{o+3}, v{t+3}, v{d+3}, s[30:31]""")
    nst=int(doG)+int(doT)
    for i in range(4):
        b=8+4*i
        e(f"s_waitcnt vmcnt({(3-i)+nst*i+(1 if (XTOUCH and doG) else 0)})")
        e(f"s_mov_b32 s3, {8*i*TS_STRIDE}")
        if doG:
            for r in range(4):
                e(f"v_lshlrev_b32 v{24+2*r}, 16, v{b+r}\nv_and_b32 v{25+2*r}, s28, v{b+r}\nv_mul_f32 v{24+2*r}, v{24+2*r}, v6\nv_mul_f32 v{25+2*r}, v{25+2*r}, v6\nv_cvt_pk_bf16_f32 v{32+r}, v{24+2*r}, v{25+2*r}")
            xch(32,40+8*i,36)
            e(f"buffer_store_dwordx4 v[{40+8*i}:{43+8*i}], v7, s[24:27], s3 offen")
        if doT:
            xch(b,44+8*i,36)
            e(f"buffer_store_dwordx4 v[{44+8*i}:{47+8*i}], v7, s[16:19], s3 offen")
    e("s_endpgm")
XTOUCH=False
ACC=64; CS=32768
def w_finish(e,center_right,scale,woff):
    e(f"v_add_f32 v8, v{ACC}, v{ACC+1}")
    for r in range(2,16): e(f"v_add_f32 v8, v8, v{ACC+r}")
    e("v_mov_b32 v12, v8\nv_permlane32_swap_b32 v8, v12\nv_add_f32 v8, v8, v12")
    e(f"v_and_b32 v13, 31, v1\nv_lshlrev_b32 v13, 2, v13\ns_lshl_b32 s3, s22, 7\nv_add_u32 v14, s3, v13\nds_write_b32 v14, v8 offset:{CS}")
    if center_right:
        e("v_add_f32 v9, v40, v41")
        for r in range(2,16): e(f"v_add_f32 v9, v9, v{40+r}")
        e("v_mov_b32 v12, v9\nv_permlane32_swap_b32 v9, v12\nv_add_f32 v9, v9, v12")
        e(f"v_bfe_u32 v14, v1, 2, 1\nv_lshlrev_b32 v14, 4, v14\nv_bfe_u32 v15, v1, 3, 2\nv_lshl_add_u32 v14, v15, 2, v14\nv_and_b32 v15, 3, v1\nv_add_u32 v14, v14, v15\nv_lshlrev_b32 v14, 2, v14\nv_add_u32 v14, s3, v14\nds_write_b32 v14, v9 offset:{CS+2048}")
    e("s_waitcnt lgkmcnt(0)\ns_barrier")
    e("s_and_b32 s3, s22, 3\ns_lshl_b32 s3, s3, 7\nv_add_u32 v14, s3, v13")
    for it in range(4): e(f"ds_read_b32 v{16+it}, v14 offset:{CS+512*it}")
    if center_right:
        e(f"v_lshlrev_b32 v15, 5, v1\nds_read_b128 v[20:23], v15 offset:{CS}\nds_read_b128 v[24:27], v15 offset:{CS+16}")
        e(f"s_lshr_b32 s3, s22, 2\ns_lshl_b32 s3, s3, 9\nv_lshrrev_b32 v15, 5, v1\nv_lshlrev_b32 v15, 6, v15\nv_add_u32 v15, s3, v15")
        for mt in range(4):
            for q in range(4): e(f"ds_read_b128 v[{84+16*(mt%2)+4*q}:{87+16*(mt%2)+4*q}], v15 offset:{CS+2048+128*mt+16*q}")
            if mt%2==1:
                e("s_waitcnt lgkmcnt(0)")
                for r in range(16):
                    if mt==1: e(f"v_add_f32 v{40+r}, v{84+r}, v{100+r}")
                    else: e(f"v_add_f32 v{84+r}, v{84+r}, v{100+r}\nv_add_f32 v{40+r}, v{40+r}, v{84+r}")
    e("s_waitcnt lgkmcnt(0)\ns_mov_b32 s3, 0x3c000000")
    e("v_add_f32 v8, v16, v17\nv_add_f32 v9, v18, v19\nv_add_f32 v8, v8, v9\nv_mul_f32 v8, s3, v8")
    if center_right:
        e("v_add_f32 v12, v20, v21")
        for k in range(2,8): e(f"v_add_f32 v12, v12, v{20+k}")
        allred32_f32(e,12,15)
        e("v_mov_b32 v15, v12\nv_permlane32_swap_b32 v12, v15\nv_add_f32 v12, v12, v15")
        e("v_mul_f32 v12, s3, v12\nv_mul_f32 v12, s3, v12\nv_sub_f32 v8, v8, v12")
        for r in range(16): e(f"v_fma_f32 v{40+r}, s3, v{40+r}, v8")
    e(f"s_mov_b32 s3, {scale:#x}")
    for r in range(16):
        a=ACC+r
        e(f"v_sub_f32 v{a}, v{a}, v{40+r}" if center_right else f"v_sub_f32 v{a}, v{a}, v8")
        if scale!=0x3f800000: e(f"v_mul_f32 v{a}, s3, v{a}")
    e(f"s_and_b32 s3, s22, 3\ns_lshl_b32 s3, s3, 13\ns_lshr_b32 s20, s22, 2\ns_lshl_b32 s20, s20, 11\ns_add_u32 s3, s3, s20\ns_add_u32 s3, s3, {OFF_W+woff}\nv_lshlrev_b32 v13, 4, v1\nv_add_u32 v13, s3, v13")
    for ee in range(2):
        for i in range(4): e(f"v_cvt_pk_bf16_f32 v{32+4*ee+i}, v{ACC+8*ee+2*i}, v{ACC+8*ee+2*i+1}")
        e(f"global_store_dwordx4 v13, v[{32+4*ee}:{35+4*ee}], s[4:5] offset:{ee*1024}")
    e("s_endpgm")
def rowaddr(e):
    e("""v_and_b32 v2, 0x13, v1
    v_bfe_u32 v3, v1, 2, 1
    v_lshl_or_b32 v2, v3, 3, v2
    v_bfe_u32 v3, v1, 3, 1
    v_lshl_or_b32 v2, v3, 2, v2
    v_lshlrev_b32 v3, 8, v2
    v_lshrrev_b32 v4, 5, v1
    v_lshl_add_u32 v3, v4, 4, v3""")
def two_srd(e,off):
    e(f"""s_load_dwordx4 s[8:11], s[0:1], {off}
    s_waitcnt lgkmcnt(0)
    s_mov_b32 s12, s8
    s_mov_b32 s13, s9
    s_mov_b32 s14, 32768
    s_mov_b32 s15, 0x20000
    s_mov_b32 s16, s10
    s_mov_b32 s17, s11
    s_mov_b32 s18, 32768
    s_mov_b32 s19, 0x20000""")
def stage(e,srd,ldsbase,r0):
    e(f"buffer_load_dwordx4 v[{r0}:{r0+3}], v90, {srd}, 0 offen\nbuffer_load_dwordx4 v[{r0+4}:{r0+7}], v91, {srd}, 0 offen")
def stage_addr(e):
    e("""v_lshlrev_b32 v90, 4, v0
    v_add_u32 v91, 16384, v90
    v_lshrrev_b32 v92, 4, v0
    v_and_b32 v93, 15, v92
    v_and_b32 v94, 15, v0
    v_xor_b32 v93, v93, v94
    v_lshlrev_b32 v93, 4, v93
    v_lshl_add_u32 v92, v92, 8, v93""")
def frag_addr(e,reg,tile_sreg):
    e(f"""v_and_b32 v2, 0x13, v1
    v_bfe_u32 v3, v1, 2, 1
    v_lshl_or_b32 v2, v3, 3, v2
    v_bfe_u32 v3, v1, 3, 1
    v_lshl_or_b32 v2, v3, 2, v2
    v_and_b32 v3, 15, v2
    v_lshrrev_b32 v4, 5, v1
    v_xor_b32 v{reg+1}, v3, v4
    v_lshlrev_b32 v{reg}, 8, v2
    v_add_u32 v{reg}, {tile_sreg}, v{reg}""")
def frag_read(e,dst,reg,es,base):
    e(f"v_xor_b32 v7, {2*es}, v{reg+1}\nv_lshl_add_u32 v7, v7, 4, v{reg}\nds_read_b128 v[{dst}:{dst+3}], v7 offset:{base}")
def role_wm(e):
    two_srd(e,32); stage_addr(e)
    stage(e,'s[12:15]',0,8); stage(e,'s[16:19]',32768,16)
    e("s_lshr_b32 s20, s22, 2\ns_lshl_b32 s20, s20, 13\ns_and_b32 s21, s22, 3\ns_lshl_b32 s21, s21, 13")
    frag_addr(e,56,'s20'); frag_addr(e,58,'s21')
    e("""s_waitcnt vmcnt(2)
    ds_write_b128 v92, v[8:11]
    ds_write_b128 v92, v[12:15] offset:16384
    s_waitcnt vmcnt(0)
    ds_write_b128 v92, v[16:19] offset:32768
    ds_write_b128 v92, v[20:23] offset:49152
    s_waitcnt lgkmcnt(0)
    s_barrier""")
    for es in range(8):
        frag_read(e,8+4*es,56,es,0); frag_read(e,84+4*es,58,es,32768)
        if es%4==3: e("s_waitcnt lgkmcnt(0)")
    e("s_barrier")
    for es in range(8):
        c="0" if es==0 else f"v[{ACC}:{ACC+15}]"
        e(f"v_mfma_f32_32x32x16_bf16 v[{ACC}:{ACC+15}], v[{8+4*es}:{11+4*es}], v[{84+4*es}:{87+4*es}], {c}")
        c="0" if es==0 else "v[40:55]"
        e(f"v_mfma_f32_32x32x16_bf16 v[40:55], v[{84+4*es}:{87+4*es}], v[{8+4*es}:{11+4*es}], {c}")
    sc=struct.unpack('<I',struct.pack('<f',1.4426950408889634/128**0.5))[0]
    w_finish(e,True,sc,0)
def role_wu(e):
    two_srd(e,48); stage_addr(e)
    stage(e,'s[12:15]',0,8); stage(e,'s[16:19]',32768,16)
    e("s_lshr_b32 s20, s22, 2\ns_lshl_b32 s20, s20, 13")
    frag_addr(e,56,'s20')
    e("""
    v_lshrrev_b32 v5, 5, v1
    v_lshlrev_b32 v5, 3, v5
    v_bfe_u32 v6, v1, 2, 2
    v_add_u32 v5, v5, v6
    v_lshlrev_b32 v5, 8, v5
    v_bfe_u32 v6, v1, 4, 1
    v_lshlrev_b32 v6, 4, v6
    v_and_b32 v7, 1, v1
    v_lshl_add_u32 v6, v7, 3, v6
    v_bfe_u32 v7, v1, 1, 1
    v_lshl_add_u32 v6, v7, 2, v6
    v_lshl_add_u32 v5, v6, 1, v5
    s_and_b32 s21, s22, 3
    s_lshl_b32 s21, s21, 6
    v_add_u32 v5, s21, v5
    s_waitcnt vmcnt(2)
    ds_write_b128 v92, v[8:11]
    ds_write_b128 v92, v[12:15] offset:16384
    s_waitcnt vmcnt(0)
    ds_write_b128 v90, v[16:19] offset:32768
    ds_write_b128 v91, v[20:23] offset:32768
    s_waitcnt lgkmcnt(0)
    s_barrier
    """)
    for es in range(8):
        frag_read(e,8+4*es,56,es,0)
        for jj in range(2):
            e(f"ds_read_b64_tr_b16 v[{84+4*es+2*jj}:{85+4*es+2*jj}], v5 offset:{32768+(16*es+4*jj)*256}")
        if es%4==3: e("s_waitcnt lgkmcnt(0)")
    e("s_barrier")
    for es in range(8):
        c="0" if es==0 else f"v[{ACC}:{ACC+15}]"
        e(f"v_mfma_f32_32x32x16_bf16 v[{ACC}:{ACC+15}], v[{8+4*es}:{11+4*es}], v[{84+4*es}:{87+4*es}], {c}")
    w_finish(e,False,0x3f800000,32768)
def role_sw(e,P):
    lg=struct.unpack('<I',struct.pack('<f',1.4426950408889634))[0]
    e(f"""
    s_load_dwordx2 s[8:9], s[0:1], 64       ; w_r
    v_mov_b32 v8, 0
    v_mov_b32 v9, 0
    v_mov_b32 v10, 0
    v_mov_b32 v11, 0
    v_lshlrev_b32 v2, 4, v0
    v_add_u32 v2, {OFF_FL}, v2
    s_waitcnt lgkmcnt(0)
    global_store_dwordx4 v2, v[8:11], s[4:5]
    s_cmp_lg_u32 s22, 0
    s_cbranch_scc1 {P}_SW2
    v_lshlrev_b32 v3, 2, v1
    global_load_dword v4, v3, s[8:9]
    s_waitcnt vmcnt(0)
    v_lshlrev_b32 v5, 16, v4
    v_and_b32 v6, 0xffff0000, v4
    v_add_f32 v7, v5, v6
    """)
    allred32_f32(e,7,12)
    e(f"""
    v_mov_b32 v12, v7
    v_permlane32_swap_b32 v7, v12
    v_add_f32 v7, v7, v12
    v_mul_f32 v7, 0x3c000000, v7
    v_sub_f32 v5, v5, v7
    v_sub_f32 v6, v6, v7
    v_mul_f32 v5, {lg:#x}, v5
    v_mul_f32 v6, {lg:#x}, v6
    v_cvt_pk_bf16_f32 v12, v5, v6
    v_lshlrev_b32 v13, 16, v12
    v_and_b32 v14, 0xffff0000, v12
    v_sub_f32 v5, v5, v13
    v_sub_f32 v6, v6, v14
    v_cvt_pk_bf16_f32 v13, v5, v6
    ds_write_b32 v3, v12 offset:256
    ds_write_b32 v3, v13 offset:512
    v_mov_b32 v12, 0x3f803f80
    v_mov_b32 v13, 0
    ds_write_b32 v3, v12
    ds_write_b32 v3, v13 offset:768
    {P}_SW2:
    s_waitcnt lgkmcnt(0)
    s_barrier
    s_cmp_ge_u32 s22, 8
    s_cbranch_scc1 {P}_END
    v_and_b32 v2, 3, v1
    v_lshlrev_b32 v2, 8, v2
    v_lshrrev_b32 v3, 5, v1
    v_lshl_add_u32 v2, v3, 4, v2
    s_lshl_b32 s3, s22, 5
    v_add_u32 v2, s3, v2
    ds_read_b128 v[8:11], v2
    v_bfe_u32 v3, v1, 4, 1
    v_bfe_u32 v4, v1, 2, 1
    v_cmp_eq_u32 vcc, v3, v4
    s_waitcnt lgkmcnt(0)
    v_cndmask_b32 v8, 0, v8, vcc
    v_cndmask_b32 v9, 0, v9, vcc
    v_cndmask_b32 v10, 0, v10, vcc
    v_cndmask_b32 v11, 0, v11, vcc
    s_lshl_b32 s3, s22, 10
    s_add_u32 s3, s3, {OFF_W+65536}
    v_lshlrev_b32 v2, 4, v1
    v_add_u32 v2, s3, v2
    global_store_dwordx4 v2, v[8:11], s[4:5]
    s_endpgm
    """)
def role_csr(e,P,MERGED=False):
    SC=' sc1' if MERGED else ''
    tstamp(e,0)
    if MERGED:
        e(f"""s_load_dwordx2 s[6:7], s[0:1], 80
        s_waitcnt lgkmcnt(0)
        s_cmp_lg_u32 s22, 0
        s_cbranch_scc1 {P}_W1
        s_cmp_lg_u32 s2, {NCH}
        s_cbranch_scc1 {P}_W2
        v_and_b32 v4, 3, v1
        v_lshlrev_b32 v4, 5, v4
        {P}_W0:
        global_load_dword v5, v4, s[6:7] sc1
        s_waitcnt vmcnt(0)
        v_cmp_gt_u32 vcc, {NCH//4}, v5
        s_cbranch_vccnz {P}_W0
        v_mov_b32 v4, 128
        v_mov_b32 v5, 1
        v_cmp_eq_u32 vcc, 0, v1
        s_and_saveexec_b64 s[30:31], vcc
        global_store_dword v4, v5, s[6:7] sc1
        s_mov_b64 exec, s[30:31]
        s_branch {P}_W1
        {P}_W2:
        v_mov_b32 v4, 128
        {P}_W3:
        global_load_dword v5, v4, s[6:7] sc1
        s_waitcnt vmcnt(0)
        v_cmp_eq_u32 vcc, 0, v5
        s_cbranch_vccnz {P}_W3
        {P}_W1:
        s_barrier""")
    tstamp(e,11)
    C1=0; C2=2560; CU=5120; OX=7680; WT=10240; ES=10496; ECAPB=16384
    e(f"""
    v_mov_b32 v3, 0
    v_lshlrev_b32 v4, 2, v0
    v_cmp_gt_u32 vcc, 640, v0
    s_and_saveexec_b64 s[30:31], vcc
    ds_write_b32 v4, v3 offset:{C1}
    ds_write_b32 v4, v3 offset:{C2}
    ds_write_b32 v4, v3 offset:{CU}
    s_mov_b64 exec, s[30:31]
    s_waitcnt lgkmcnt(0)
    s_add_u32 s8, s4, {OFF_OFFS}
    s_addc_u32 s9, s5, 0
    s_mov_b32 s10, {129*NCH*4}
    s_mov_b32 s11, 0x20000
    s_add_u32 s12, s4, {OFF_CH}
    s_addc_u32 s13, s5, 0
    s_mov_b32 s14, {EDG*4}
    s_mov_b32 s15, 0x20000
    s_add_u32 s16, s4, {OFF_ENT}
    s_addc_u32 s17, s5, 0
    s_mov_b32 s18, {ENT_BYTES}
    s_mov_b32 s19, 0x20000
    s_mul_i32 s3, s2, {NCH*4}
    v_lshlrev_b32 v5, 4, v1
    v_add_u32 v5, s22, v5                 ; seg
    v_cmp_gt_u32 vcc, {NCH}, v5
    v_cmp_gt_u32 s[32:33], 7, v1
    s_and_b64 vcc, vcc, s[32:33]
    v_lshlrev_b32 v6, 2, v5
    v_add_u32 v6, s3, v6
    v_mov_b32 v7, 0x7ffffff0
    s_nop 0
    v_cndmask_b32 v6, v7, v6, vcc
    buffer_load_dword v8, v6, s[8:11], 0 offen{SC}
    buffer_load_dword v9, v6, s[8:11], 0 offen offset:{NCH*4}{SC}
    v_lshlrev_b32 v10, 2, v1
    v_add_u32 v10, s3, v10
    buffer_load_dword v11, v10, s[8:11], 0 offen{SC}
    v_cmp_gt_u32 s[34:35], {NCH-64}, v1
    v_add_u32 v12, 256, v10
    v_cndmask_b32 v12, v7, v12, s[34:35]
    buffer_load_dword v12, v12, s[8:11], 0 offen{SC}
    s_waitcnt vmcnt(2)
    v_sub_u32 v9, v9, v8
    v_mul_u32_u24 v5, {CHE}, v5
    v_add_u32 v8, v8, v5
    """)
    tstamp(e,1)
    for i in range(7): e(f"v_readlane_b32 s{40+i}, v8, {i}\nv_readlane_b32 s{48+i}, v9, {i}")
    R=16
    for i in range(7):
        e(f"""v_add_u32 v13, s{40+i}, v1
        v_lshlrev_b32 v13, 2, v13
        v_cmp_gt_u32 vcc, s{48+i}, v1
        s_nop 1
        v_cndmask_b32 v13, v7, v13, vcc
        buffer_load_dword v{R+i}, v13, s[12:15], 0 offen{SC}""")
    e("s_waitcnt vmcnt(7)\nv_add_u32 v11, v11, v12")
    wave_scan(e,11)
    e("s_nop 1\nv_readlane_b32 s24, v11, 63\ns_barrier")
    tstamp(e,2)
    CI=24; RK=32; VL=40
    def decode(rec,ci,vl,t):
        e(f"""v_lshrrev_b32 v{ci}, 16, v{rec}
        v_and_b32 v{vl}, 0xffff, v{rec}
        v_cmp_le_u32 vcc, s28, v{vl}
        v_cmp_le_u32 s[36:37], s27, v{vl}
        v_mul_u32_u24 v{ci}, 3, v{ci}
        v_add_u32 v{t}, {BADD}, v{vl}
        v_subrev_u32 v{t+1}, {TH2}, v{vl}
        v_cndmask_b32 v{vl}, v{vl}, v{t}, vcc
        v_cndmask_b32 v{vl}, v{vl}, v{t+1}, s[36:37]
        v_addc_co_u32 v{ci}, vcc, 0, v{ci}, vcc
        v_addc_co_u32 v{ci}, vcc, 0, v{ci}, s[36:37]
        v_lshlrev_b32 v{ci}, 2, v{ci}""")
    e(f"v_mov_b32 v3, 1\ns_movk_i32 s27, {TH2}\ns_movk_i32 s28, {TH1}")
    for i in range(7):
        e(f"s_waitcnt vmcnt({6-i})")
        decode(R+i,CI+i,VL+i,14)
        e(f"""v_cmp_gt_u32 vcc, s{48+i}, v1
        s_and_saveexec_b64 s[30:31], vcc
        ds_add_rtn_u32 v{RK+i}, v{CI+i}, v3 offset:{C1}
        s_mov_b64 exec, s[30:31]""")
    def remainder(final):
        for i in range(7):
            L=e.lab(P+'RM'); Lx=e.lab(P+'RX')
            e(f"""s_cmp_le_u32 s{48+i}, 64
            s_cbranch_scc1 {Lx}
            s_mov_b32 s25, 64
            {L}:
            v_add_u32 v13, s25, v1
            v_cmp_gt_u32 vcc, s{48+i}, v13
            s_and_saveexec_b64 s[30:31], vcc
            s_cbranch_execz {L}_s
            v_add_u32 v13, s{40+i}, v13
            v_lshlrev_b32 v13, 2, v13
            buffer_load_dword v48, v13, s[12:15], 0 offen{SC}
            s_waitcnt vmcnt(0)""")
            decode(48,49,50,14)
            if not final: e(f"ds_add_u32 v49, v3 offset:{C2}")
            else:
                e(f"""ds_add_rtn_u32 v51, v49, v3 offset:{CU}
                ds_read_b32 v52, v49 offset:{OX}
                ds_read_b32 v53, v49 offset:{C1}
                s_waitcnt lgkmcnt(0)
                v_add3_u32 v51, v51, v52, v53
                v_lshlrev_b32 v51, 1, v51""")
                if final==2: e("v_add_u32 v51, s39, v51\nds_write_b16 v51, v50")
                else: e("buffer_store_short v50, v51, s[16:19], 0 offen")
            e(f"""{L}_s:
            s_mov_b64 exec, s[30:31]
            s_add_u32 s25, s25, 64
            s_cmp_lt_u32 s25, s{48+i}
            s_cbranch_scc1 {L}
            {Lx}:""")
    remainder(False)
    tstamp(e,3)
    e("s_waitcnt lgkmcnt(0)\ns_barrier")
    tstamp(e,4)
    e(f"""
    s_cmp_ge_u32 s22, 4
    s_cbranch_scc1 {P}_N1
    v_mul_u32_u24 v4, 12, v0
    ds_read_b32 v48, v4 offset:{C1}
    ds_read_b32 v49, v4 offset:{C1+4}
    ds_read_b32 v50, v4 offset:{C1+8}
    ds_read_b32 v51, v4 offset:{C2}
    ds_read_b32 v52, v4 offset:{C2+4}
    ds_read_b32 v53, v4 offset:{C2+8}
    v_cmp_gt_u32 vcc, 196, v0
    s_waitcnt lgkmcnt(0)
    """)
    for k in range(3):
        e(f"v_add_u32 v{48+k}, v{48+k}, v{51+k}\nv_cndmask_b32 v{48+k}, 0, v{48+k}, vcc\nv_add_u32 v{54+k}, 1, v{48+k}\nv_and_b32 v{54+k}, -2, v{54+k}")
    e("v_add3_u32 v57, v54, v55, v56\nv_mov_b32 v58, v57")
    wave_scan(e,58)
    e(f"""
    s_nop 1
    v_readlane_b32 s3, v58, 63
    s_lshl_b32 s25, s22, 2
    v_mov_b32 v59, s25
    v_mov_b32 v60, s3
    ds_write_b32 v59, v60 offset:{WT}
    {P}_N1:
    s_waitcnt lgkmcnt(0)
    s_barrier
    s_cmp_ge_u32 s22, 4
    s_cbranch_scc1 {P}_P2
    v_mov_b32 v59, 0
    ds_read_b128 v[60:63], v59 offset:{WT}
    v_sub_u32 v58, v58, v57
    s_mul_i32 s3, s2, 590
    s_add_u32 s3, s3, s24
    s_add_u32 s3, s3, 1
    s_and_b32 s26, s3, -2
    s_waitcnt lgkmcnt(0)
    v_readfirstlane_b32 s40, v60
    v_readfirstlane_b32 s41, v61
    v_readfirstlane_b32 s42, v62
    s_cmp_ge_u32 s22, 1
    s_cselect_b32 s40, s40, 0
    s_cmp_ge_u32 s22, 2
    s_cselect_b32 s41, s41, 0
    s_cmp_ge_u32 s22, 3
    s_cselect_b32 s42, s42, 0
    s_add_u32 s26, s26, s40
    s_add_u32 s26, s26, s41
    s_add_u32 s26, s26, s42
    v_add_u32 v64, s26, v58               ; offA
    v_add_u32 v65, v64, v54               ; offB
    v_add_u32 v66, v65, v55               ; offC
    v_add_u32 v67, v66, v56               ; end
    v_cmp_eq_u32 vcc, 0, v0
    s_and_saveexec_b64 s[30:31], vcc
    ds_write_b32 v59, v64 offset:{WT+16}
    s_mov_b64 exec, s[30:31]
    v_cmp_eq_u32 vcc, 195, v0
    s_and_saveexec_b64 s[30:31], vcc
    ds_write_b32 v59, v67 offset:{WT+20}
    s_mov_b64 exec, s[30:31]
    v_cmp_gt_u32 vcc, 196, v0
    s_and_saveexec_b64 s[30:31], vcc
    s_cbranch_execz {P}_N2
    ds_write_b32 v4, v64 offset:{OX}
    ds_write_b32 v4, v65 offset:{OX+4}
    ds_write_b32 v4, v66 offset:{OX+8}
    s_mul_i32 s3, s2, {196*16}
    v_lshlrev_b32 v5, 4, v0
    v_add_u32 v5, s3, v5
    v_add_u32 v6, {OFF_NOFF}, v5
    global_store_dwordx4 v6, v[64:67], s[4:5]
    v_lshrrev_b32 v54, 1, v54
    v_lshrrev_b32 v55, 1, v55
    v_lshrrev_b32 v56, 1, v56
    v_or3_b32 v71, v54, v55, v56
    v_lshrrev_b32 v71, 10, v71
    v_mov_b32 v68, v64
    v_lshl_or_b32 v69, v55, 10, v54
    v_lshl_or_b32 v69, v56, 20, v69
    v_min_u32 v55, 7, v55
    v_min_u32 v56, 7, v56
    v_min_u32 v54, 15, v54
    v_and_b32 v72, 1, v55
    v_sub_u32 v73, 7, v56
    v_cmp_eq_u32 vcc, 1, v72
    v_cndmask_b32 v56, v56, v73, vcc
    v_lshl_or_b32 v56, v55, 3, v56
    v_and_b32 v72, 1, v56
    v_sub_u32 v73, 15, v54
    v_cmp_eq_u32 vcc, 1, v72
    v_cndmask_b32 v54, v54, v73, vcc
    v_lshl_or_b32 v54, v56, 4, v54
    v_lshlrev_b32 v70, 2, v54
    v_add_u32 v6, {OFF_NINFO}, v5
    global_store_dwordx4 v6, v[68:71], s[4:5]
    """)
    e(f"""
    {P}_N2:
    s_mov_b64 exec, s[30:31]
    {P}_P2:
    s_waitcnt lgkmcnt(0)
    s_barrier
    """)
    tstamp(e,5)
    e(f"""
    v_mov_b32 v59, 0
    ds_read_b64 v[60:61], v59 offset:{WT+16}
    s_waitcnt lgkmcnt(0)
    v_readfirstlane_b32 s26, v60        ; EB
    v_readfirstlane_b32 s29, v61        ; end
    s_sub_u32 s38, s29, s26
    s_lshl_b32 s38, s38, 1              ; bytes
    s_cmp_gt_u32 s38, {ECAPB}
    s_cbranch_scc1 {P}_DIRECT
    """)
    e(f"s_lshl_b32 s39, s26, 1\ns_sub_u32 s39, {ES}, s39")
    for i in range(7):
        e(f"""v_cmp_gt_u32 vcc, s{48+i}, v1
        s_and_saveexec_b64 s[30:31], vcc
        ds_read_b32 v{R+i}, v{CI+i} offset:{OX}
        s_mov_b64 exec, s[30:31]""")
    e(f"""s_cmp_ge_u32 s22, 4
    s_cbranch_scc1 {P}_NP1
    v_cmp_gt_u32 vcc, 196, v0
    s_and_saveexec_b64 s[32:33], vcc
    s_cbranch_execz {P}_NP0
    v_mov_b32 v72, {ZSI}""")
    for k in range(3):
        e(f"""v_and_b32 v73, 1, v{48+k}
        v_cmp_eq_u32 vcc, 1, v73
        v_add_u32 v73, v{64+k}, v{48+k}
        v_lshlrev_b32 v73, 1, v73
        v_add_u32 v73, s39, v73
        s_and_saveexec_b64 s[30:31], vcc
        ds_write_b16 v73, v72
        s_mov_b64 exec, s[30:31]""")
    e(f"{P}_NP0:\ns_mov_b64 exec, s[32:33]\n{P}_NP1:\ns_waitcnt lgkmcnt(0)")
    for i in range(7):
        e(f"""v_add_u32 v13, v{R+i}, v{RK+i}
        v_lshlrev_b32 v13, 1, v13
        v_add_u32 v13, s39, v13
        v_cmp_gt_u32 vcc, s{48+i}, v1
        s_and_saveexec_b64 s[30:31], vcc
        ds_write_b16 v13, v{VL+i}
        s_mov_b64 exec, s[30:31]""")
    remainder(2)
    e(f"""s_waitcnt lgkmcnt(0)
    s_barrier
    v_lshlrev_b32 v4, 4, v0
    v_cmp_gt_u32 vcc, s38, v4
    s_and_saveexec_b64 s[30:31], vcc
    s_cbranch_execz {P}_END
    ds_read_b128 v[8:11], v4 offset:{ES}
    s_lshl_b32 s18, s29, 1
    s_lshl_b32 s3, s26, 1
    s_waitcnt lgkmcnt(0)
    buffer_store_dwordx4 v[8:11], v4, s[16:19], s3 offen
    """)
    tstamp(e,6)
    if TSK: e("s_waitcnt vmcnt(0)")
    tstamp(e,7)
    tdump(e,5,12)
    e(f"s_endpgm\n{P}_DIRECT:")
    e(f"""s_cmp_ge_u32 s22, 4
    s_cbranch_scc1 {P}_NQ1
    v_cmp_gt_u32 vcc, 196, v0
    s_and_saveexec_b64 s[32:33], vcc
    s_cbranch_execz {P}_NQ0
    v_mov_b32 v72, {ZSI}
    v_mov_b32 v74, 0x7ffffff0""")
    for k in range(3):
        e(f"""v_and_b32 v73, 1, v{48+k}
        v_cmp_eq_u32 vcc, 1, v73
        v_add_u32 v73, v{64+k}, v{48+k}
        v_lshlrev_b32 v73, 1, v73
        v_cndmask_b32 v73, v74, v73, vcc
        buffer_store_short v72, v73, s[16:19], 0 offen""")
    e(f"{P}_NQ0:\ns_mov_b64 exec, s[32:33]\n{P}_NQ1:")
    for i in range(7):
        e(f"""v_cmp_gt_u32 vcc, s{48+i}, v1
        s_and_saveexec_b64 s[30:31], vcc
        ds_read_b32 v{R+i}, v{CI+i} offset:{OX}
        s_mov_b64 exec, s[30:31]""")
    e("s_waitcnt lgkmcnt(0)\nv_mov_b32 v94, 0x7ffffff0")
    for i in range(7):
        e(f"""v_add_u32 v13, v{R+i}, v{RK+i}
        v_lshlrev_b32 v13, 1, v13
        v_cmp_gt_u32 vcc, s{48+i}, v1
        s_nop 1
        v_cndmask_b32 v13, v94, v13, vcc
        buffer_store_short v{VL+i}, v13, s[16:19], 0 offen""")
    remainder(True)
    e("s_endpgm")
XW=16
P_WM=128; P_WU=129; P_SW=130; P_X0=131; P_GRID=P_X0+(1563+XW-1)//XW
P_LDS=64*1024
def gen_prep():
    e=E(); head(e,P_GRID,'KP')
    e(f"""s_cmp_ge_u32 s2, {P_X0}
    s_cbranch_scc1 KP_X
    s_cmp_eq_u32 s2, {P_WM}
    s_cbranch_scc1 KP_WM
    s_cmp_eq_u32 s2, {P_WU}
    s_cbranch_scc1 KP_WU
    s_cmp_eq_u32 s2, {P_SW}
    s_cbranch_scc1 KP_SW
    s_cmp_ge_u32 s2, {NCH}
    s_cbranch_scc1 KP_CSR""")
    role_chunk(e,'KC',True)
    e("KP_CSR:"); role_csr(e,'KP',True)
    e("KP_X:"); role_x(e,'KP',P_X0,0,1563,XW,True,True)
    e("KP_SW:"); role_sw(e,'KP')
    e("KP_WM:"); role_wm(e)
    e("KP_WU:"); role_wu(e)
    e("KP_END:")
    return e.text(),128,88
K1_XWG0=103; K1_GRID=K1_XWG0+(1563+XW-1)//XW
K2_GRID=128
K1_LDS=64*1024; K2_LDS=28*1024
def gen_k1():
    e=E(); head(e,K1_GRID,'K1')
    e(f"s_cmp_ge_u32 s2, {K1_XWG0}\ns_cbranch_scc1 K1_X\ns_cmp_eq_u32 s2, 100\ns_cbranch_scc1 K1_WM\ns_cmp_eq_u32 s2, 101\ns_cbranch_scc1 K1_WU\ns_cmp_eq_u32 s2, 102\ns_cbranch_scc1 K1_SW")
    role_chunk(e,'K1')
    e("K1_X:"); role_x(e,'K1',K1_XWG0,0,1563,XW,True,True)
    e("K1_SW:"); role_sw(e,'K1')
    e("K1_WM:"); role_wm(e)
    e("K1_WU:"); role_wu(e)
    e("K1_END:")
    return e.text(),128,40
def gen_k2():
    e=E(); head(e,K2_GRID,'K2')
    role_csr(e,'K2')
    e("K2_END:")
    return e.text(),104,88
```

```python
import sys
sys.path.insert(0,'dev')
from glib import *
from mkall import K
from prep import *; from k3 import *; from k4v3 import gen_k4,K4_LDS,K4_BLOCK
import prep as _p
_p.XTOUCH=True
L=[('prep_kernel',P_GRID,1024,P_LDS),('hops_kernel',256,1024,K3_LDS),('final_kernel',256,K4_BLOCK,K4_LDS)]
Ks=[K('prep_kernel',gen_prep),K('hops_kernel',gen_k3,PD=1,TMODE=0,EXP='prio notouch'),K('final_kernel',gen_k4)]
hdr=open('gather_scatter__hybrid_graph_tf_nagphormer__graph.s.ref').read().split('; Override launch')[0]
t=file_text(L,Ks)
out=hdr+t
dst=sys.argv[1] if len(sys.argv)>1 else 'gather_scatter__hybrid_graph_tf_nagphormer__graph.s'
open(dst,'w').write(out)
print(len(out))
```

```python
from glib import E
from layout import *
from prep import wave_scan, OFF_NINFO
RXS=[18,18,20]; RB=[0,18,36]; RT=56
ASG=[2, 15, 14, 0, 0, 1, 14, 6, 11, 4, 7, 9, 5, 3, 10, 10, 0, 3, 0, 12, 7, 13, 5, 12, 8, 9, 2, 5, 8, 3, 4, 13, 2, 15, 4, 1, 11, 6, 12, 8, 13, 11, 10, 7, 15, 9, 6, 1, 14]
BUF0=0; ZS=ZSA; STG=BUF1; DUMP=STG+25088
ECAP=131072; SA=131072; SB=SA+12544; HIST=SB+12544; MISC=HIST+4096
DP=MISC+128
SLOWF=MISC+132
BMAX=MISC+256
K3_LDS=BMAX+1024
FL_XC=OFF_FL+8192
def gen_k3(NH=7, TS=False, PD=2, FORCE_SLOW=False, FORCE_SLOWSYNC=False, DBG=False, GATE=True, TMODE=0, EXP=''):
    e=E()
    DS='' if 'dplain' in EXP else ' sc0' if 'dsc0' in EXP else ' nt' if 'dnt' in EXP else ' sc1'
    vL=2; vD=6; v16=10; vC=11; ACC=12; AC=28; DAT=32; TMP=56; CD=64; CO=68; IDX=72; NV=128
    ool=[]
    def stamp(idx):
        if not TS: return
        e(f"s_memtime s[62:63]\ns_waitcnt lgkmcnt(0)\ns_sub_u32 s{76+idx}, s62, s60")
    def pstamp(idx):
        if TS!=2: return
        e(f"s_memtime s[62:63]\ns_waitcnt lgkmcnt(0)\ns_sub_u32 s{82+idx}, s62, s60")
    def entdma(ks):
        for k in ks:
            e(f"s_add_u32 m0, s56, {k*16384}\ns_add_u32 s3, s50, {k*16384}\nbuffer_load_dwordx4 v{v16}, s[12:15], s3 offen lds")
    def hstamp(idx):
        if TS!=1: return
        lab=e.lab('HS')
        e(f"s_cmp_lg_u32 s68, 3\ns_cbranch_scc1 {lab}\ns_memtime s[62:63]\ns_waitcnt lgkmcnt(0)\ns_sub_u32 s{82+idx}, s62, s60\n{lab}:")
    e(f"""
    s_cmp_ge_u32 s2, 256
    s_cbranch_scc1 K3_END
    s_load_dwordx2 s[4:5], s[0:1], 88
    s_load_dwordx2 s[6:7], s[0:1], 24
    s_memtime s[60:61]
    s_and_b32 s20, s2, 7
    s_lshl_b32 s20, s20, 2
    s_lshr_b32 s3, s2, 3
    s_and_b32 s3, s3, 3
    s_add_u32 s20, s20, s3          ; g
    s_lshr_b32 s21, s2, 5           ; p
    v_lshrrev_b32 v{TMP}, 6, v0
    v_and_b32 v1, 63, v0
    s_getreg_b32 s44, hwreg(HW_REG_XCC_ID, 0, 4)
    v_readfirstlane_b32 s22, v{TMP}   ; wave
    s_mul_i32 s41, s21, {PN}
    s_waitcnt lgkmcnt(0)
    s_lshl_b32 s3, s20, 6
    s_add_u32 s45, s3, {FL_XC}
    s_lshl_b32 s3, s21, 2
    s_add_u32 s3, s3, s45
    s_add_u32 s44, s44, 1
    v_mov_b32 v2, s3
    v_mov_b32 v3, s44
    v_cmp_eq_u32 vcc, 0, v0
    s_and_saveexec_b64 s[30:31], vcc
    s_cbranch_execz K3_X1
    global_store_dword v2, v3, s[4:5] sc1
    K3_X1:
    s_mov_b64 exec, s[30:31]
    s_add_u32 s8, s4, {OFF_NOFF}
    s_addc_u32 s9, s5, 0
    s_mov_b32 s10, {25088*16}
    s_mov_b32 s11, 0x20000
    s_mov_b32 s16, s6
    s_mov_b32 s17, s7
    s_mov_b32 s18, {N*2}
    s_mov_b32 s19, 0x20000
    v_mov_b32 v2, s41
    v_lshlrev_b32 v2, 4, v2
    buffer_load_dword v4, v2, s[8:11], 0 offen
    v_add_u32 v3, {3135*16+12}, v2
    buffer_load_dword v5, v3, s[8:11], 0 offen
    v_add_u32 v2, s41, v0
    v_lshlrev_b32 v2, 4, v2
    v_add_u32 v3, 16384, v2
    v_add_u32 v6, 32768, v2
    v_add_u32 v7, 49152, v2
    s_add_u32 s12, s4, {OFF_NINFO}
    s_addc_u32 s13, s5, 0
    s_mov_b32 s14, {25088*16}
    s_mov_b32 s15, 0x20000
    buffer_load_dwordx4 v[12:15], v2, s[12:15], 0 offen
    buffer_load_dwordx4 v[16:19], v3, s[12:15], 0 offen
    buffer_load_dwordx4 v[20:23], v6, s[12:15], 0 offen
    buffer_load_dwordx4 v[24:27], v7, s[12:15], 0 offen
    s_mov_b32 s42, {PN}
    s_cmp_eq_u32 s21, 7
    s_cselect_b32 s42, {N-7*PN}, s42
    v_lshlrev_b32 v{TMP}, 1, v0
    v_add_u32 v{TMP+1}, 2048, v{TMP}
    """)
    for t in range(2):
        e(f"""
        v_add_u32 v{TMP+2}, s41, v{TMP+t}
        v_lshlrev_b32 v{CO+t}, 3, v{TMP+2}
        v_lshlrev_b32 v{TMP+2}, 1, v{TMP+2}
        v_cmp_gt_u32 vcc, s42, v{TMP+t}
        v_mov_b32 v{TMP+3}, 0x7ffffff0
        s_nop 0
        v_cndmask_b32 v{CO+t}, v{TMP+3}, v{CO+t}, vcc
        v_cndmask_b32 v{TMP+2}, v{TMP+3}, v{TMP+2}, vcc
        buffer_load_dword v{CD+2*t}, v{TMP+2}, s[16:19], 0 offen
        """)
    e(f"""
    """)
    if 'notouch' not in EXP: e(f"""
    s_add_u32 s3, s20, 32
    s_mul_i32 s3, s3, {TS_STRIDE}
    s_lshl_b32 s28, s41, 3
    s_add_u32 s3, s3, s28
    v_lshlrev_b32 v{TMP+2}, 7, v0
    v_add_u32 v{TMP+2}, s3, v{TMP+2}
    v_cmp_gt_u32 vcc, 196, v0
    v_mov_b32 v{TMP+3}, 0x7ffffff0
    s_add_u32 s52, s4, {OFF_G}
    s_addc_u32 s53, s5, 0
    s_mov_b32 s54, {2*32*TS_STRIDE}
    s_mov_b32 s55, 0x20000
    v_cndmask_b32 v{TMP+2}, v{TMP+3}, v{TMP+2}, vcc
    buffer_load_dword v{TMP+3}, v{TMP+2}, s[52:55], 0 offen
    """)
    e(f"""
    """)
    if 'touch0' in EXP:
        e(f"v_subrev_u32 v{TMP+2}, {32*TS_STRIDE}, v{TMP+2}\nbuffer_load_dword v{TMP+3}, v{TMP+2}, s[52:55], 0 offen")
    e(f"""
    v_lshlrev_b32 v6, 2, v0
    v_mov_b32 v7, 0
    v_add_u32 v6, {HIST}, v6
    ds_write_b32 v6, v7
    v_mov_b32 v8, {SLOWF}
    ds_write_b32 v8, v7
    v_mov_b32 v7, {ZSI|(ZSI<<16)}
    v_mov_b32 v8, {DP}
    ds_write_b32 v8, v7
    v_lshlrev_b32 v{v16}, 4, v1
    s_waitcnt lgkmcnt(0)
    s_barrier
    s_waitcnt vmcnt({6+(0 if 'notouch' in EXP else 1)+(1 if 'touch0' in EXP else 0)})
    v_readfirstlane_b32 s46, v4
    v_readfirstlane_b32 s47, v5
    s_add_u32 s12, s4, {OFF_ENT}
    s_addc_u32 s13, s5, 0
    s_mov_b32 s15, 0x20000
    s_sub_u32 s48, s47, s46
    s_lshl_b32 s48, s48, 1            ; bytes
    s_lshl_b32 s14, s47, 1
    s_cmp_gt_u32 s48, {ECAP}
    s_cselect_b32 s49, 1, 0
    s_cselect_b32 s14, 0, s14
    s_lshl_b32 s50, s46, 1
    s_lshl_b32 s56, s22, 10
    s_add_u32 s50, s50, s56
    """)
    stamp(0)
    KEY=28; RNK=32; PKA=36; PKB=40
    e(f"v_mov_b32 v44, 0\nv_mov_b32 v45, 1\ns_mov_b32 s51, {HIST}\nv_cmp_gt_u32 s[52:53], 64, v0")
    for r in range(4):
        e(f"s_waitcnt vmcnt({(3-r)+2+(0 if 'notouch' in EXP else 1)+(1 if 'touch0' in EXP else 0)})")
        b=12+4*r
        if r==3: e(f"v_cndmask_b32 v{b+3}, 0, v{b+3}, s[52:53]")
        e(f"""v_or_b32 v44, v44, v{b+3}
        v_subrev_u32 v49, s46, v{b}
        v_lshlrev_b32 v49, 12, v49
        v_add_u32 v50, {1024*r}, v0
        v_or_b32 v{PKA+r}, v49, v50
        v_mov_b32 v{PKB+r}, v{b+1}
        v_add_u32 v{KEY+r}, s51, v{b+2}""")
        if r==3: e("s_mov_b64 s[30:31], exec\ns_mov_b64 exec, s[52:53]\ns_cbranch_execz K3_H3")
        e(f"ds_add_rtn_u32 v{RNK+r}, v{KEY+r}, v45")
        if r==3: e("K3_H3:\ns_mov_b64 exec, s[30:31]")
    entdma((0,1,2))
    pstamp(0)
    e(f"""
    v_cmp_ne_u32 vcc, 0, v44
    s_cmp_lg_u64 vcc, 0
    s_cselect_b32 s3, 1, 0
    s_or_b32 s49, s49, s3
    s_waitcnt lgkmcnt(0)
    s_barrier
    """)
    pstamp(1)
    entdma((3,4,5))
    e(f"""
    v_lshlrev_b32 v6, 2, v0
    v_add_u32 v6, {HIST}, v6
    ds_read_b32 v7, v6
    s_waitcnt lgkmcnt(0)
    v_mov_b32 v8, v7
    """)
    wave_scan(e,8,9)
    e(f"""
    s_nop 1
    v_readlane_b32 s3, v8, 63
    s_lshl_b32 s28, s22, 2
    s_add_u32 s28, s28, {MISC}
    v_mov_b32 v9, s28
    v_mov_b32 v46, s3
    ds_write_b32 v9, v46
    s_waitcnt lgkmcnt(0)
    s_barrier
    """)
    entdma((6,7))
    e(f"""
    v_lshlrev_b32 v9, 2, v1
    v_add_u32 v9, {MISC}, v9
    v_cmp_gt_u32 vcc, 16, v1
    v_mov_b32 v46, 0
    s_and_saveexec_b64 s[30:31], vcc
    ds_read_b32 v46, v9
    s_mov_b64 exec, s[30:31]
    s_waitcnt lgkmcnt(0)
    v_cmp_gt_u32 vcc, s22, v1
    s_nop 1
    v_cndmask_b32 v46, 0, v46, vcc
    """)
    wave_scan(e,46,47)
    e(f"""
    s_nop 1
    v_readlane_b32 s3, v46, 63
    v_sub_u32 v8, v8, v7
    v_add_u32 v8, s3, v8
    ds_write_b32 v6, v8
    s_waitcnt lgkmcnt(0)
    s_barrier
    """)
    pstamp(2)
    for r in range(3): e(f"ds_read_b32 v{12+r}, v{KEY+r}")
    e("s_mov_b64 s[30:31], exec\ns_mov_b64 exec, s[52:53]\ns_cbranch_execz K3_H4a\nds_read_b32 v15, v31\nK3_H4a:\ns_mov_b64 exec, s[30:31]\ns_waitcnt lgkmcnt(0)")
    for r in range(4):
        if r==3: e("s_mov_b64 s[30:31], exec\ns_mov_b64 exec, s[52:53]\ns_cbranch_execz K3_H4")
        e(f"""v_add_u32 v46, v{12+r}, v{RNK+r}
        v_lshlrev_b32 v47, 2, v46
        v_add_u32 v47, {SA}, v47
        ds_write_b32 v47, v{PKA+r}
        ds_write_b32 v47, v{PKB+r} offset:12544
""")
        if r==3: e("K3_H4:\ns_mov_b64 exec, s[30:31]")
    pstamp(3)
    e(f"""
    s_cmp_eq_u32 s49, 0
    s_cbranch_scc1 K3_NOSF
    v_mov_b32 v46, {SLOWF}
    v_mov_b32 v47, 1
    ds_write_b32 v46, v47
    K3_NOSF:
    s_waitcnt vmcnt(0) lgkmcnt(0)
    s_barrier
    """)
    stamp(1)
    wb=[[] for _ in range(16)]
    for bi,w in enumerate(ASG): wb[w].append(bi)
    e("s_mov_b32 s3, 0")
    for w in range(16):
        nb=len(wb[w]); lst=[0]*(4-nb)+wb[w]
        val=nb|(lst[0]<<4)|(lst[1]<<10)|(lst[2]<<16)|(lst[3]<<22)
        e(f"s_cmp_eq_u32 s22, {w}\ns_cselect_b32 s3, {val:#x}, s3")
    e("""s_and_b32 s39, s3, 15
    s_sub_u32 s38, 4, s39
    s_bfe_u32 s28, s3, 0x60004
    s_bfe_u32 s29, s3, 0x6000a
    s_bfe_u32 s30, s3, 0x60010
    s_bfe_u32 s31, s3, 0x60016""")
    QA=32; QP=36
    BM=12
    for s in range(4):
        e(f"s_lshl_b32 s3, s{28+s}, 8\ns_add_u32 s3, s3, {SA}\nv_lshl_add_u32 v46, v1, 2, s3\nds_read_b32 v{QA+s}, v46\nds_read_b32 v{QP+s}, v46 offset:12544")
        pass
    e("s_waitcnt lgkmcnt(0)")
    for s in range(3):
        lab=e.lab('IV')
        e(f"s_cmp_le_u32 s38, {s}\ns_cbranch_scc1 {lab}\nv_mov_b32 v{QP+s}, 0\nv_mov_b32 v{QA+s}, 0xfff\n{lab}:")
    CNT=40
    for s in range(4):
        e(f"v_and_b32 v{CNT+s}, 0x3ff, v{QP+s}\nv_bfe_u32 v{CNT+4+s}, v{QP+s}, 10, 10\nv_bfe_u32 v{CNT+8+s}, v{QP+s}, 20, 10")
    for s_ in range(4): e(f"v_lshl_or_b32 v{BM+s_}, v{CNT+4+s_}, 16, v{CNT+s_}")
    e(f"v_lshl_or_b32 v{BM+4}, v{CNT+9}, 16, v{CNT+8}\nv_lshl_or_b32 v{BM+5}, v{CNT+11}, 16, v{CNT+10}")
    for s_ in range(4):
        if s_<3: e(f"s_cmp_le_u32 s38, {s_}\ns_cselect_b32 s{52+s_}, 0x00010001, 0")
        else: e("s_mov_b32 s55, 0x00010001")
    e("s_pack_ll_b32_b16 s56, s52, s53\ns_pack_ll_b32_b16 s57, s54, s55")
    for w in range(6): e(f"v_pk_max_u16 v{BM+w}, v{BM+w}, s{52+w}")
    for ctl in ("row_shr:1 row_mask:0xf bank_mask:0xf bound_ctrl:0","row_shr:2 row_mask:0xf bank_mask:0xf bound_ctrl:0","row_shr:4 row_mask:0xf bank_mask:0xf bound_ctrl:0","row_shr:8 row_mask:0xf bank_mask:0xf bound_ctrl:0","row_bcast:15 row_mask:0xa bank_mask:0xf","row_bcast:31 row_mask:0xc bank_mask:0xf"):
        for w in range(6): e(f"v_mov_b32 v{BM+6+w}, 0" if 'bcast' in ctl else "")
        for w in range(6): e(f"v_mov_b32_dpp v{BM+6+w}, v{BM+w} {ctl}")
        for w in range(6): e(f"v_pk_max_u16 v{BM+w}, v{BM+w}, v{BM+6+w}")
    for w in range(6): e(f"v_readlane_b32 s{52+w}, v{BM+w}, 63")
    pstamp(4)
    e("s_or_b32 s3, s52, s53\ns_or_b32 s3, s3, s54\ns_or_b32 s3, s3, s55\ns_or_b32 s3, s3, s56\ns_or_b32 s3, s3, s57\ns_and_b32 s3, s3, 0xffe0ffe0\ns_cselect_b32 s3, 1, 0\ns_or_b32 s49, s49, s3")
    packs=[("s_pack_ll_b32_b16 s64, s52, s54","s_pack_ll_b32_b16 s65, s53, s55"),
           ("s_pack_hh_b32_b16 s64, s52, s54","s_pack_hh_b32_b16 s65, s53, s55"),
           ("s_pack_ll_b32_b16 s64, s56, s57","s_pack_hh_b32_b16 s65, s56, s57")]
    for X in range(3):
        e(packs[X][0]); e(packs[X][1])
        e(f"""s_lshl_b32 s65, s65, 8
        s_or_b32 s64, s64, s65
        s_mul_i32 s64, s64, 0x01010101
        s_lshr_b32 s{32+X}, s64, 24
        s_add_u32 s64, s64, 0x1f1f1f1f
        s_mov_b32 s{35+X}, 0
        s_bitset1_b32 s{35+X}, s64
        s_lshr_b32 s65, s64, 8
        s_bitset1_b32 s{35+X}, s65
        s_lshr_b32 s65, s64, 16
        s_bitset1_b32 s{35+X}, s65
        s_lshr_b32 s65, s64, 24
        s_bitset1_b32 s{35+X}, s65
        s_cmp_gt_u32 s{32+X}, {RXS[X]}
        s_cselect_b32 s3, 1, 0
        s_or_b32 s49, s49, s3""")
    e("s_lshl_b32 s56, s22, 10")
    if FORCE_SLOW: e("s_mov_b32 s49, 1")
    e(f"""
    s_cmp_eq_u32 s49, 0
    s_cbranch_scc1 K3_NOSF2
    v_mov_b32 v52, {SLOWF}
    v_mov_b32 v53, 1
    ds_write_b32 v52, v53
    K3_NOSF2:
    """)
    pstamp(5)
    for b in range(4):
        e(f"""v_and_b32 v{vL+b}, 0xfff, v{QA+b}
        v_add_u32 v{vD+b}, s41, v{vL+b}
        v_lshlrev_b32 v{vD+b}, 1, v{vD+b}
        v_cmp_eq_u32 vcc, 0xfff, v{vL+b}
        v_mov_b32 v52, 0x7ffffff0
        s_nop 0
        v_cndmask_b32 v{vD+b}, v{vD+b}, v52, vcc
        buffer_load_ushort v{vD+b}, v{vD+b}, s[16:19], 0 offen""")
    for s_ in range(4): e(f"v_lshrrev_b32 v{28+s_}, 12, v{QA+s_}\nv_lshlrev_b32 v{28+s_}, 1, v{28+s_}")
    e(f"v_mov_b32 v60, {DP}\nv_mov_b32 v61, {ZSI|(ZSI<<16):#x}")
    pstamp(6)
    QAd=[54,55,56,57]; QEn=[62,63,64,65]
    QEn=[12,13,14,15]; QAd=[16,17,18,19]; CAa=[20,21]; CE=22; TT=23
    for X in range(3):
        for s_ in range(4):
            e(f"v_mov_b32 v{QAd[s_]}, v{28+s_}\nv_lshl_add_u32 v{28+s_}, v{CNT+4*X+s_}, 2, v{28+s_}\nv_mov_b32 v{QEn[s_]}, v{28+s_}")
        def shift():
            t=""
            for s_ in range(3): t+=f"v_mov_b32 v{QAd[s_]}, v{QAd[s_+1]}\nv_mov_b32 v{QEn[s_]}, v{QEn[s_+1]}\n"
            return t
        for s_ in range(3):
            lab=e.lab('IS'); e(f"s_cmp_le_u32 s38, {s_}\ns_cbranch_scc1 {lab}\n"+shift()+f"{lab}:")
        e(f"v_mov_b32 v{CAa[0]}, v{QAd[0]}\nv_mov_b32 v{CE}, v{QEn[0]}")
        for r in range(RXS[X]):
            ca=CAa[r%2]; cn=CAa[(r+1)%2]
            up=f"BU_{X}_{r}"; bk=f"BB_{X}_{r}"
            e(f"""v_cmp_lt_u32 vcc, v{ca}, v{CE}
            s_bitcmp1_b32 s{35+X}, {r}
            v_add_u32 v{cn}, 4, v{ca}
            v_cndmask_b32 v{TT}, v60, v{ca}, vcc
            ds_read_b32 v{IDX+RB[X]+r}, v{TT}
            s_cbranch_scc1 {up}
            {bk}:""")
            nxt=f"BF_{X}_{r+1}"
            ool.append(f"{up}:\ns_cmp_le_u32 s{32+X}, {r+1}\ns_cbranch_scc1 {nxt}\n"+shift()+f"v_mov_b32 v{cn}, v{QAd[0]}\nv_mov_b32 v{CE}, v{QEn[0]}\ns_branch {bk}\n")
            if r%8==7: e("s_waitcnt lgkmcnt(4)")
        e(f"s_branch BF_{X}_{RXS[X]}")
        fill=""
        for r in range(1,RXS[X]): fill+=f"BF_{X}_{r}:\nv_mov_b32 v{IDX+RB[X]+r}, v61\n"
        e(fill+f"BF_{X}_{RXS[X]}:")
        pstamp(7+X)
    e(f"""s_waitcnt lgkmcnt(0)
    s_barrier
    v_mov_b32 v52, {SLOWF}
    ds_read_b32 v53, v52
    s_waitcnt lgkmcnt(0)
    v_readfirstlane_b32 s49, v53
    s_cmp_eq_u32 s49, 0
    s_cbranch_scc1 K3_SETUP2
    s_waitcnt vmcnt(0)""")
    e("K3_SLOWSETUP:")
    for s in range(4):
        e(f"s_add_u32 s3, s22, {16*s}\ns_lshl_b32 s3, s3, 6\nv_add_u32 v{vL+s}, s3, v1\nv_cmp_gt_u32 vcc, {PN}, v{vL+s}\nv_mov_b32 v46, 0xfff\ns_nop 0\nv_cndmask_b32 v{vL+s}, v46, v{vL+s}, vcc")
    for b in range(4):
        e(f"""v_add_u32 v{vD+b}, s41, v{vL+b}
        v_lshlrev_b32 v{vD+b}, 1, v{vD+b}
        v_cmp_eq_u32 vcc, 0xfff, v{vL+b}
        v_mov_b32 v52, 0x7ffffff0
        s_nop 0
        v_cndmask_b32 v{vD+b}, v{vD+b}, v52, vcc
        buffer_load_ushort v{vD+b}, v{vD+b}, s[16:19], 0 offen""")
    e("K3_SETUP2:")
    if DBG:
        lab=e.lab('DG')
        e(f"s_cmp_lg_u32 s2, 0\ns_cbranch_scc1 {lab}\ns_mul_i32 s3, s22, {64*256}\ns_add_u32 s3, s3, {OFF_DBG+4096}\nv_lshlrev_b32 v58, 2, v1\nv_add_u32 v58, s3, v58")
        for r in range(RT): e(f"global_store_dword v58, v{IDX+r}, s[4:5] offset:0\nv_add_u32 v58, 256, v58")
        for s_ in range(4): e(f"global_store_dword v58, v{vL+s_}, s[4:5]\nv_add_u32 v58, 256, v58")
        for k in range(8): e(f"v_writelane_b32 v60, s{32+k}, {k}")
        e(f"v_writelane_b32 v60, s49, 8\nv_writelane_b32 v60, s46, 9\nv_writelane_b32 v60, s48, 10")
        e(f"global_store_dword v58, v60, s[4:5]\ns_waitcnt vmcnt(0)\n{lab}:")
    stamp(2)
    for b in range(4):
        e(f"""v_cmp_eq_u32 vcc, 0xfff, v{vL+b}
        v_lshlrev_b32 v{vL+b}, 3, v{vL+b}
        v_add_u32 v{vL+b}, {STG}, v{vL+b}
        v_mov_b32 v{TMP+1}, {DUMP}
        v_cndmask_b32 v{vL+b}, v{vL+b}, v{TMP+1}, vcc""")
    e(f"""
    v_and_b32 v70, 7, v1
    v_lshlrev_b32 v70, 2, v70
    v_add_u32 v70, s45, v70
    global_load_dword v71, v70, s[4:5] sc1
    s_mov_b32 s50, 2
    s_waitcnt vmcnt(1)
    """)
    for b in range(4): e(f"v_lshlrev_b32 v{vD+b}, 16, v{vD+b}")
    for t in range(2): e(f"v_and_b32 v{CD+2*t+1}, 0xffff0000, v{CD+2*t}\nv_lshlrev_b32 v{CD+2*t}, 16, v{CD+2*t}")
    e(f"""
    v_lshrrev_b32 v{TMP}, 4, v1
    v_bfe_u32 v{TMP+1}, v1, 2, 2
    v_and_b32 v{TMP+2}, 1, v1
    v_lshlrev_b32 v{TMP+2}, 4, v{TMP+2}
    v_mov_b32 v{TMP+3}, 0x3f80
    v_lshlrev_b32 v{TMP+3}, v{TMP+2}, v{TMP+3}
    v_cmp_eq_u32 vcc, v{TMP}, v{TMP+1}
    s_nop 1
    v_cndmask_b32 v{TMP+3}, 0, v{TMP+3}, vcc
    v_bfe_u32 v{TMP+2}, v1, 1, 1
    v_cmp_eq_u32 vcc, 0, v{TMP+2}
    v_mov_b32 v{TMP+4}, 0
    s_nop 0
    v_cndmask_b32 v{AC}, 0, v{TMP+3}, vcc
    v_cndmask_b32 v{AC+1}, v{TMP+3}, v{TMP+4}, vcc
    v_mov_b32 v{AC+2}, v{AC}
    v_mov_b32 v{AC+3}, v{AC+1}
    v_lshlrev_b32 v{vC}, 4, v0
    v_add_u32 v{vC}, {STG}, v{vC}
    v_lshlrev_b32 v{TMP+6}, 7, v0
    s_lshl_b32 s3, s41, 3
    v_add_u32 v{TMP+6}, s3, v{TMP+6}
    v_cmp_gt_u32 vcc, 196, v0
    v_mov_b32 v{TMP+5}, 0x7ffffff0
    s_nop 0
    v_cndmask_b32 v{TMP+6}, v{TMP+5}, v{TMP+6}, vcc
    s_lshl_b32 s3, s20, 8
    s_add_u32 s66, s3, {OFF_FL}
    s_lshl_b32 s3, s21, 5
    s_add_u32 s67, s66, s3
    s_mov_b32 s11, 0x20000
    s_mov_b32 s15, 0x20000
    s_mov_b32 s27, 0x20000
    s_mov_b32 s10, {TS_STRIDE}
    s_mov_b32 s14, {N*8}
    s_mov_b32 s26, {N*8}
    s_mov_b32 s23, 0
    s_lshl_b32 s56, s22, 10
    s_mov_b32 s51, 0xffff0000
    v_mov_b32 v{TMP}, {ZS}
    v_mov_b32 v{TMP+2}, 0
    v_mov_b32 v{TMP+3}, 0
    ds_write_b64 v{TMP}, v[{TMP+2}:{TMP+3}]
    s_waitcnt lgkmcnt(0)
    """)
    stamp(3)
    e("K3_HOP:")
    if TS: e("s_mov_b32 s68, s23")
    e(f"""
    s_and_b32 s69, s23, 1
    s_lshl_b32 s3, s69, 5
    s_add_u32 s3, s3, s20
    s_mul_i32 s3, s3, {TS_STRIDE}
    s_add_u32 s8, s4, s3
    s_addc_u32 s9, s5, 0
    s_xor_b32 s69, s69, 1
    s_lshl_b32 s3, s69, 5
    s_add_u32 s3, s3, s20
    s_mul_i32 s3, s3, {TS_STRIDE}
    s_add_u32 s12, s4, s3
    s_addc_u32 s13, s5, 0
    s_add_u32 s3, s23, 1
    s_lshl_b32 s3, s3, 5
    s_add_u32 s3, s3, s20
    s_mul_i32 s3, s3, {TS_STRIDE}
    s_add_u32 s3, s3, {OFF_T}
    s_add_u32 s24, s4, s3
    s_addc_u32 s25, s5, 0
    s_cmp_lg_u32 s49, 0
    s_cbranch_scc1 K3_SLOWHOP
    """)
    def dma(goff, nins, ldsbase):
        rounds=(nins+15)//16
        for r in range(rounds):
            lab=None
            if (r+1)*16>nins:
                lab=e.lab('DS'); e(f"s_cmp_ge_u32 s22, {nins-r*16}\ns_cbranch_scc1 {lab}")
            e(f"s_lshl_b32 s3, s22, 10\ns_add_u32 m0, s3, {ldsbase+r*16384}\ns_add_u32 s3, s3, {goff+r*16384}\nbuffer_load_dwordx4 v{v16}, s[8:11], s3 offen{DS} lds")
            if lab: e(f"{lab}:")
    hstamp(0)
    dma(0,NA,BUF0)
    for i in range(16): e(f"v_mov_b32 v{ACC+i}, 0")
    def issue(X,g):
        s=g%(PD+1); out=[]
        for k in range(2):
            rr=IDX+RB[X]+2*g+k
            out.append(f"v_lshlrev_b32_sdwa v{TMP+2*k}, 3, v{rr} dst_sel:DWORD dst_unused:UNUSED_PAD src0_sel:DWORD src1_sel:WORD_0")
            if 'halfsdwa' not in EXP: out.append(f"v_lshlrev_b32_sdwa v{TMP+2*k+1}, 3, v{rr} dst_sel:DWORD dst_unused:UNUSED_PAD src0_sel:DWORD src1_sel:WORD_1")
        for k in range(2):
            d=DAT+8*s+4*k
            out.append(f"ds_read_b64 v[{d}:{d+1}], v{TMP+2*k}")
            out.append(f"ds_read_b64 v[{d+2}:{d+3}], v{TMP+2*k+1}")
        return out
    def dma1(k,goff,ldsbase,nins=None):
        return [f"s_add_u32 m0, s56, {ldsbase+k*16384}",f"s_add_u32 s3, s56, {goff+k*16384}",f"buffer_load_dwordx4 v{v16}, s[8:11], s3 offen{DS} lds"]
    def phase(X):
        RX=RXS[X]; NG=RX//2
        nd={0:(TH1*8,BUF1,NB),1:(TH2*8,BUF0,NC)}.get(X)
        e(f"s_mov_b32 s54, s{35+X}")
        if 'prio' in EXP: e("s_setprio 3")
        for g in range(PD): e("\n".join(issue(X,g)))
        if nd:
            rem=nd[2]-64
            lab=e.lab('DR'); e(f"s_cmp_ge_u32 s22, {rem}\ns_cbranch_scc1 {lab}\n"+"\n".join(dma1(4,*nd))+f"\n{lab}:")
        def mfma(b,r):
            d=DAT+8*((r//2)%(PD+1))+4*(r%2)
            return f"v_mfma_f32_16x16x32_bf16 v[{ACC+4*b}:{ACC+4*b+3}], v[{AC}:{AC+3}], v[{d}:{d+3}], v[{ACC+4*b}:{ACC+4*b+3}]"
        def body(b):
            out=[]; tail=[]
            for r in range(RX):
                g=r//2
                out.append(f"E_{X}_{b}_{r}:")
                if 'prio' in EXP and r in (4,8,12): out.append(f"s_setprio {2-(r//4-1)}")
                if r%2==0:
                    if g+PD<NG:
                        if b==3 and GATE:
                            out.append(f"s_cmp_le_u32 s{32+X}, {2*(g+PD)}")
                            out.append(f"s_cbranch_scc1 T_{X}_{r}")
                            tl=[f"T_{X}_{r}:"]
                            if nd and g<4: tl+=dma1(g,*nd)
                            tl+= ["s_waitcnt lgkmcnt(0)",f"s_branch M_{X}_{r}"]
                            tail+=tl
                        out+=issue(X,g+PD)
                        if nd and g<4: out+=dma1(g,*nd)
                        out.append(f"s_waitcnt lgkmcnt({4*PD})")
                        if b==3 and GATE: out.append(f"M_{X}_{r}:")
                    else:
                        if nd and g<4: out+=dma1(g,*nd)
                        out.append(f"s_waitcnt lgkmcnt({0 if (b==3 and GATE) else 4*(NG-1-g)})")
                out.append(mfma(b,r))
                if r<RX-1 and not ('nochk' in EXP and r%2==0):
                    out.append(f"s_bitcmp1_b32 s54, {r}")
                    out.append(f"s_cbranch_scc1 E_{X}_{b+1}_{r+1}" if b<3 else f"s_cbranch_scc1 PE_{X}")
            out.append(f"s_branch PE_{X}")
            return "\n".join(out+tail)+"\n"
        for b in range(1,4): e(f"s_cmp_eq_u32 s38, {b}"); e(f"s_cbranch_scc1 E_{X}_{b}_0")
        e(body(0))
        for b in range(1,4): ool.append(body(b))
        e(f"PE_{X}:")
        if 'prio' in EXP: e("s_setprio 0")
        if nd:
            for k in range(1,4):
                lab=e.lab('DR')
                e(f"s_cmp_gt_u32 s{32+X}, {2*k}\ns_cbranch_scc1 {lab}\n"+"\n".join(dma1(k,*nd))+f"\n{lab}:")
        e("s_waitcnt lgkmcnt(0)")
    e("s_waitcnt vmcnt(0)"); hstamp(1)
    e("s_barrier"); hstamp(2)
    phase(0); hstamp(3)
    e("s_waitcnt vmcnt(0)\ns_barrier"); hstamp(4)
    phase(1); hstamp(5)
    if 'ttouch' in EXP:
        e(f"buffer_load_dword v{TMP+7}, v{TMP+6}, s[24:27], 0 offen\ns_waitcnt vmcnt(1)\ns_barrier")
    else: e("s_waitcnt vmcnt(0)\ns_barrier")
    hstamp(6)
    phase(2); hstamp(7)
    e("K3_EPI:\ns_nop 7\ns_nop 1")
    for b in range(4):
        a=ACC+4*b; t=DAT+2*b
        for r in range(4): e(f"v_mul_f32 v{a+r}, v{a+r}, v{vD+b}")
        e(f"v_cvt_pk_bf16_f32 v{t}, v{a}, v{a+1}\nv_cvt_pk_bf16_f32 v{t+1}, v{a+2}, v{a+3}")
        e(f"ds_write_b64 v{vL+b}, v[{t}:{t+1}]")
    e("s_waitcnt lgkmcnt(0)\ns_barrier"); hstamp(8)
    e(f"ds_read_b128 v[{DAT}:{DAT+3}], v{vC}\nds_read_b128 v[{DAT+4}:{DAT+7}], v{vC} offset:16384")
    def tstores():
        for t in range(2):
            d=DAT+4*t
            e(f"buffer_store_dwordx4 v[{d}:{d+3}], v{CO+t}, s[24:27], 0 offen"+(" nt" if 'tnt' in EXP else " sc1" if 'tsc1' in EXP else " sc0 sc1" if 'tsc01' in EXP else ""))
    e(f"s_add_u32 s23, s23, 1\ns_cmp_ge_u32 s23, {NH}\ns_cbranch_scc1 K3_FIN")
    for t in range(2):
        d=DAT+4*t; a=ACC+8*t; o=DAT+8+4*t
        e(f"s_waitcnt lgkmcnt({1-t})")
        for r in range(4):
            e(f"v_lshlrev_b32 v{a+2*r}, 16, v{d+r}\nv_and_b32 v{a+2*r+1}, s51, v{d+r}")
        for r in range(8): e(f"v_mul_f32 v{a+r}, v{a+r}, v{CD+2*t+(r//4)}")
        for r in range(4): e(f"v_cvt_pk_bf16_f32 v{o+r}, v{a+2*r}, v{a+2*r+1}")
    e(f"""s_cmp_lg_u32 s50, 2
    s_cbranch_scc1 K3_XD
    K3_XP:
    v_cmp_eq_u32 vcc, 0, v71
    s_cbranch_vccz K3_XE
    global_load_dword v71, v70, s[4:5] sc1
    s_waitcnt vmcnt(0)
    s_branch K3_XP
    K3_XE:
    v_cmp_ne_u32 vcc, s44, v71
    s_cmp_lg_u64 vcc, 0
    s_cselect_b32 s50, 1, 0""")
    if FORCE_SLOWSYNC: e("s_mov_b32 s50, 1")
    e("K3_XD:")
    e("s_cmp_lg_u32 s50, 0\ns_cbranch_scc1 K3_GS1")
    for t in range(2):
        o=DAT+8+4*t; e(f"buffer_store_dwordx4 v[{o}:{o+3}], v{CO+t}, s[12:15], 0 offen")
    e("s_branch K3_GS2\nK3_GS1:")
    for t in range(2):
        o=DAT+8+4*t; e(f"buffer_store_dwordx4 v[{o}:{o+3}], v{CO+t}, s[12:15], 0 offen sc1")
    e("K3_GS2:\ns_waitcnt vmcnt(0) lgkmcnt(0)"); hstamp(9); e("s_barrier")
    if 'allpoll' in EXP:
        e(f"""
        s_cmp_lg_u32 s22, 0
        s_cbranch_scc1 K3_NF
        v_mov_b32 v{TMP}, s67
        v_mov_b32 v{TMP+1}, s23
        v_cmp_eq_u32 vcc, 0, v1
        s_and_saveexec_b64 s[30:31], vcc
        s_cmp_lg_u32 s50, 0
        s_cbranch_scc1 K3_FS1
        global_store_dword v{TMP}, v{TMP+1}, s[4:5]
        s_branch K3_FS2
        K3_FS1:
        global_store_dword v{TMP}, v{TMP+1}, s[4:5] sc1
        K3_FS2:
        s_mov_b64 exec, s[30:31]
        K3_NF:
        v_and_b32 v{TMP}, 7, v1
        v_lshlrev_b32 v{TMP}, 5, v{TMP}
        v_add_u32 v{TMP}, s66, v{TMP}
        K3_POLL:
        global_load_dword v{TMP+1}, v{TMP}, s[4:5] sc1
        s_waitcnt vmcnt(0)
        v_cmp_gt_u32 vcc, s23, v{TMP+1}
        s_cbranch_vccnz K3_POLL
        """)
        tstores(); hstamp(10)
    else:
        e("s_cmp_eq_u32 s22, 0\ns_cbranch_scc1 K3_W0")
        if TMODE==1: e("s_sleep 6")
        if TMODE in (0,1): tstores()
        e("s_branch K3_WAIT\nK3_W0:")
        e(f"""
        v_mov_b32 v{TMP}, s67
        v_mov_b32 v{TMP+1}, s23
        v_cmp_eq_u32 vcc, 0, v1
        s_and_saveexec_b64 s[30:31], vcc
        s_cmp_lg_u32 s50, 0
        s_cbranch_scc1 K3_FS1
        global_store_dword v{TMP}, v{TMP+1}, s[4:5]
        s_branch K3_FS2
        K3_FS1:
        global_store_dword v{TMP}, v{TMP+1}, s[4:5] sc1
        K3_FS2:
        s_mov_b64 exec, s[30:31]
        v_and_b32 v{TMP}, 7, v1
        v_lshlrev_b32 v{TMP}, 5, v{TMP}
        v_add_u32 v{TMP}, s66, v{TMP}
        K3_POLL:
        global_load_dword v{TMP+1}, v{TMP}, s[4:5] sc1
        s_waitcnt vmcnt(0)
        v_cmp_gt_u32 vcc, s23, v{TMP+1}
        s_cbranch_vccnz K3_POLL
        """)
        if TMODE in (0,1): tstores()
        e("K3_WAIT:\ns_barrier"); hstamp(10)
        if TMODE==2: tstores()
    if TS:
        lab=e.lab('TS')
        e(f"s_cmp_lg_u32 s68, 0\ns_cbranch_scc1 {lab}"); stamp(4); e(f"{lab}:")
    e("s_branch K3_HOP")
    e(f"""
    K3_SLOWHOP:
    s_add_u32 s52, s4, {OFF_NOFF}
    s_addc_u32 s53, s5, 0
    s_mov_b32 s54, {25088*16}
    s_mov_b32 s55, 0x20000
    s_add_u32 s56, s4, {OFF_ENT}
    s_addc_u32 s57, s5, 0
    s_mov_b32 s58, {ENT_BYTES}
    s_mov_b32 s59, 0x20000
    """)
    for s in range(4):
        L=e.lab('SL'); Lx=e.lab('SX')
        a=ACC+4*s
        e(f"""
        v_mov_b32 v{a}, 0
        v_mov_b32 v{a+1}, 0
        v_mov_b32 v{a+2}, 0
        v_mov_b32 v{a+3}, 0
        s_add_u32 s3, s22, {16*s}
        s_lshl_b32 s3, s3, 6
        v_add_u32 v{DAT}, s3, v1              ; local
        v_cmp_gt_u32 vcc, {PN}, v{DAT}
        s_and_saveexec_b64 s[30:31], vcc
        s_cbranch_execz {Lx}
        v_add_u32 v{DAT}, s41, v{DAT}
        v_lshlrev_b32 v{DAT}, 4, v{DAT}
        buffer_load_dwordx4 v[{DAT+4}:{DAT+7}], v{DAT}, s[52:55], 0 offen
        s_waitcnt vmcnt(0)
        v_mov_b32 v{DAT+1}, v{DAT+4}          ; pos
        {L}:
        v_cmp_lt_u32 vcc, v{DAT+1}, v{DAT+7}
        s_and_b64 exec, exec, vcc
        s_cbranch_execz {Lx}
        v_lshlrev_b32 v{DAT+2}, 1, v{DAT+1}
        buffer_load_ushort v{DAT+3}, v{DAT+2}, s[56:59], 0 offen
        s_waitcnt vmcnt(0)
        v_cmp_le_u32 vcc, v{DAT+5}, v{DAT+1}           ; pos>=offB
        v_subrev_u32 v{DAT+8}, {BADD}, v{DAT+3}
        s_nop 0
        v_cndmask_b32 v{DAT+9}, v{DAT+3}, v{DAT+8}, vcc
        v_cmp_le_u32 vcc, v{DAT+6}, v{DAT+1}           ; pos>=offC
        v_add_u32 v{DAT+8}, {TH2}, v{DAT+3}
        s_nop 0
        v_cndmask_b32 v{DAT+9}, v{DAT+9}, v{DAT+8}, vcc
        v_cmp_eq_u32 vcc, {ZSI}, v{DAT+3}
        v_lshlrev_b32 v{DAT+9}, 3, v{DAT+9}
        v_mov_b32 v{DAT+8}, 0x7ffffff0
        s_nop 0
        v_cndmask_b32 v{DAT+9}, v{DAT+9}, v{DAT+8}, vcc
        s_mov_b32 s10, {N*8}
        buffer_load_dwordx2 v[{DAT+10}:{DAT+11}], v{DAT+9}, s[8:11], 0 offen sc1
        s_waitcnt vmcnt(0)
        v_lshlrev_b32 v{DAT+12}, 16, v{DAT+10}
        v_and_b32 v{DAT+13}, s51, v{DAT+10}
        v_lshlrev_b32 v{DAT+14}, 16, v{DAT+11}
        v_and_b32 v{DAT+15}, s51, v{DAT+11}
        v_add_f32 v{a}, v{a}, v{DAT+12}
        v_add_f32 v{a+1}, v{a+1}, v{DAT+13}
        v_add_f32 v{a+2}, v{a+2}, v{DAT+14}
        v_add_f32 v{a+3}, v{a+3}, v{DAT+15}
        v_add_u32 v{DAT+1}, 1, v{DAT+1}
        s_branch {L}
        {Lx}:
        s_mov_b64 exec, s[30:31]
        """)
    e(f"s_mov_b32 s10, {TS_STRIDE}\ns_branch K3_EPI")
    for o in ool: e(o)
    e("K3_FIN:\ns_waitcnt lgkmcnt(0)")
    tstores()
    if TS:
        e(f"s_cmp_lg_u32 s2, 41\ns_cbranch_scc1 K3_END\ns_memtime s[62:63]\ns_waitcnt lgkmcnt(0)\ns_sub_u32 s81, s62, s60")
        for k in range(17): e(f"v_writelane_b32 v{TMP+7}, s{76+k}, {k}")
        e(f"s_lshl_b32 s3, s22, 7\ns_add_u32 s3, s3, {OFF_DBG}\nv_lshlrev_b32 v{TMP+6}, 2, v1\nv_add_u32 v{TMP+6}, s3, v{TMP+6}\nv_cmp_gt_u32 vcc, 17, v1\ns_and_saveexec_b64 s[30:31], vcc\nglobal_store_dword v{TMP+6}, v{TMP+7}, s[4:5]")
    e("K3_END:")
    return e.text(),NV,102
```

```python
import sys
sys.path.insert(0,'dev')
from glib import *
import hazard
def K(name,gen,**kw):
    r=gen(**kw); b,vg,sg=r[:3]; ag=r[3] if len(r)>3 else 0
    b,n=hazard.fix(b); return kernel_text(name,b,vg,sg,ag)
if __name__=='__main__':
    from prep import *
    import prep as _p
    _p.XTOUCH=2 if 'xtouch2' in sys.argv else 'xtouch' in sys.argv
    for a in sys.argv:
        if a.startswith('xw'):
            _p.XW,_p.XWC=[int(x) for x in a[2:].split(',')]; _p.XC_TASKS=28*_p.XWC; _p.P_GRID=_p.P_X0+(1563-_p.XC_TASKS+_p.XW-1)//_p.XW
    what=sys.argv[1]
    if 'sep' in sys.argv:
        L=[('prep1_kernel',K1_GRID,1024,K1_LDS),('prep2_kernel',K2_GRID,1024,K2_LDS)]
        Ks=[K('prep1_kernel',gen_k1),K('prep2_kernel',gen_k2)]
    else:
        L=[('prep_kernel',_p.P_GRID,1024,P_LDS)]
        Ks=[K('prep_kernel',gen_prep)]
    if what in('123','all'):
        from k3 import *
        L.append(('hops_kernel',256,1024,K3_LDS)); Ks.append(K('hops_kernel',gen_k3,TS=(2 if 'tsp' in sys.argv else 1 if 'ts' in sys.argv else 0), DBG='dbg' in sys.argv, FORCE_SLOW='slow' in sys.argv, FORCE_SLOWSYNC='slowsync' in sys.argv, PD=(1 if 'pd1' in sys.argv else 2), GATE='nogate' not in sys.argv, TMODE=(1 if 't1' in sys.argv else 2 if 't2' in sys.argv else 0), EXP=' '.join(x for x in sys.argv if x in('nochk','halfsdwa','prio','touch','touch0','notouch','tnt','tsc1','tsc01','ttouch','dplain','dsc0','dnt','allpoll'))))
    if what=='all':
        if 'v3' in sys.argv: from k4v3 import gen_k4,K4_LDS,K4_BLOCK
        else: from k4v4 import gen_k4,K4_LDS,K4_BLOCK
        import sched
        if 'dsc8' in sys.argv: sched.DSC=8
        L.append(('final_kernel',256,K4_BLOCK,K4_LDS)); Ks.append(K('final_kernel',gen_k4,TS='ts4' in sys.argv,TSR=1,LDSLAT=(160 if 'dsc8' in sys.argv else 130)))
    open(sys.argv[2],'w').write(file_text(L,Ks))
```

```python
from glib import E
from layout import *
import struct
OFF_NINFO=OFF_FL+1024*1024
def wave_scan(e,v,tmp=None):
    for sh in (1,2,4,8):
        e(f"v_add_u32_dpp v{v}, v{v}, v{v} row_shr:{sh} row_mask:0xf bank_mask:0xf bound_ctrl:0")
    e(f"v_add_u32_dpp v{v}, v{v}, v{v} row_bcast:15 row_mask:0xa bank_mask:0xf")
    e(f"v_add_u32_dpp v{v}, v{v}, v{v} row_bcast:31 row_mask:0xc bank_mask:0xf")
def allred32_f32(e,v,tmp):
    e(f"v_add_f32_dpp v{v}, v{v}, v{v} quad_perm:[1,0,3,2] row_mask:0xf bank_mask:0xf")
    e(f"v_add_f32_dpp v{v}, v{v}, v{v} quad_perm:[2,3,0,1] row_mask:0xf bank_mask:0xf")
    e(f"v_add_f32_dpp v{v}, v{v}, v{v} row_half_mirror row_mask:0xf bank_mask:0xf")
    e(f"v_add_f32_dpp v{v}, v{v}, v{v} row_mirror row_mask:0xf bank_mask:0xf")
    e(f"v_mov_b32 v{tmp}, v{v}\nv_permlane16_swap_b32 v{v}, v{tmp}\nv_add_f32 v{v}, v{v}, v{tmp}")
def head(e,grid,P):
    e(f"""
    s_cmp_ge_u32 s2, {grid}
    s_cbranch_scc1 {P}_END
    s_load_dwordx2 s[4:5], s[0:1], 88      ; ws
    v_lshrrev_b32 v2, 6, v0
    v_and_b32 v1, 63, v0
    s_nop 0
    v_readfirstlane_b32 s22, v2
    """)
TSK=False
def tstamp(e,idx):
    if TSK: e(f"s_memrealtime s[62:63]\ns_waitcnt lgkmcnt(0)\ns_mov_b32 s{70+idx}, s62")
def tdump(e,wg,n):
    if not TSK: return
    lab=e.lab('TD')
    e(f"s_cmp_lg_u32 s2, {wg}\ns_cbranch_scc1 {lab}")
    for k in range(n): e(f"v_writelane_b32 v100, s{70+k}, {k}")
    e(f"s_lshl_b32 s3, s22, 6\ns_add_u32 s3, s3, {OFF_DBG}\nv_lshlrev_b32 v101, 2, v1\nv_add_u32 v101, s3, v101\nv_cmp_gt_u32 vcc, {n}, v1\ns_and_saveexec_b64 s[30:31], vcc\nglobal_store_dword v101, v100, s[4:5]\ns_mov_b64 exec, s[30:31]\n{lab}:")
def role_chunk(e,P,MERGED=False):
    SC=' sc1' if MERGED else ''
    tstamp(e,8)
    e(f"""
    s_load_dwordx4 s[8:11], s[0:1], 8
    s_mul_i32 s3, s2, {CHE*4}
    v_lshlrev_b32 v2, 4, v0
    v_add_u32 v2, s3, v2
    v_mov_b32 v3, 0
    v_lshlrev_b32 v4, 2, v0
    v_cmp_gt_u32 vcc, 128, v0
    s_and_saveexec_b64 s[30:31], vcc
    ds_write_b32 v4, v3
    s_mov_b64 exec, s[30:31]
    s_waitcnt lgkmcnt(0)
    s_mov_b32 s12, s8
    s_mov_b32 s13, s9
    s_mov_b32 s14, {EDG*4}
    s_mov_b32 s15, 0x20000
    s_mov_b32 s16, s10
    s_mov_b32 s17, s11
    s_mov_b32 s18, {EDG*4}
    s_mov_b32 s19, 0x20000
    v_cmp_gt_u32 vcc, {CHE//4}, v0
    s_and_saveexec_b64 s[30:31], vcc
    s_cbranch_execz {P}_C1
    buffer_load_dwordx4 v[8:11], v2, s[16:19], 0 offen     ; dst
    buffer_load_dwordx4 v[12:15], v2, s[12:15], 0 offen    ; src
    {P}_C1:
    s_mov_b64 exec, s[30:31]
    s_barrier
    s_mov_b32 s20, 21913099
    s_movk_i32 s21, 196
    s_and_saveexec_b64 s[30:31], vcc
    s_cbranch_execz {P}_C2
    s_waitcnt vmcnt(1)
    v_mov_b32 v3, 1
    """)
    for i in range(4):
        e(f"""v_mul_hi_u32 v{16+i}, v{8+i}, s20
        v_mul_lo_u32 v{20+i}, v{16+i}, s21
        v_sub_u32 v{20+i}, v{8+i}, v{20+i}
        v_lshlrev_b32 v{16+i}, 2, v{16+i}
        ds_add_rtn_u32 v{24+i}, v{16+i}, v3""")
    e(f"""
    {P}_C2:
    s_mov_b64 exec, s[30:31]
    s_waitcnt lgkmcnt(0)
    s_barrier
    s_cmp_lg_u32 s22, 0
    s_cbranch_scc1 {P}_C3
    v_lshlrev_b32 v4, 3, v1
    ds_read_b64 v[6:7], v4
    s_waitcnt lgkmcnt(0)
    v_add_u32 v5, v6, v7
    v_mov_b32 v28, v5
    """)
    wave_scan(e,28)
    e(f"""
    v_sub_u32 v28, v28, v5
    v_add_u32 v29, v28, v6
    ds_write_b64 v4, v[28:29] offset:1024
    v_mul_u32_u24 v5, {2*NCH*4}, v1
    s_lshl_b32 s3, s2, 2
    s_add_u32 s3, s3, {OFF_OFFS}
    v_add_u32 v5, s3, v5
    global_store_dword v5, v28, s[4:5]{SC}
    global_store_dword v5, v29, s[4:5] offset:{NCH*4}{SC}
    v_mov_b32 v6, {CHE}
    v_mov_b32 v5, s3
    v_add_u32 v5, {128*NCH*4}, v5
    v_cmp_eq_u32 vcc, 0, v1
    s_and_saveexec_b64 s[32:33], vcc
    global_store_dword v5, v6, s[4:5]{SC}
    s_mov_b64 exec, s[32:33]
    {P}_C3:
    s_waitcnt lgkmcnt(0)
    s_barrier
    v_cmp_gt_u32 vcc, {CHE//4}, v0
    s_and_saveexec_b64 s[30:31], vcc
    """)
    for i in range(4): e(f"ds_read_b32 v{28+i}, v{16+i} offset:1024")
    e("s_waitcnt vmcnt(0) lgkmcnt(0)")
    for i in range(4):
        e(f"""v_add_u32 v{28+i}, v{28+i}, v{24+i}
        v_lshlrev_b32 v{28+i}, 2, v{28+i}
        v_lshl_or_b32 v{12+i}, v{20+i}, 16, v{12+i}
        ds_write_b32 v{28+i}, v{12+i} offset:2048""")
    e(f"""s_mov_b64 exec, s[30:31]
    s_waitcnt lgkmcnt(0)
    s_barrier
    s_and_saveexec_b64 s[30:31], vcc
    s_cbranch_execz {P}_C4
    v_lshlrev_b32 v4, 4, v0
    ds_read_b128 v[8:11], v4 offset:2048
    s_mul_i32 s3, s2, {CHE*4}
    s_add_u32 s3, s3, {OFF_CH}
    v_add_u32 v4, s3, v4
    s_waitcnt lgkmcnt(0)
    global_store_dwordx4 v4, v[8:11], s[4:5]{SC}
    {P}_C4:
    s_mov_b64 exec, s[30:31]""")
    if not MERGED: e("s_endpgm"); return
    tstamp(e,9)
    e("s_waitcnt vmcnt(0)")
    tstamp(e,10)
    e(f"""s_barrier
    s_load_dwordx2 s[6:7], s[0:1], 80
    s_and_b32 s3, s2, 3
    s_lshl_b32 s3, s3, 5
    v_mov_b32 v4, s3
    v_mov_b32 v5, 1
    s_waitcnt lgkmcnt(0)
    v_cmp_eq_u32 vcc, 0, v0
    s_and_saveexec_b64 s[30:31], vcc
    s_cbranch_execz {P}_C5
    global_atomic_add v4, v5, s[6:7] sc1
    {P}_C5:
    s_mov_b64 exec, s[30:31]""")
def role_x(e,P,wg0,task0,task1,wpw,doG=True,doT=True,stride=0,nxt=None,tag='X'):
    EX=nxt or (P+'_END')
    e(f"""
    s_load_dwordx2 s[8:9], s[0:1], 0        ; x
    s_load_dwordx2 s[12:13], s[0:1], 24     ; dis
    s_cmp_ge_u32 s22, {wpw}
    s_cbranch_scc1 {EX}
    s_sub_u32 s3, s2, {wg0}
    s_mul_i32 s3, s3, {wpw}
    s_add_u32 s3, s3, s22
    s_add_u32 s40, s3, {task0}
    s_waitcnt lgkmcnt(0)
    {P}_{tag}L:
    s_cmp_ge_u32 s40, {task1}
    s_cbranch_scc1 {EX}
    s_lshl_b32 s20, s40, 4                   ; n0
    v_and_b32 v2, 15, v1
    v_add_u32 v2, s20, v2                   ; node
    v_lshrrev_b32 v3, 4, v1                 ; c4
    v_lshlrev_b32 v4, 8, v2
    v_lshl_add_u32 v4, v3, 4, v4
    v_lshlrev_b32 v5, 1, v2
    s_waitcnt lgkmcnt(0)
    s_mov_b32 s10, {N*256}
    s_mov_b32 s11, 0x20000
    s_mov_b32 s14, {N*2}
    s_mov_b32 s15, 0x20000
    """)
    e("buffer_load_ushort v6, v5, s[12:15], 0 offen")
    for i in range(4): e(f"buffer_load_dwordx4 v[{8+4*i}:{11+4*i}], v4, s[8:11], 0 offen offset:{64*i}")
    if XTOUCH and doG:
        e(f"""s_add_u32 s32, s4, {OFF_G+32*TS_STRIDE}
        s_addc_u32 s33, s5, 0
        s_mov_b32 s34, {32*TS_STRIDE}
        s_mov_b32 s35, 0x20000
        s_mov_b32 s21, {TS_STRIDE}
        v_mul_lo_u32 v72, v1, s21
        s_lshl_b32 s3, s20, 3
        v_add_u32 v72, s3, v72""")
        if XTOUCH==2:
            e("s_lshr_b32 s3, s20, 4\ns_and_b32 s3, s3, 63\ns_cmp_eq_u32 s3, 0\ns_cselect_b32 s34, s34, 0")
        e("buffer_load_dword v73, v72, s[32:35], 0 offen")
    e(f"""
    s_add_u32 s16, s4, {OFF_T}
    s_addc_u32 s17, s5, 0
    s_mov_b32 s18, {32*TS_STRIDE}
    s_mov_b32 s19, 0x20000
    s_add_u32 s24, s4, {OFF_G}
    s_addc_u32 s25, s5, 0
    s_mov_b32 s26, {32*TS_STRIDE}
    s_mov_b32 s27, 0x20000
    s_mov_b32 s21, {TS_STRIDE}
    v_and_b32 v7, 1, v1
    v_lshl_add_u32 v7, v3, 1, v7            ; 2*c4+parity
    v_mul_lo_u32 v7, v7, s21
    v_and_b32 v5, -2, v2
    v_lshl_add_u32 v7, v5, 3, v7
    s_mov_b32 s28, 0xffff0000
    s_mov_b32 s30, 0xaaaaaaaa
    s_mov_b32 s31, 0xaaaaaaaa
    s_waitcnt vmcnt({5 if (XTOUCH and doG) else 4})
    v_lshlrev_b32 v6, 16, v6
    """)
    def xch(d,o,t):
        e(f"""v_cndmask_b32 v{t}, v{d+2}, v{d}, s[30:31]
        v_cndmask_b32 v{t+1}, v{d+3}, v{d+1}, s[30:31]
        v_mov_b32_dpp v{t+2}, v{t} quad_perm:[1,0,3,2] row_mask:0xf bank_mask:0xf
        v_mov_b32_dpp v{t+3}, v{t+1} quad_perm:[1,0,3,2] row_mask:0xf bank_mask:0xf
        v_cndmask_b32 v{o}, v{d}, v{t+2}, s[30:31]
        v_cndmask_b32 v{o+1}, v{d+1}, v{t+3}, s[30:31]
        v_cndmask_b32 v{o+2}, v{t+2}, v{d+2}, s[30:31]
        v_cndmask_b32 v{o+3}, v{t+3}, v{d+3}, s[30:31]""")
    nst=int(doG)+int(doT)
    for i in range(4):
        b=8+4*i
        e(f"s_waitcnt vmcnt({(3-i)+nst*i+(1 if (XTOUCH and doG) else 0)})")
        e(f"s_mov_b32 s3, {8*i*TS_STRIDE}")
        if doG:
            for r in range(4):
                e(f"v_lshlrev_b32 v{24+2*r}, 16, v{b+r}\nv_and_b32 v{25+2*r}, s28, v{b+r}\nv_mul_f32 v{24+2*r}, v{24+2*r}, v6\nv_mul_f32 v{25+2*r}, v{25+2*r}, v6\nv_cvt_pk_bf16_f32 v{32+r}, v{24+2*r}, v{25+2*r}")
            xch(32,40+8*i,36)
            e(f"buffer_store_dwordx4 v[{40+8*i}:{43+8*i}], v7, s[24:27], s3 offen")
        if doT:
            xch(b,44+8*i,36)
            e(f"buffer_store_dwordx4 v[{44+8*i}:{47+8*i}], v7, s[16:19], s3 offen")
    if stride: e(f"s_add_u32 s40, s40, {stride}\ns_branch {P}_{tag}L")
    elif nxt: e(f"s_branch {nxt}")
    else: e("s_endpgm")
XTOUCH=False
ACC=64; CS=32768
def w_finish(e,center_right,scale,woff):
    e(f"v_add_f32 v8, v{ACC}, v{ACC+1}")
    for r in range(2,16): e(f"v_add_f32 v8, v8, v{ACC+r}")
    e("v_mov_b32 v12, v8\nv_permlane32_swap_b32 v8, v12\nv_add_f32 v8, v8, v12")
    e(f"v_and_b32 v13, 31, v1\nv_lshlrev_b32 v13, 2, v13\ns_lshl_b32 s3, s22, 7\nv_add_u32 v14, s3, v13\nds_write_b32 v14, v8 offset:{CS}")
    if center_right:
        e("v_add_f32 v9, v40, v41")
        for r in range(2,16): e(f"v_add_f32 v9, v9, v{40+r}")
        e("v_mov_b32 v12, v9\nv_permlane32_swap_b32 v9, v12\nv_add_f32 v9, v9, v12")
        e(f"v_bfe_u32 v14, v1, 2, 1\nv_lshlrev_b32 v14, 4, v14\nv_bfe_u32 v15, v1, 3, 2\nv_lshl_add_u32 v14, v15, 2, v14\nv_and_b32 v15, 3, v1\nv_add_u32 v14, v14, v15\nv_lshlrev_b32 v14, 2, v14\nv_add_u32 v14, s3, v14\nds_write_b32 v14, v9 offset:{CS+2048}")
    e("s_waitcnt lgkmcnt(0)\ns_barrier")
    e("s_and_b32 s3, s22, 3\ns_lshl_b32 s3, s3, 7\nv_add_u32 v14, s3, v13")
    for it in range(4): e(f"ds_read_b32 v{16+it}, v14 offset:{CS+512*it}")
    if center_right:
        e(f"v_lshlrev_b32 v15, 5, v1\nds_read_b128 v[20:23], v15 offset:{CS}\nds_read_b128 v[24:27], v15 offset:{CS+16}")
        e(f"s_lshr_b32 s3, s22, 2\ns_lshl_b32 s3, s3, 9\nv_lshrrev_b32 v15, 5, v1\nv_lshlrev_b32 v15, 6, v15\nv_add_u32 v15, s3, v15")
        for mt in range(4):
            for q in range(4): e(f"ds_read_b128 v[{84+16*(mt%2)+4*q}:{87+16*(mt%2)+4*q}], v15 offset:{CS+2048+128*mt+16*q}")
            if mt%2==1:
                e("s_waitcnt lgkmcnt(0)")
                for r in range(16):
                    if mt==1: e(f"v_add_f32 v{40+r}, v{84+r}, v{100+r}")
                    else: e(f"v_add_f32 v{84+r}, v{84+r}, v{100+r}\nv_add_f32 v{40+r}, v{40+r}, v{84+r}")
    e("s_waitcnt lgkmcnt(0)\ns_mov_b32 s3, 0x3c000000")
    e("v_add_f32 v8, v16, v17\nv_add_f32 v9, v18, v19\nv_add_f32 v8, v8, v9\nv_mul_f32 v8, s3, v8")
    if center_right:
        e("v_add_f32 v12, v20, v21")
        for k in range(2,8): e(f"v_add_f32 v12, v12, v{20+k}")
        allred32_f32(e,12,15)
        e("v_mov_b32 v15, v12\nv_permlane32_swap_b32 v12, v15\nv_add_f32 v12, v12, v15")
        e("v_mul_f32 v12, s3, v12\nv_mul_f32 v12, s3, v12\nv_sub_f32 v8, v8, v12")
        for r in range(16): e(f"v_fma_f32 v{40+r}, s3, v{40+r}, v8")
    e(f"s_mov_b32 s3, {scale:#x}")
    for r in range(16):
        a=ACC+r
        e(f"v_sub_f32 v{a}, v{a}, v{40+r}" if center_right else f"v_sub_f32 v{a}, v{a}, v8")
        if scale!=0x3f800000: e(f"v_mul_f32 v{a}, s3, v{a}")
    e(f"s_and_b32 s3, s22, 3\ns_lshl_b32 s3, s3, 13\ns_lshr_b32 s20, s22, 2\ns_lshl_b32 s20, s20, 11\ns_add_u32 s3, s3, s20\ns_add_u32 s3, s3, {OFF_W+woff}\nv_lshlrev_b32 v13, 4, v1\nv_add_u32 v13, s3, v13")
    for ee in range(2):
        for i in range(4): e(f"v_cvt_pk_bf16_f32 v{32+4*ee+i}, v{ACC+8*ee+2*i}, v{ACC+8*ee+2*i+1}")
        e(f"global_store_dwordx4 v13, v[{32+4*ee}:{35+4*ee}], s[4:5] offset:{ee*1024}")
    e("s_endpgm")
def rowaddr(e):
    e("""v_and_b32 v2, 0x13, v1
    v_bfe_u32 v3, v1, 2, 1
    v_lshl_or_b32 v2, v3, 3, v2
    v_bfe_u32 v3, v1, 3, 1
    v_lshl_or_b32 v2, v3, 2, v2
    v_lshlrev_b32 v3, 8, v2
    v_lshrrev_b32 v4, 5, v1
    v_lshl_add_u32 v3, v4, 4, v3""")
def two_srd(e,off):
    e(f"""s_load_dwordx4 s[8:11], s[0:1], {off}
    s_waitcnt lgkmcnt(0)
    s_mov_b32 s12, s8
    s_mov_b32 s13, s9
    s_mov_b32 s14, 32768
    s_mov_b32 s15, 0x20000
    s_mov_b32 s16, s10
    s_mov_b32 s17, s11
    s_mov_b32 s18, 32768
    s_mov_b32 s19, 0x20000""")
def stage(e,srd,ldsbase,r0):
    e(f"buffer_load_dwordx4 v[{r0}:{r0+3}], v90, {srd}, 0 offen\nbuffer_load_dwordx4 v[{r0+4}:{r0+7}], v91, {srd}, 0 offen")
def stage_addr(e):
    e("""v_lshlrev_b32 v90, 4, v0
    v_add_u32 v91, 16384, v90
    v_lshrrev_b32 v92, 4, v0
    v_and_b32 v93, 15, v92
    v_and_b32 v94, 15, v0
    v_xor_b32 v93, v93, v94
    v_lshlrev_b32 v93, 4, v93
    v_lshl_add_u32 v92, v92, 8, v93""")
def frag_addr(e,reg,tile_sreg):
    e(f"""v_and_b32 v2, 0x13, v1
    v_bfe_u32 v3, v1, 2, 1
    v_lshl_or_b32 v2, v3, 3, v2
    v_bfe_u32 v3, v1, 3, 1
    v_lshl_or_b32 v2, v3, 2, v2
    v_and_b32 v3, 15, v2
    v_lshrrev_b32 v4, 5, v1
    v_xor_b32 v{reg+1}, v3, v4
    v_lshlrev_b32 v{reg}, 8, v2
    v_add_u32 v{reg}, {tile_sreg}, v{reg}""")
def frag_read(e,dst,reg,es,base):
    e(f"v_xor_b32 v7, {2*es}, v{reg+1}\nv_lshl_add_u32 v7, v7, 4, v{reg}\nds_read_b128 v[{dst}:{dst+3}], v7 offset:{base}")
def role_wm(e):
    two_srd(e,32); stage_addr(e)
    stage(e,'s[12:15]',0,8); stage(e,'s[16:19]',32768,16)
    e("s_lshr_b32 s20, s22, 2\ns_lshl_b32 s20, s20, 13\ns_and_b32 s21, s22, 3\ns_lshl_b32 s21, s21, 13")
    frag_addr(e,56,'s20'); frag_addr(e,58,'s21')
    e("""s_waitcnt vmcnt(2)
    ds_write_b128 v92, v[8:11]
    ds_write_b128 v92, v[12:15] offset:16384
    s_waitcnt vmcnt(0)
    ds_write_b128 v92, v[16:19] offset:32768
    ds_write_b128 v92, v[20:23] offset:49152
    s_waitcnt lgkmcnt(0)
    s_barrier""")
    for es in range(8):
        frag_read(e,8+4*es,56,es,0); frag_read(e,84+4*es,58,es,32768)
        if es%4==3: e("s_waitcnt lgkmcnt(0)")
    e("s_barrier")
    for es in range(8):
        c="0" if es==0 else f"v[{ACC}:{ACC+15}]"
        e(f"v_mfma_f32_32x32x16_bf16 v[{ACC}:{ACC+15}], v[{8+4*es}:{11+4*es}], v[{84+4*es}:{87+4*es}], {c}")
        c="0" if es==0 else "v[40:55]"
        e(f"v_mfma_f32_32x32x16_bf16 v[40:55], v[{84+4*es}:{87+4*es}], v[{8+4*es}:{11+4*es}], {c}")
    sc=struct.unpack('<I',struct.pack('<f',1.4426950408889634/128**0.5))[0]
    w_finish(e,True,sc,0)
def role_wu(e):
    two_srd(e,48); stage_addr(e)
    stage(e,'s[12:15]',0,8); stage(e,'s[16:19]',32768,16)
    e("s_lshr_b32 s20, s22, 2\ns_lshl_b32 s20, s20, 13")
    frag_addr(e,56,'s20')
    e("""
    v_lshrrev_b32 v5, 5, v1
    v_lshlrev_b32 v5, 3, v5
    v_bfe_u32 v6, v1, 2, 2
    v_add_u32 v5, v5, v6
    v_lshlrev_b32 v5, 8, v5
    v_bfe_u32 v6, v1, 4, 1
    v_lshlrev_b32 v6, 4, v6
    v_and_b32 v7, 1, v1
    v_lshl_add_u32 v6, v7, 3, v6
    v_bfe_u32 v7, v1, 1, 1
    v_lshl_add_u32 v6, v7, 2, v6
    v_lshl_add_u32 v5, v6, 1, v5
    s_and_b32 s21, s22, 3
    s_lshl_b32 s21, s21, 6
    v_add_u32 v5, s21, v5
    s_waitcnt vmcnt(2)
    ds_write_b128 v92, v[8:11]
    ds_write_b128 v92, v[12:15] offset:16384
    s_waitcnt vmcnt(0)
    ds_write_b128 v90, v[16:19] offset:32768
    ds_write_b128 v91, v[20:23] offset:32768
    s_waitcnt lgkmcnt(0)
    s_barrier
    """)
    for es in range(8):
        frag_read(e,8+4*es,56,es,0)
        for jj in range(2):
            e(f"ds_read_b64_tr_b16 v[{84+4*es+2*jj}:{85+4*es+2*jj}], v5 offset:{32768+(16*es+4*jj)*256}")
        if es%4==3: e("s_waitcnt lgkmcnt(0)")
    e("s_barrier")
    for es in range(8):
        c="0" if es==0 else f"v[{ACC}:{ACC+15}]"
        e(f"v_mfma_f32_32x32x16_bf16 v[{ACC}:{ACC+15}], v[{8+4*es}:{11+4*es}], v[{84+4*es}:{87+4*es}], {c}")
    w_finish(e,False,0x3f800000,32768)
def role_sw(e,P):
    lg=struct.unpack('<I',struct.pack('<f',1.4426950408889634))[0]
    e(f"""
    s_load_dwordx2 s[8:9], s[0:1], 64       ; w_r
    v_mov_b32 v8, 0
    v_mov_b32 v9, 0
    v_mov_b32 v10, 0
    v_mov_b32 v11, 0
    v_lshlrev_b32 v2, 4, v0
    v_add_u32 v2, {OFF_FL}, v2
    s_waitcnt lgkmcnt(0)
    global_store_dwordx4 v2, v[8:11], s[4:5]
    s_cmp_lg_u32 s22, 0
    s_cbranch_scc1 {P}_SW2
    v_lshlrev_b32 v3, 2, v1
    global_load_dword v4, v3, s[8:9]
    s_waitcnt vmcnt(0)
    v_lshlrev_b32 v5, 16, v4
    v_and_b32 v6, 0xffff0000, v4
    v_add_f32 v7, v5, v6
    """)
    allred32_f32(e,7,12)
    e(f"""
    v_mov_b32 v12, v7
    v_permlane32_swap_b32 v7, v12
    v_add_f32 v7, v7, v12
    v_mul_f32 v7, 0x3c000000, v7
    v_sub_f32 v5, v5, v7
    v_sub_f32 v6, v6, v7
    v_mul_f32 v5, {lg:#x}, v5
    v_mul_f32 v6, {lg:#x}, v6
    v_cvt_pk_bf16_f32 v12, v5, v6
    v_lshlrev_b32 v13, 16, v12
    v_and_b32 v14, 0xffff0000, v12
    v_sub_f32 v5, v5, v13
    v_sub_f32 v6, v6, v14
    v_cvt_pk_bf16_f32 v13, v5, v6
    ds_write_b32 v3, v12 offset:256
    ds_write_b32 v3, v13 offset:512
    v_mov_b32 v12, 0x3f803f80
    v_mov_b32 v13, 0
    ds_write_b32 v3, v12
    ds_write_b32 v3, v13 offset:768
    {P}_SW2:
    s_waitcnt lgkmcnt(0)
    s_barrier
    s_cmp_ge_u32 s22, 8
    s_cbranch_scc1 {P}_END
    v_and_b32 v2, 3, v1
    v_lshlrev_b32 v2, 8, v2
    v_lshrrev_b32 v3, 5, v1
    v_lshl_add_u32 v2, v3, 4, v2
    s_lshl_b32 s3, s22, 5
    v_add_u32 v2, s3, v2
    ds_read_b128 v[8:11], v2
    v_bfe_u32 v3, v1, 4, 1
    v_bfe_u32 v4, v1, 2, 1
    v_cmp_eq_u32 vcc, v3, v4
    s_waitcnt lgkmcnt(0)
    v_cndmask_b32 v8, 0, v8, vcc
    v_cndmask_b32 v9, 0, v9, vcc
    v_cndmask_b32 v10, 0, v10, vcc
    v_cndmask_b32 v11, 0, v11, vcc
    s_lshl_b32 s3, s22, 10
    s_add_u32 s3, s3, {OFF_W+65536}
    v_lshlrev_b32 v2, 4, v1
    v_add_u32 v2, s3, v2
    global_store_dwordx4 v2, v[8:11], s[4:5]
    s_endpgm
    """)
def role_csr(e,P,MERGED=False):
    SC=' sc1' if MERGED else ''
    tstamp(e,0)
    if MERGED:
        e(f"""s_load_dwordx2 s[6:7], s[0:1], 80
        s_waitcnt lgkmcnt(0)
        s_cmp_lg_u32 s22, 0
        s_cbranch_scc1 {P}_W1
        s_cmp_lg_u32 s2, {NCH}
        s_cbranch_scc1 {P}_W2
        v_and_b32 v4, 3, v1
        v_lshlrev_b32 v4, 5, v4
        {P}_W0:
        global_load_dword v5, v4, s[6:7] sc1
        s_waitcnt vmcnt(0)
        v_cmp_gt_u32 vcc, {NCH//4}, v5
        s_cbranch_vccnz {P}_W0
        v_mov_b32 v4, 128
        v_mov_b32 v5, 1
        v_cmp_eq_u32 vcc, 0, v1
        s_and_saveexec_b64 s[30:31], vcc
        global_store_dword v4, v5, s[6:7] sc1
        s_mov_b64 exec, s[30:31]
        s_branch {P}_W1
        {P}_W2:
        v_mov_b32 v4, 128
        {P}_W3:
        global_load_dword v5, v4, s[6:7] sc1
        s_waitcnt vmcnt(0)
        v_cmp_eq_u32 vcc, 0, v5
        s_cbranch_vccnz {P}_W3
        {P}_W1:
        s_barrier""")
    tstamp(e,11)
    C1=0; C2=2560; CU=5120; OX=7680; WT=10240; ES=10496; ECAPB=16384
    e(f"""
    v_mov_b32 v3, 0
    v_lshlrev_b32 v4, 2, v0
    v_cmp_gt_u32 vcc, 640, v0
    s_and_saveexec_b64 s[30:31], vcc
    ds_write_b32 v4, v3 offset:{C1}
    ds_write_b32 v4, v3 offset:{C2}
    ds_write_b32 v4, v3 offset:{CU}
    s_mov_b64 exec, s[30:31]
    s_waitcnt lgkmcnt(0)
    s_add_u32 s8, s4, {OFF_OFFS}
    s_addc_u32 s9, s5, 0
    s_mov_b32 s10, {129*NCH*4}
    s_mov_b32 s11, 0x20000
    s_add_u32 s12, s4, {OFF_CH}
    s_addc_u32 s13, s5, 0
    s_mov_b32 s14, {EDG*4}
    s_mov_b32 s15, 0x20000
    s_add_u32 s16, s4, {OFF_ENT}
    s_addc_u32 s17, s5, 0
    s_mov_b32 s18, {ENT_BYTES}
    s_mov_b32 s19, 0x20000
    s_mul_i32 s3, s2, {NCH*4}
    v_lshlrev_b32 v5, 4, v1
    v_add_u32 v5, s22, v5                 ; seg
    v_cmp_gt_u32 vcc, {NCH}, v5
    v_cmp_gt_u32 s[32:33], 7, v1
    s_and_b64 vcc, vcc, s[32:33]
    v_lshlrev_b32 v6, 2, v5
    v_add_u32 v6, s3, v6
    v_mov_b32 v7, 0x7ffffff0
    s_nop 0
    v_cndmask_b32 v6, v7, v6, vcc
    buffer_load_dword v8, v6, s[8:11], 0 offen{SC}
    buffer_load_dword v9, v6, s[8:11], 0 offen offset:{NCH*4}{SC}
    v_lshlrev_b32 v10, 2, v1
    v_add_u32 v10, s3, v10
    buffer_load_dword v11, v10, s[8:11], 0 offen{SC}
    v_cmp_gt_u32 s[34:35], {NCH-64}, v1
    v_add_u32 v12, 256, v10
    v_cndmask_b32 v12, v7, v12, s[34:35]
    buffer_load_dword v12, v12, s[8:11], 0 offen{SC}
    s_waitcnt vmcnt(2)
    v_sub_u32 v9, v9, v8
    v_mul_u32_u24 v5, {CHE}, v5
    v_add_u32 v8, v8, v5
    """)
    tstamp(e,1)
    for i in range(7): e(f"v_readlane_b32 s{40+i}, v8, {i}\nv_readlane_b32 s{48+i}, v9, {i}")
    R=16
    for i in range(7):
        e(f"""v_add_u32 v13, s{40+i}, v1
        v_lshlrev_b32 v13, 2, v13
        v_cmp_gt_u32 vcc, s{48+i}, v1
        s_nop 1
        v_cndmask_b32 v13, v7, v13, vcc
        buffer_load_dword v{R+i}, v13, s[12:15], 0 offen{SC}""")
    e("s_waitcnt vmcnt(7)\nv_add_u32 v11, v11, v12")
    wave_scan(e,11)
    e("s_nop 1\nv_readlane_b32 s24, v11, 63\ns_barrier")
    tstamp(e,2)
    CI=24; RK=32; VL=40
    def decode(rec,ci,vl,t):
        e(f"""v_lshrrev_b32 v{ci}, 16, v{rec}
        v_and_b32 v{vl}, 0xffff, v{rec}
        v_cmp_le_u32 vcc, s28, v{vl}
        v_cmp_le_u32 s[36:37], s27, v{vl}
        v_mul_u32_u24 v{ci}, 3, v{ci}
        v_add_u32 v{t}, {BADD}, v{vl}
        v_subrev_u32 v{t+1}, {TH2}, v{vl}
        v_cndmask_b32 v{vl}, v{vl}, v{t}, vcc
        v_cndmask_b32 v{vl}, v{vl}, v{t+1}, s[36:37]
        v_addc_co_u32 v{ci}, vcc, 0, v{ci}, vcc
        v_addc_co_u32 v{ci}, vcc, 0, v{ci}, s[36:37]
        v_lshlrev_b32 v{ci}, 2, v{ci}""")
    e(f"v_mov_b32 v3, 1\ns_movk_i32 s27, {TH2}\ns_movk_i32 s28, {TH1}")
    for i in range(7):
        e(f"s_waitcnt vmcnt({6-i})")
        decode(R+i,CI+i,VL+i,14)
        e(f"""v_cmp_gt_u32 vcc, s{48+i}, v1
        s_and_saveexec_b64 s[30:31], vcc
        ds_add_rtn_u32 v{RK+i}, v{CI+i}, v3 offset:{C1}
        s_mov_b64 exec, s[30:31]""")
    def remainder(final):
        for i in range(7):
            L=e.lab(P+'RM'); Lx=e.lab(P+'RX')
            e(f"""s_cmp_le_u32 s{48+i}, 64
            s_cbranch_scc1 {Lx}
            s_mov_b32 s25, 64
            {L}:
            v_add_u32 v13, s25, v1
            v_cmp_gt_u32 vcc, s{48+i}, v13
            s_and_saveexec_b64 s[30:31], vcc
            s_cbranch_execz {L}_s
            v_add_u32 v13, s{40+i}, v13
            v_lshlrev_b32 v13, 2, v13
            buffer_load_dword v48, v13, s[12:15], 0 offen{SC}
            s_waitcnt vmcnt(0)""")
            decode(48,49,50,14)
            if not final: e(f"ds_add_u32 v49, v3 offset:{C2}")
            else:
                e(f"""ds_add_rtn_u32 v51, v49, v3 offset:{CU}
                ds_read_b32 v52, v49 offset:{OX}
                ds_read_b32 v53, v49 offset:{C1}
                s_waitcnt lgkmcnt(0)
                v_add3_u32 v51, v51, v52, v53
                v_lshlrev_b32 v51, 1, v51""")
                if final==2: e("v_add_u32 v51, s39, v51\nds_write_b16 v51, v50")
                else: e("buffer_store_short v50, v51, s[16:19], 0 offen")
            e(f"""{L}_s:
            s_mov_b64 exec, s[30:31]
            s_add_u32 s25, s25, 64
            s_cmp_lt_u32 s25, s{48+i}
            s_cbranch_scc1 {L}
            {Lx}:""")
    remainder(False)
    tstamp(e,3)
    e("s_waitcnt lgkmcnt(0)\ns_barrier")
    tstamp(e,4)
    e(f"""
    s_cmp_ge_u32 s22, 4
    s_cbranch_scc1 {P}_N1
    v_mul_u32_u24 v4, 12, v0
    ds_read_b32 v48, v4 offset:{C1}
    ds_read_b32 v49, v4 offset:{C1+4}
    ds_read_b32 v50, v4 offset:{C1+8}
    ds_read_b32 v51, v4 offset:{C2}
    ds_read_b32 v52, v4 offset:{C2+4}
    ds_read_b32 v53, v4 offset:{C2+8}
    v_cmp_gt_u32 vcc, 196, v0
    s_waitcnt lgkmcnt(0)
    """)
    for k in range(3):
        e(f"v_add_u32 v{48+k}, v{48+k}, v{51+k}\nv_cndmask_b32 v{48+k}, 0, v{48+k}, vcc\nv_add_u32 v{54+k}, 1, v{48+k}\nv_and_b32 v{54+k}, -2, v{54+k}")
    e("v_add3_u32 v57, v54, v55, v56\nv_mov_b32 v58, v57")
    wave_scan(e,58)
    e(f"""
    s_nop 1
    v_readlane_b32 s3, v58, 63
    s_lshl_b32 s25, s22, 2
    v_mov_b32 v59, s25
    v_mov_b32 v60, s3
    ds_write_b32 v59, v60 offset:{WT}
    {P}_N1:
    s_waitcnt lgkmcnt(0)
    s_barrier
    s_cmp_ge_u32 s22, 4
    s_cbranch_scc1 {P}_P2
    v_mov_b32 v59, 0
    ds_read_b128 v[60:63], v59 offset:{WT}
    v_sub_u32 v58, v58, v57
    s_mul_i32 s3, s2, 590
    s_add_u32 s3, s3, s24
    s_add_u32 s3, s3, 1
    s_and_b32 s26, s3, -2
    s_waitcnt lgkmcnt(0)
    v_readfirstlane_b32 s56, v60
    v_readfirstlane_b32 s57, v61
    v_readfirstlane_b32 s58, v62
    s_cmp_ge_u32 s22, 1
    s_cselect_b32 s56, s56, 0
    s_cmp_ge_u32 s22, 2
    s_cselect_b32 s57, s57, 0
    s_cmp_ge_u32 s22, 3
    s_cselect_b32 s58, s58, 0
    s_add_u32 s26, s26, s56
    s_add_u32 s26, s26, s57
    s_add_u32 s26, s26, s58
    v_add_u32 v64, s26, v58               ; offA
    v_add_u32 v65, v64, v54               ; offB
    v_add_u32 v66, v65, v55               ; offC
    v_add_u32 v67, v66, v56               ; end
    v_cmp_eq_u32 vcc, 0, v0
    s_and_saveexec_b64 s[30:31], vcc
    ds_write_b32 v59, v64 offset:{WT+16}
    s_mov_b64 exec, s[30:31]
    v_cmp_eq_u32 vcc, 195, v0
    s_and_saveexec_b64 s[30:31], vcc
    ds_write_b32 v59, v67 offset:{WT+20}
    s_mov_b64 exec, s[30:31]
    v_cmp_gt_u32 vcc, 196, v0
    s_and_saveexec_b64 s[30:31], vcc
    s_cbranch_execz {P}_N2
    ds_write_b32 v4, v64 offset:{OX}
    ds_write_b32 v4, v65 offset:{OX+4}
    ds_write_b32 v4, v66 offset:{OX+8}
    s_mul_i32 s3, s2, {196*16}
    v_lshlrev_b32 v5, 4, v0
    v_add_u32 v5, s3, v5
    v_add_u32 v6, {OFF_NOFF}, v5
    global_store_dwordx4 v6, v[64:67], s[4:5]
    v_lshrrev_b32 v54, 1, v54
    v_lshrrev_b32 v55, 1, v55
    v_lshrrev_b32 v56, 1, v56
    v_or3_b32 v71, v54, v55, v56
    v_lshrrev_b32 v71, 10, v71
    v_mov_b32 v68, v64
    v_lshl_or_b32 v69, v55, 10, v54
    v_lshl_or_b32 v69, v56, 20, v69
    v_min_u32 v55, 7, v55
    v_min_u32 v56, 7, v56
    v_min_u32 v54, 15, v54
    v_and_b32 v72, 1, v55
    v_sub_u32 v73, 7, v56
    v_cmp_eq_u32 vcc, 1, v72
    v_cndmask_b32 v56, v56, v73, vcc
    v_lshl_or_b32 v56, v55, 3, v56
    v_and_b32 v72, 1, v56
    v_sub_u32 v73, 15, v54
    v_cmp_eq_u32 vcc, 1, v72
    v_cndmask_b32 v54, v54, v73, vcc
    v_lshl_or_b32 v54, v56, 4, v54
    v_lshlrev_b32 v70, 2, v54
    v_add_u32 v6, {OFF_NINFO}, v5
    global_store_dwordx4 v6, v[68:71], s[4:5]
    """)
    e(f"""
    {P}_N2:
    s_mov_b64 exec, s[30:31]
    {P}_P2:
    s_waitcnt lgkmcnt(0)
    s_barrier
    """)
    tstamp(e,5)
    e(f"""
    v_mov_b32 v59, 0
    ds_read_b64 v[60:61], v59 offset:{WT+16}
    s_waitcnt lgkmcnt(0)
    v_readfirstlane_b32 s26, v60        ; EB
    v_readfirstlane_b32 s29, v61        ; end
    s_sub_u32 s38, s29, s26
    s_lshl_b32 s38, s38, 1              ; bytes
    s_cmp_gt_u32 s38, {ECAPB}
    s_cbranch_scc1 {P}_DIRECT
    """)
    e(f"s_lshl_b32 s39, s26, 1\ns_sub_u32 s39, {ES}, s39")
    for i in range(7):
        e(f"""v_cmp_gt_u32 vcc, s{48+i}, v1
        s_and_saveexec_b64 s[30:31], vcc
        ds_read_b32 v{R+i}, v{CI+i} offset:{OX}
        s_mov_b64 exec, s[30:31]""")
    e(f"""s_cmp_ge_u32 s22, 4
    s_cbranch_scc1 {P}_NP1
    v_cmp_gt_u32 vcc, 196, v0
    s_and_saveexec_b64 s[32:33], vcc
    s_cbranch_execz {P}_NP0
    v_mov_b32 v72, {ZSI}""")
    for k in range(3):
        e(f"""v_and_b32 v73, 1, v{48+k}
        v_cmp_eq_u32 vcc, 1, v73
        v_add_u32 v73, v{64+k}, v{48+k}
        v_lshlrev_b32 v73, 1, v73
        v_add_u32 v73, s39, v73
        s_and_saveexec_b64 s[30:31], vcc
        ds_write_b16 v73, v72
        s_mov_b64 exec, s[30:31]""")
    e(f"{P}_NP0:\ns_mov_b64 exec, s[32:33]\n{P}_NP1:\ns_waitcnt lgkmcnt(0)")
    for i in range(7):
        e(f"""v_add_u32 v13, v{R+i}, v{RK+i}
        v_lshlrev_b32 v13, 1, v13
        v_add_u32 v13, s39, v13
        v_cmp_gt_u32 vcc, s{48+i}, v1
        s_and_saveexec_b64 s[30:31], vcc
        ds_write_b16 v13, v{VL+i}
        s_mov_b64 exec, s[30:31]""")
    remainder(2)
    e(f"""s_waitcnt lgkmcnt(0)
    s_barrier
    v_lshlrev_b32 v4, 4, v0
    v_cmp_gt_u32 vcc, s38, v4
    s_and_saveexec_b64 s[30:31], vcc
    s_cbranch_execz {P}_END
    ds_read_b128 v[8:11], v4 offset:{ES}
    s_lshl_b32 s18, s29, 1
    s_lshl_b32 s3, s26, 1
    s_waitcnt lgkmcnt(0)
    buffer_store_dwordx4 v[8:11], v4, s[16:19], s3 offen
    """)
    tstamp(e,6)
    if TSK: e("s_waitcnt vmcnt(0)")
    tstamp(e,7)
    tdump(e,5,12)
    e(f"s_endpgm\n{P}_DIRECT:")
    e(f"""s_cmp_ge_u32 s22, 4
    s_cbranch_scc1 {P}_NQ1
    v_cmp_gt_u32 vcc, 196, v0
    s_and_saveexec_b64 s[32:33], vcc
    s_cbranch_execz {P}_NQ0
    v_mov_b32 v72, {ZSI}
    v_mov_b32 v74, 0x7ffffff0""")
    for k in range(3):
        e(f"""v_and_b32 v73, 1, v{48+k}
        v_cmp_eq_u32 vcc, 1, v73
        v_add_u32 v73, v{64+k}, v{48+k}
        v_lshlrev_b32 v73, 1, v73
        v_cndmask_b32 v73, v74, v73, vcc
        buffer_store_short v72, v73, s[16:19], 0 offen""")
    e(f"{P}_NQ0:\ns_mov_b64 exec, s[32:33]\n{P}_NQ1:")
    for i in range(7):
        e(f"""v_cmp_gt_u32 vcc, s{48+i}, v1
        s_and_saveexec_b64 s[30:31], vcc
        ds_read_b32 v{R+i}, v{CI+i} offset:{OX}
        s_mov_b64 exec, s[30:31]""")
    e("s_waitcnt lgkmcnt(0)\nv_mov_b32 v94, 0x7ffffff0")
    for i in range(7):
        e(f"""v_add_u32 v13, v{R+i}, v{RK+i}
        v_lshlrev_b32 v13, 1, v13
        v_cmp_gt_u32 vcc, s{48+i}, v1
        s_nop 1
        v_cndmask_b32 v13, v94, v13, vcc
        buffer_store_short v{VL+i}, v13, s[16:19], 0 offen""")
    remainder(True)
    e("s_endpgm")
XW=16; XWC=0
P_WM=128; P_WU=129; P_SW=130; P_X0=131
XC_TASKS=28*XWC
P_GRID=P_X0+(1563-XC_TASKS+XW-1)//XW
P_LDS=64*1024
def gen_prep():
    e=E(); head(e,P_GRID,'KP')
    e(f"""s_cmp_ge_u32 s2, {P_X0}
    s_cbranch_scc1 KP_X
    s_cmp_eq_u32 s2, {P_WM}
    s_cbranch_scc1 KP_WM
    s_cmp_eq_u32 s2, {P_WU}
    s_cbranch_scc1 KP_WU
    s_cmp_eq_u32 s2, {P_SW}
    s_cbranch_scc1 KP_SW
    s_cmp_ge_u32 s2, {NCH}
    s_cbranch_scc1 {'KP_XC' if XWC else 'KP_CSR'}""")
    role_chunk(e,'KC',True)
    e("KP_CSR:"); role_csr(e,'KP',True)
    if XWC: e("KP_XC:"); role_x(e,'KP',NCH,0,XC_TASKS,XWC,True,True,nxt='KP_CSR',tag='Y')
    e("KP_X:"); role_x(e,'KP',P_X0,XC_TASKS,1563,XW,True,True)
    e("KP_SW:"); role_sw(e,'KP')
    e("KP_WM:"); role_wm(e)
    e("KP_WU:"); role_wu(e)
    e("KP_END:")
    return e.text(),128,88
XW16=16
K1_XWG0=103; K1_GRID=K1_XWG0+(1563+15)//16
K2_GRID=128
K1_LDS=64*1024; K2_LDS=28*1024
def gen_k1():
    e=E(); head(e,K1_GRID,'K1')
    e(f"s_cmp_ge_u32 s2, {K1_XWG0}\ns_cbranch_scc1 K1_X\ns_cmp_eq_u32 s2, 100\ns_cbranch_scc1 K1_WM\ns_cmp_eq_u32 s2, 101\ns_cbranch_scc1 K1_WU\ns_cmp_eq_u32 s2, 102\ns_cbranch_scc1 K1_SW")
    role_chunk(e,'K1')
    e("K1_X:"); role_x(e,'K1',K1_XWG0,0,1563,16,True,True)
    e("K1_SW:"); role_sw(e,'K1')
    e("K1_WM:"); role_wm(e)
    e("K1_WU:"); role_wu(e)
    e("K1_END:")
    return e.text(),128,40
def gen_k2():
    e=E(); head(e,K2_GRID,'K2')
    role_csr(e,'K2')
    e("K2_END:")
    return e.text(),104,88
```

```python
import hazard
def info(line):
    p=hazard.parse(line); d=hazard.classify(*p)
    mn=p[0]
    r=set(d['r']); w=set(d['w'])
    if d['kind']=='salu' and mn.startswith(('s_add','s_sub','s_lshl','s_lshr','s_and','s_or','s_mul','s_cmp','s_bitcmp')) and not mn.startswith('s_mul'): w.add(('scc',0))
    if mn.startswith(('s_addc','s_cselect')): r.add(('scc',0))
    if d['kind'] in('valu','mfma','ds','vmem'): r.add(('exec',0))
    if mn.startswith('v_cndmask') and 'vcc' in line.split(';')[0]: r.add(('vcc',0))
    return d,r,w
M32=8; M16=8; DSC=4; LATX=22
def cost(d):
    k=d['kind']
    if k=='mfma': return M32 if d['passes']==8 else M16
    if k=='ds': return DSC
    if k=='valu' and (d.get('trans') or d.get('perml')): return 8
    return 4
def schedule(items, lds_lat=140, verbose=False, dma_gap=0):
    nodes=[]
    for it in items:
        lines=it if isinstance(it,list) else [it]
        ds=[info(l) for l in lines]
        r=set();w=set()
        for d,rr,ww in ds: r|=(rr-w); w|=ww
        d0=ds[-1][0]
        kind=d0['kind']
        for d,_,_ in ds:
            if d['kind'] in('mfma','ds','vmem'): kind=d['kind']; d0=d
        nodes.append(dict(lines=lines,r=r,w=w,d=d0,kind=kind,cost=sum(cost(d) for d,_,_ in ds),succ=[],pred=[]))
    lastw={}; readers={}
    def lat(p,s,typ,reg):
        dp=p['d']; k=p['kind']
        if typ=='raw':
            if k=='mfma':
                ps=dp['passes']
                if s['kind']=='mfma' and reg in s['d']['srcC'] and s['d']['w']==dp['w']: return ps*4
                return ps*4+LATX
            if k=='ds': return lds_lat
            if k=='vmem': return 4
            base=p['cost']
            if k=='valu':
                if s['kind']=='mfma' or s['d'].get('dpp') or s['d'].get('perml'): return base+8
                if dp['mn'].startswith('v_dot') and not s['d']['mn'].startswith('v_dot'): return base+12
                if reg[0] in('s','vcc'): return base+8
                if dp.get('trans'): return base+4
            return base
        if typ=='waw':
            if k=='mfma': return dp['passes']*4+LATX if s['kind']!='mfma' else dp['passes']*4
            if k=='ds': return lds_lat
            return p['cost']
        if typ=='war':
            if k=='mfma' and reg in dp['srcC'] and s['kind']=='valu': return dp['passes']*4
            if k=='mfma': return 8
            if k=='vmem' and reg in dp.get('stdata',set()): return 12
            return p['cost'] if False else 0
    def gap(p,s_,typ,reg):
        dp=p['d']; k=p['kind']
        if k=='mfma':
            ps=dp['passes']
            if typ=='raw':
                if s_['kind']=='mfma':
                    if reg in s_['d']['srcC']:
                        return 0 if s_['d']['w']==dp['w'] and s_['d']['passes']==ps else (6 if ps==4 else 10)
                    return 8 if ps==4 else 12
                return 8 if ps==4 else 12
            if typ=='waw' and s_['kind']!='mfma': return 8 if ps==4 else 12
            if typ=='war' and reg in dp['srcC'] and s_['kind']=='valu': return 3 if ps==4 else 7
        if k=='valu' and typ=='raw':
            if s_['kind']=='mfma' or s_['d'].get('dpp') or s_['d'].get('perml'): return 2
            if dp.get('trans') and s_['kind']=='valu' and not s_['d'].get('trans'): return 1
        return 0
    for i,n in enumerate(nodes):
        deps={}; gaps={}
        for reg in n['r']:
            if reg in lastw: j=lastw[reg]; deps[j]=max(deps.get(j,0),lat(nodes[j],n,'raw',reg)); gaps[j]=max(gaps.get(j,0),gap(nodes[j],n,'raw',reg))
        for reg in n['w']:
            if reg in lastw: j=lastw[reg]; deps[j]=max(deps.get(j,0),lat(nodes[j],n,'waw',reg)); gaps[j]=max(gaps.get(j,0),gap(nodes[j],n,'waw',reg))
            for j in readers.get(reg,[]):
                if j!=i: deps[j]=max(deps.get(j,0),lat(nodes[j],n,'war',reg)); gaps[j]=max(gaps.get(j,0),gap(nodes[j],n,'war',reg))
        for j,l in deps.items(): nodes[j]['succ'].append((i,l)); n['pred'].append((j,l)); nodes[j].setdefault('gaps',{})[i]=gaps.get(j,0)
        for reg in n['r']: readers.setdefault(reg,[]).append(i)
        for reg in n['w']: lastw[reg]=i; readers[reg]=[]
    prev=None
    for i,n in enumerate(nodes):
        if n['kind']=='vmem':
            if prev is not None:
                l=dma_gap if (nodes[prev]['d'].get('lds') and n['d'].get('lds')) else 4
                nodes[prev]['succ'].append((i,l)); n['pred'].append((prev,l))
            prev=i
    pr=[0]*len(nodes)
    for i in range(len(nodes)-1,-1,-1):
        n=nodes[i]; pr[i]=n['cost']+max([l+pr[j] for j,l in n['succ']],default=0)
        if n['d'].get('lds'): pr[i]+=100000
    npred=[len(n['pred']) for n in nodes]; ready_t=[0]*len(nodes)
    avail=[i for i in range(len(nodes)) if npred[i]==0]
    t=0; pipe=0; order=[]; cnt=0; ready_c=[0]*len(nodes)
    while avail:
        cand=[i for i in avail if ready_t[i]<=t and (nodes[i]['kind']!='mfma' or pipe<=t)]
        if not cand:
            t=min(max(ready_t[i], pipe if nodes[i]['kind']=='mfma' else 0) for i in avail); continue
        c2=[i for i in cand if ready_c[i]<=cnt]
        if c2: cand=c2
        else:
            alt=[i for i in avail if ready_c[i]<=cnt and i not in cand]
            need=min(ready_c[i]-cnt for i in cand)
            if alt:
                tt=min(max(ready_t[i], pipe if nodes[i]['kind']=='mfma' else 0) for i in alt)
                if tt-t<=4*need: t=tt; continue
            i=min(cand,key=lambda x:ready_c[x]); t+=4*(ready_c[i]-cnt); cnt=ready_c[i]; cand=[i]
        m=[i for i in cand if nodes[i]['kind']=='mfma']
        i=max(m,key=lambda x:pr[x]) if m else max(cand,key=lambda x:(pr[x],-x))
        n=nodes[i]; avail.remove(i); order.append(i); n['t']=t
        if n['kind']=='mfma': pipe=t+n['d']['passes']*4
        cnt+=len(n['lines'])
        for j,l in n['succ']:
            ready_t[j]=max(ready_t[j],t+l); npred[j]-=1
            ready_c[j]=max(ready_c[j],cnt+n.get('gaps',{}).get(j,0))
            if npred[j]==0: avail.append(j)
        t+=n['cost']
    if verbose: print('scheduled length',t,'cycles;',len(nodes),'nodes')
    if verbose==2:
        last=0
        for i in order:
            n=nodes[i]
            if n['kind']=='mfma':
                gap=n['t']-last
                if gap>0: print('  gap',gap,'before t=',n['t'],n['lines'][0][:70])
                last=n['t']+n['d']['passes']*4
    out=[]; q=[]; qt=[]
    for i in order:
        n=nodes[i]
        touch=n['r']|n['w']
        need=-1
        for j,dst in enumerate(q):
            if dst&touch: need=j
        if need>=0:
            while need+1<len(q) and qt[len(qt)-len(q)+need+1]+lds_lat<=n['t']: need+=1
            rem=len(q)-need-1
            out.append(f"s_waitcnt lgkmcnt({min(rem,15)})"); q=q[need+1:] if rem<=15 else q[len(q)-15:]
        for l in n['lines']: out.append(l)
        if n['kind']=='ds':
            if len(q)>=15:
                out.insert(len(out)-len(n['lines']),f"s_waitcnt lgkmcnt(14)"); q=q[len(q)-14:]
            q.append(set(n['w'])); qt.append(n['t'])
    return out,t
```

```python
from glib import E
from layout import *
from prep import wave_scan, OFF_NINFO
RXS=[18,18,20]; RB=[0,18,36]; RT=56
ASG=[2, 15, 14, 0, 0, 1, 14, 6, 11, 4, 7, 9, 5, 3, 10, 10, 0, 3, 0, 12, 7, 13, 5, 12, 8, 9, 2, 5, 8, 3, 4, 13, 2, 15, 4, 1, 11, 6, 12, 8, 13, 11, 10, 7, 15, 9, 6, 1, 14]
BUF0=0; ZS=ZSA; STG=BUF1; DUMP=STG+25088
ECAP=131072; SA=131072; SB=SA+12544; HIST=SB+12544; MISC=HIST+4096
DP=MISC+128
SLOWF=MISC+132
BMAX=MISC+256
K3_LDS=BMAX+1024
FL_XC=OFF_FL+8192
def gen_k3(NH=7, TS=False, PD=2, FORCE_SLOW=False, FORCE_SLOWSYNC=False, DBG=False, GATE=True, TMODE=0, EXP=''):
    e=E()
    DS='' if 'dplain' in EXP else ' sc0' if 'dsc0' in EXP else ' nt' if 'dnt' in EXP else ' sc1'
    vL=2; vD=6; v16=10; vC=11; ACC=12; AC=28; DAT=32; TMP=56; CD=64; CO=68; IDX=72; NV=128
    ool=[]
    def stamp(idx):
        if not TS: return
        e(f"s_memtime s[62:63]\ns_waitcnt lgkmcnt(0)\ns_sub_u32 s{76+idx}, s62, s60")
    def pstamp(idx):
        if TS!=2: return
        e(f"s_memtime s[62:63]\ns_waitcnt lgkmcnt(0)\ns_sub_u32 s{82+idx}, s62, s60")
    def entdma(ks):
        for k in ks:
            e(f"s_add_u32 m0, s56, {k*16384}\ns_add_u32 s3, s50, {k*16384}\nbuffer_load_dwordx4 v{v16}, s[12:15], s3 offen lds")
    def hstamp(idx):
        if TS!=1: return
        lab=e.lab('HS')
        e(f"s_cmp_lg_u32 s68, 3\ns_cbranch_scc1 {lab}\ns_memtime s[62:63]\ns_waitcnt lgkmcnt(0)\ns_sub_u32 s{82+idx}, s62, s60\n{lab}:")
    e(f"""
    s_cmp_ge_u32 s2, 256
    s_cbranch_scc1 K3_END
    s_load_dwordx2 s[4:5], s[0:1], 88
    s_load_dwordx2 s[6:7], s[0:1], 24
    s_memtime s[60:61]
    s_and_b32 s20, s2, 7
    s_lshl_b32 s20, s20, 2
    s_lshr_b32 s3, s2, 3
    s_and_b32 s3, s3, 3
    s_add_u32 s20, s20, s3          ; g
    s_lshr_b32 s21, s2, 5           ; p
    v_lshrrev_b32 v{TMP}, 6, v0
    v_and_b32 v1, 63, v0
    s_getreg_b32 s44, hwreg(HW_REG_XCC_ID, 0, 4)
    v_readfirstlane_b32 s22, v{TMP}   ; wave
    s_mul_i32 s41, s21, {PN}
    s_waitcnt lgkmcnt(0)
    s_lshl_b32 s3, s20, 6
    s_add_u32 s45, s3, {FL_XC}
    s_lshl_b32 s3, s21, 2
    s_add_u32 s3, s3, s45
    s_add_u32 s44, s44, 1
    v_mov_b32 v2, s3
    v_mov_b32 v3, s44
    v_cmp_eq_u32 vcc, 0, v0
    s_and_saveexec_b64 s[30:31], vcc
    s_cbranch_execz K3_X1
    global_store_dword v2, v3, s[4:5] sc1
    K3_X1:
    s_mov_b64 exec, s[30:31]
    s_add_u32 s8, s4, {OFF_NOFF}
    s_addc_u32 s9, s5, 0
    s_mov_b32 s10, {25088*16}
    s_mov_b32 s11, 0x20000
    s_mov_b32 s16, s6
    s_mov_b32 s17, s7
    s_mov_b32 s18, {N*2}
    s_mov_b32 s19, 0x20000
    v_mov_b32 v2, s41
    v_lshlrev_b32 v2, 4, v2
    buffer_load_dword v4, v2, s[8:11], 0 offen
    v_add_u32 v3, {3135*16+12}, v2
    buffer_load_dword v5, v3, s[8:11], 0 offen
    v_add_u32 v2, s41, v0
    v_lshlrev_b32 v2, 4, v2
    v_add_u32 v3, 16384, v2
    v_add_u32 v6, 32768, v2
    v_add_u32 v7, 49152, v2
    s_add_u32 s12, s4, {OFF_NINFO}
    s_addc_u32 s13, s5, 0
    s_mov_b32 s14, {25088*16}
    s_mov_b32 s15, 0x20000
    buffer_load_dwordx4 v[12:15], v2, s[12:15], 0 offen
    buffer_load_dwordx4 v[16:19], v3, s[12:15], 0 offen
    buffer_load_dwordx4 v[20:23], v6, s[12:15], 0 offen
    buffer_load_dwordx4 v[24:27], v7, s[12:15], 0 offen
    s_mov_b32 s42, {PN}
    s_cmp_eq_u32 s21, 7
    s_cselect_b32 s42, {N-7*PN}, s42
    v_lshlrev_b32 v{TMP}, 1, v0
    v_add_u32 v{TMP+1}, 2048, v{TMP}
    """)
    for t in range(2):
        e(f"""
        v_add_u32 v{TMP+2}, s41, v{TMP+t}
        v_lshlrev_b32 v{CO+t}, 3, v{TMP+2}
        v_lshlrev_b32 v{TMP+2}, 1, v{TMP+2}
        v_cmp_gt_u32 vcc, s42, v{TMP+t}
        v_mov_b32 v{TMP+3}, 0x7ffffff0
        s_nop 0
        v_cndmask_b32 v{CO+t}, v{TMP+3}, v{CO+t}, vcc
        v_cndmask_b32 v{TMP+2}, v{TMP+3}, v{TMP+2}, vcc
        buffer_load_dword v{CD+2*t}, v{TMP+2}, s[16:19], 0 offen
        """)
    e(f"""
    """)
    if 'pf' in EXP:
        e(f"""s_getpc_b64 s[52:53]
        K3_PC:
        v_lshlrev_b32 v{TMP+2}, 6, v0
        v_min_u32 v{TMP+2}, K3_END-K3_PC-4, v{TMP+2}
        v_and_b32 v{TMP+2}, -4, v{TMP+2}
        global_load_dword v{TMP+3}, v{TMP+2}, s[52:53]""")
    if 'notouch' not in EXP: e(f"""
    s_add_u32 s3, s20, 32
    s_mul_i32 s3, s3, {TS_STRIDE}
    s_lshl_b32 s28, s41, 3
    s_add_u32 s3, s3, s28
    v_lshlrev_b32 v{TMP+2}, 7, v0
    v_add_u32 v{TMP+2}, s3, v{TMP+2}
    v_cmp_gt_u32 vcc, 196, v0
    v_mov_b32 v{TMP+3}, 0x7ffffff0
    s_add_u32 s52, s4, {OFF_G}
    s_addc_u32 s53, s5, 0
    s_mov_b32 s54, {2*32*TS_STRIDE}
    s_mov_b32 s55, 0x20000
    v_cndmask_b32 v{TMP+2}, v{TMP+3}, v{TMP+2}, vcc
    buffer_load_dword v{TMP+3}, v{TMP+2}, s[52:55], 0 offen
    """)
    e(f"""
    """)
    if 'touch0' in EXP:
        e(f"v_subrev_u32 v{TMP+2}, {32*TS_STRIDE}, v{TMP+2}\nbuffer_load_dword v{TMP+3}, v{TMP+2}, s[52:55], 0 offen")
    e(f"""
    v_lshlrev_b32 v6, 2, v0
    v_mov_b32 v7, 0
    v_add_u32 v6, {HIST}, v6
    ds_write_b32 v6, v7
    v_mov_b32 v8, {SLOWF}
    ds_write_b32 v8, v7
    v_mov_b32 v7, {ZSI|(ZSI<<16)}
    v_mov_b32 v8, {DP}
    ds_write_b32 v8, v7
    v_lshlrev_b32 v{v16}, 4, v1
    s_waitcnt lgkmcnt(0)
    s_barrier
    s_waitcnt vmcnt({6+(0 if 'notouch' in EXP else 1)+(1 if 'touch0' in EXP else 0)+(1 if 'pf' in EXP else 0)})
    v_readfirstlane_b32 s46, v4
    v_readfirstlane_b32 s47, v5
    s_add_u32 s12, s4, {OFF_ENT}
    s_addc_u32 s13, s5, 0
    s_mov_b32 s15, 0x20000
    s_sub_u32 s48, s47, s46
    s_lshl_b32 s48, s48, 1            ; bytes
    s_lshl_b32 s14, s47, 1
    s_cmp_gt_u32 s48, {ECAP}
    s_cselect_b32 s49, 1, 0
    s_cselect_b32 s14, 0, s14
    s_lshl_b32 s50, s46, 1
    s_lshl_b32 s56, s22, 10
    s_add_u32 s50, s50, s56
    """)
    stamp(0)
    KEY=28; RNK=32; PKA=36; PKB=40
    e(f"v_mov_b32 v44, 0\nv_mov_b32 v45, 1\ns_mov_b32 s51, {HIST}\nv_cmp_gt_u32 s[52:53], 64, v0")
    for r in range(4):
        e(f"s_waitcnt vmcnt({(3-r)+2+(0 if 'notouch' in EXP else 1)+(1 if 'touch0' in EXP else 0)+(1 if 'pf' in EXP else 0)})")
        b=12+4*r
        if r==3: e(f"v_cndmask_b32 v{b+3}, 0, v{b+3}, s[52:53]")
        e(f"""v_or_b32 v44, v44, v{b+3}
        v_subrev_u32 v49, s46, v{b}
        v_lshlrev_b32 v49, 12, v49
        v_add_u32 v50, {1024*r}, v0
        v_or_b32 v{PKA+r}, v49, v50
        v_mov_b32 v{PKB+r}, v{b+1}
        v_add_u32 v{KEY+r}, s51, v{b+2}""")
        if r==3: e("s_mov_b64 s[30:31], exec\ns_mov_b64 exec, s[52:53]\ns_cbranch_execz K3_H3")
        e(f"ds_add_rtn_u32 v{RNK+r}, v{KEY+r}, v45")
        if r==3: e("K3_H3:\ns_mov_b64 exec, s[30:31]")
    entdma((0,1,2))
    pstamp(0)
    e(f"""
    v_cmp_ne_u32 vcc, 0, v44
    s_cmp_lg_u64 vcc, 0
    s_cselect_b32 s3, 1, 0
    s_or_b32 s49, s49, s3
    s_waitcnt lgkmcnt(0)
    s_barrier
    """)
    pstamp(1)
    entdma((3,4,5))
    e(f"""
    v_lshlrev_b32 v6, 2, v0
    v_add_u32 v6, {HIST}, v6
    ds_read_b32 v7, v6
    s_waitcnt lgkmcnt(0)
    v_mov_b32 v8, v7
    """)
    wave_scan(e,8,9)
    e(f"""
    s_nop 1
    v_readlane_b32 s3, v8, 63
    s_lshl_b32 s28, s22, 2
    s_add_u32 s28, s28, {MISC}
    v_mov_b32 v9, s28
    v_mov_b32 v46, s3
    ds_write_b32 v9, v46
    s_waitcnt lgkmcnt(0)
    s_barrier
    """)
    entdma((6,7))
    e(f"""
    v_lshlrev_b32 v9, 2, v1
    v_add_u32 v9, {MISC}, v9
    v_cmp_gt_u32 vcc, 16, v1
    v_mov_b32 v46, 0
    s_and_saveexec_b64 s[30:31], vcc
    ds_read_b32 v46, v9
    s_mov_b64 exec, s[30:31]
    s_waitcnt lgkmcnt(0)
    v_cmp_gt_u32 vcc, s22, v1
    s_nop 1
    v_cndmask_b32 v46, 0, v46, vcc
    """)
    wave_scan(e,46,47)
    e(f"""
    s_nop 1
    v_readlane_b32 s3, v46, 63
    v_sub_u32 v8, v8, v7
    v_add_u32 v8, s3, v8
    ds_write_b32 v6, v8
    s_waitcnt lgkmcnt(0)
    s_barrier
    """)
    pstamp(2)
    for r in range(3): e(f"ds_read_b32 v{12+r}, v{KEY+r}")
    e("s_mov_b64 s[30:31], exec\ns_mov_b64 exec, s[52:53]\ns_cbranch_execz K3_H4a\nds_read_b32 v15, v31\nK3_H4a:\ns_mov_b64 exec, s[30:31]\ns_waitcnt lgkmcnt(0)")
    for r in range(4):
        if r==3: e("s_mov_b64 s[30:31], exec\ns_mov_b64 exec, s[52:53]\ns_cbranch_execz K3_H4")
        e(f"""v_add_u32 v46, v{12+r}, v{RNK+r}
        v_lshlrev_b32 v47, 2, v46
        v_add_u32 v47, {SA}, v47
        ds_write_b32 v47, v{PKA+r}
        ds_write_b32 v47, v{PKB+r} offset:12544
""")
        if r==3: e("K3_H4:\ns_mov_b64 exec, s[30:31]")
    pstamp(3)
    e(f"""
    s_cmp_eq_u32 s49, 0
    s_cbranch_scc1 K3_NOSF
    v_mov_b32 v46, {SLOWF}
    v_mov_b32 v47, 1
    ds_write_b32 v46, v47
    K3_NOSF:
    s_waitcnt vmcnt(0) lgkmcnt(0)
    s_barrier
    """)
    stamp(1)
    wb=[[] for _ in range(16)]
    for bi,w in enumerate(ASG): wb[w].append(bi)
    e("s_mov_b32 s3, 0")
    for w in range(16):
        nb=len(wb[w]); lst=[0]*(4-nb)+wb[w]
        val=nb|(lst[0]<<4)|(lst[1]<<10)|(lst[2]<<16)|(lst[3]<<22)
        e(f"s_cmp_eq_u32 s22, {w}\ns_cselect_b32 s3, {val:#x}, s3")
    e("""s_and_b32 s39, s3, 15
    s_sub_u32 s38, 4, s39
    s_bfe_u32 s28, s3, 0x60004
    s_bfe_u32 s29, s3, 0x6000a
    s_bfe_u32 s30, s3, 0x60010
    s_bfe_u32 s31, s3, 0x60016""")
    QA=32; QP=36
    BM=12
    for s in range(4):
        e(f"s_lshl_b32 s3, s{28+s}, 8\ns_add_u32 s3, s3, {SA}\nv_lshl_add_u32 v46, v1, 2, s3\nds_read_b32 v{QA+s}, v46\nds_read_b32 v{QP+s}, v46 offset:12544")
        pass
    e("s_waitcnt lgkmcnt(0)")
    for s in range(3):
        lab=e.lab('IV')
        e(f"s_cmp_le_u32 s38, {s}\ns_cbranch_scc1 {lab}\nv_mov_b32 v{QP+s}, 0\nv_mov_b32 v{QA+s}, 0xfff\n{lab}:")
    CNT=40
    for s in range(4):
        e(f"v_and_b32 v{CNT+s}, 0x3ff, v{QP+s}\nv_bfe_u32 v{CNT+4+s}, v{QP+s}, 10, 10\nv_bfe_u32 v{CNT+8+s}, v{QP+s}, 20, 10")
    for s_ in range(4): e(f"v_lshl_or_b32 v{BM+s_}, v{CNT+4+s_}, 16, v{CNT+s_}")
    e(f"v_lshl_or_b32 v{BM+4}, v{CNT+9}, 16, v{CNT+8}\nv_lshl_or_b32 v{BM+5}, v{CNT+11}, 16, v{CNT+10}")
    for s_ in range(4):
        if s_<3: e(f"s_cmp_le_u32 s38, {s_}\ns_cselect_b32 s{52+s_}, 0x00010001, 0")
        else: e("s_mov_b32 s55, 0x00010001")
    e("s_pack_ll_b32_b16 s56, s52, s53\ns_pack_ll_b32_b16 s57, s54, s55")
    for w in range(6): e(f"v_pk_max_u16 v{BM+w}, v{BM+w}, s{52+w}")
    for ctl in ("row_shr:1 row_mask:0xf bank_mask:0xf bound_ctrl:0","row_shr:2 row_mask:0xf bank_mask:0xf bound_ctrl:0","row_shr:4 row_mask:0xf bank_mask:0xf bound_ctrl:0","row_shr:8 row_mask:0xf bank_mask:0xf bound_ctrl:0","row_bcast:15 row_mask:0xa bank_mask:0xf","row_bcast:31 row_mask:0xc bank_mask:0xf"):
        for w in range(6): e(f"v_mov_b32 v{BM+6+w}, 0" if 'bcast' in ctl else "")
        for w in range(6): e(f"v_mov_b32_dpp v{BM+6+w}, v{BM+w} {ctl}")
        for w in range(6): e(f"v_pk_max_u16 v{BM+w}, v{BM+w}, v{BM+6+w}")
    for w in range(6): e(f"v_readlane_b32 s{52+w}, v{BM+w}, 63")
    pstamp(4)
    e("s_or_b32 s3, s52, s53\ns_or_b32 s3, s3, s54\ns_or_b32 s3, s3, s55\ns_or_b32 s3, s3, s56\ns_or_b32 s3, s3, s57\ns_and_b32 s3, s3, 0xffe0ffe0\ns_cselect_b32 s3, 1, 0\ns_or_b32 s49, s49, s3")
    packs=[("s_pack_ll_b32_b16 s64, s52, s54","s_pack_ll_b32_b16 s65, s53, s55"),
           ("s_pack_hh_b32_b16 s64, s52, s54","s_pack_hh_b32_b16 s65, s53, s55"),
           ("s_pack_ll_b32_b16 s64, s56, s57","s_pack_hh_b32_b16 s65, s56, s57")]
    for X in range(3):
        e(packs[X][0]); e(packs[X][1])
        e(f"""s_lshl_b32 s65, s65, 8
        s_or_b32 s64, s64, s65
        s_mul_i32 s64, s64, 0x01010101
        s_lshr_b32 s{32+X}, s64, 24
        s_add_u32 s64, s64, 0x1f1f1f1f
        s_mov_b32 s{35+X}, 0
        s_bitset1_b32 s{35+X}, s64
        s_lshr_b32 s65, s64, 8
        s_bitset1_b32 s{35+X}, s65
        s_lshr_b32 s65, s64, 16
        s_bitset1_b32 s{35+X}, s65
        s_lshr_b32 s65, s64, 24
        s_bitset1_b32 s{35+X}, s65
        s_cmp_gt_u32 s{32+X}, {RXS[X]}
        s_cselect_b32 s3, 1, 0
        s_or_b32 s49, s49, s3""")
    e("s_lshl_b32 s56, s22, 10")
    if FORCE_SLOW: e("s_mov_b32 s49, 1")
    e(f"""
    s_cmp_eq_u32 s49, 0
    s_cbranch_scc1 K3_NOSF2
    v_mov_b32 v52, {SLOWF}
    v_mov_b32 v53, 1
    ds_write_b32 v52, v53
    K3_NOSF2:
    """)
    pstamp(5)
    for b in range(4):
        e(f"""v_and_b32 v{vL+b}, 0xfff, v{QA+b}
        v_add_u32 v{vD+b}, s41, v{vL+b}
        v_lshlrev_b32 v{vD+b}, 1, v{vD+b}
        v_cmp_eq_u32 vcc, 0xfff, v{vL+b}
        v_mov_b32 v52, 0x7ffffff0
        s_nop 0
        v_cndmask_b32 v{vD+b}, v{vD+b}, v52, vcc
        buffer_load_ushort v{vD+b}, v{vD+b}, s[16:19], 0 offen""")
    for s_ in range(4): e(f"v_lshrrev_b32 v{28+s_}, 12, v{QA+s_}\nv_lshlrev_b32 v{28+s_}, 1, v{28+s_}")
    e(f"v_mov_b32 v60, {DP}\nv_mov_b32 v61, {ZSI|(ZSI<<16):#x}")
    pstamp(6)
    QAd=[54,55,56,57]; QEn=[62,63,64,65]
    QEn=[12,13,14,15]; QAd=[16,17,18,19]; CAa=[20,21]; CE=22; TT=23
    for X in range(3):
        for s_ in range(4):
            e(f"v_mov_b32 v{QAd[s_]}, v{28+s_}\nv_lshl_add_u32 v{28+s_}, v{CNT+4*X+s_}, 2, v{28+s_}\nv_mov_b32 v{QEn[s_]}, v{28+s_}")
        def shift():
            t=""
            for s_ in range(3): t+=f"v_mov_b32 v{QAd[s_]}, v{QAd[s_+1]}\nv_mov_b32 v{QEn[s_]}, v{QEn[s_+1]}\n"
            return t
        for s_ in range(3):
            lab=e.lab('IS'); e(f"s_cmp_le_u32 s38, {s_}\ns_cbranch_scc1 {lab}\n"+shift()+f"{lab}:")
        e(f"v_mov_b32 v{CAa[0]}, v{QAd[0]}\nv_mov_b32 v{CE}, v{QEn[0]}")
        for r in range(RXS[X]):
            ca=CAa[r%2]; cn=CAa[(r+1)%2]
            up=f"BU_{X}_{r}"; bk=f"BB_{X}_{r}"
            e(f"""v_cmp_lt_u32 vcc, v{ca}, v{CE}
            s_bitcmp1_b32 s{35+X}, {r}
            v_add_u32 v{cn}, 4, v{ca}
            v_cndmask_b32 v{TT}, v60, v{ca}, vcc
            ds_read_b32 v{IDX+RB[X]+r}, v{TT}
            s_cbranch_scc1 {up}
            {bk}:""")
            nxt=f"BF_{X}_{r+1}"
            ool.append(f"{up}:\ns_cmp_le_u32 s{32+X}, {r+1}\ns_cbranch_scc1 {nxt}\n"+shift()+f"v_mov_b32 v{cn}, v{QAd[0]}\nv_mov_b32 v{CE}, v{QEn[0]}\ns_branch {bk}\n")
            if r%8==7: e("s_waitcnt lgkmcnt(4)")
        e(f"s_branch BF_{X}_{RXS[X]}")
        fill=""
        for r in range(1,RXS[X]): fill+=f"BF_{X}_{r}:\nv_mov_b32 v{IDX+RB[X]+r}, v61\n"
        e(fill+f"BF_{X}_{RXS[X]}:")
        pstamp(7+X)
    e(f"""s_waitcnt lgkmcnt(0)
    s_barrier
    v_mov_b32 v52, {SLOWF}
    ds_read_b32 v53, v52
    s_waitcnt lgkmcnt(0)
    v_readfirstlane_b32 s49, v53
    s_cmp_eq_u32 s49, 0
    s_cbranch_scc1 K3_SETUP2
    s_waitcnt vmcnt(0)""")
    e("K3_SLOWSETUP:")
    for s in range(4):
        e(f"s_add_u32 s3, s22, {16*s}\ns_lshl_b32 s3, s3, 6\nv_add_u32 v{vL+s}, s3, v1\nv_cmp_gt_u32 vcc, {PN}, v{vL+s}\nv_mov_b32 v46, 0xfff\ns_nop 0\nv_cndmask_b32 v{vL+s}, v46, v{vL+s}, vcc")
    for b in range(4):
        e(f"""v_add_u32 v{vD+b}, s41, v{vL+b}
        v_lshlrev_b32 v{vD+b}, 1, v{vD+b}
        v_cmp_eq_u32 vcc, 0xfff, v{vL+b}
        v_mov_b32 v52, 0x7ffffff0
        s_nop 0
        v_cndmask_b32 v{vD+b}, v{vD+b}, v52, vcc
        buffer_load_ushort v{vD+b}, v{vD+b}, s[16:19], 0 offen""")
    e("K3_SETUP2:")
    if DBG:
        lab=e.lab('DG')
        e(f"s_cmp_lg_u32 s2, 0\ns_cbranch_scc1 {lab}\ns_mul_i32 s3, s22, {64*256}\ns_add_u32 s3, s3, {OFF_DBG+4096}\nv_lshlrev_b32 v58, 2, v1\nv_add_u32 v58, s3, v58")
        for r in range(RT): e(f"global_store_dword v58, v{IDX+r}, s[4:5] offset:0\nv_add_u32 v58, 256, v58")
        for s_ in range(4): e(f"global_store_dword v58, v{vL+s_}, s[4:5]\nv_add_u32 v58, 256, v58")
        for k in range(8): e(f"v_writelane_b32 v60, s{32+k}, {k}")
        e(f"v_writelane_b32 v60, s49, 8\nv_writelane_b32 v60, s46, 9\nv_writelane_b32 v60, s48, 10")
        e(f"global_store_dword v58, v60, s[4:5]\ns_waitcnt vmcnt(0)\n{lab}:")
    stamp(2)
    for b in range(4):
        e(f"""v_cmp_eq_u32 vcc, 0xfff, v{vL+b}
        v_lshlrev_b32 v{vL+b}, 3, v{vL+b}
        v_add_u32 v{vL+b}, {STG}, v{vL+b}
        v_mov_b32 v{TMP+1}, {DUMP}
        v_cndmask_b32 v{vL+b}, v{vL+b}, v{TMP+1}, vcc""")
    e(f"""
    v_and_b32 v70, 7, v1
    v_lshlrev_b32 v70, 2, v70
    v_add_u32 v70, s45, v70
    global_load_dword v71, v70, s[4:5] sc1
    s_mov_b32 s50, 2
    s_waitcnt vmcnt(1)
    """)
    for b in range(4): e(f"v_lshlrev_b32 v{vD+b}, 16, v{vD+b}")
    for t in range(2): e(f"v_and_b32 v{CD+2*t+1}, 0xffff0000, v{CD+2*t}\nv_lshlrev_b32 v{CD+2*t}, 16, v{CD+2*t}")
    e(f"""
    v_lshrrev_b32 v{TMP}, 4, v1
    v_bfe_u32 v{TMP+1}, v1, 2, 2
    v_and_b32 v{TMP+2}, 1, v1
    v_lshlrev_b32 v{TMP+2}, 4, v{TMP+2}
    v_mov_b32 v{TMP+3}, 0x3f80
    v_lshlrev_b32 v{TMP+3}, v{TMP+2}, v{TMP+3}
    v_cmp_eq_u32 vcc, v{TMP}, v{TMP+1}
    s_nop 1
    v_cndmask_b32 v{TMP+3}, 0, v{TMP+3}, vcc
    v_bfe_u32 v{TMP+2}, v1, 1, 1
    v_cmp_eq_u32 vcc, 0, v{TMP+2}
    v_mov_b32 v{TMP+4}, 0
    s_nop 0
    v_cndmask_b32 v{AC}, 0, v{TMP+3}, vcc
    v_cndmask_b32 v{AC+1}, v{TMP+3}, v{TMP+4}, vcc
    v_mov_b32 v{AC+2}, v{AC}
    v_mov_b32 v{AC+3}, v{AC+1}
    v_lshlrev_b32 v{vC}, 4, v0
    v_add_u32 v{vC}, {STG}, v{vC}
    v_lshlrev_b32 v{TMP+6}, 7, v0
    s_lshl_b32 s3, s41, 3
    v_add_u32 v{TMP+6}, s3, v{TMP+6}
    v_cmp_gt_u32 vcc, 196, v0
    v_mov_b32 v{TMP+5}, 0x7ffffff0
    s_nop 0
    v_cndmask_b32 v{TMP+6}, v{TMP+5}, v{TMP+6}, vcc
    s_lshl_b32 s3, s20, 8
    s_add_u32 s66, s3, {OFF_FL}
    s_lshl_b32 s3, s21, 5
    s_add_u32 s67, s66, s3
    s_mov_b32 s11, 0x20000
    s_mov_b32 s15, 0x20000
    s_mov_b32 s27, 0x20000
    s_mov_b32 s10, {TS_STRIDE}
    s_mov_b32 s14, {N*8}
    s_mov_b32 s26, {N*8}
    s_mov_b32 s23, 0
    s_lshl_b32 s56, s22, 10
    s_mov_b32 s51, 0xffff0000
    v_mov_b32 v{TMP}, {ZS}
    v_mov_b32 v{TMP+2}, 0
    v_mov_b32 v{TMP+3}, 0
    ds_write_b64 v{TMP}, v[{TMP+2}:{TMP+3}]
    s_waitcnt lgkmcnt(0)
    """)
    stamp(3)
    e("K3_HOP:")
    if TS: e("s_mov_b32 s68, s23")
    e(f"""
    s_and_b32 s69, s23, 1
    s_lshl_b32 s3, s69, 5
    s_add_u32 s3, s3, s20
    s_mul_i32 s3, s3, {TS_STRIDE}
    s_add_u32 s8, s4, s3
    s_addc_u32 s9, s5, 0
    s_xor_b32 s69, s69, 1
    s_lshl_b32 s3, s69, 5
    s_add_u32 s3, s3, s20
    s_mul_i32 s3, s3, {TS_STRIDE}
    s_add_u32 s12, s4, s3
    s_addc_u32 s13, s5, 0
    s_add_u32 s3, s23, 1
    s_lshl_b32 s3, s3, 5
    s_add_u32 s3, s3, s20
    s_mul_i32 s3, s3, {TS_STRIDE}
    s_add_u32 s3, s3, {OFF_T}
    s_add_u32 s24, s4, s3
    s_addc_u32 s25, s5, 0
    s_cmp_lg_u32 s49, 0
    s_cbranch_scc1 K3_SLOWHOP
    """)
    def dma(goff, nins, ldsbase):
        rounds=(nins+15)//16
        for r in range(rounds):
            lab=None
            if (r+1)*16>nins:
                lab=e.lab('DS'); e(f"s_cmp_ge_u32 s22, {nins-r*16}\ns_cbranch_scc1 {lab}")
            e(f"s_lshl_b32 s3, s22, 10\ns_add_u32 m0, s3, {ldsbase+r*16384}\ns_add_u32 s3, s3, {goff+r*16384}\nbuffer_load_dwordx4 v{v16}, s[8:11], s3 offen{DS} lds")
            if lab: e(f"{lab}:")
    hstamp(0)
    dma(0,NA,BUF0)
    for i in range(16): e(f"v_mov_b32 v{ACC+i}, 0")
    def issue(X,g):
        s=g%(PD+1); out=[]
        for k in range(2):
            rr=IDX+RB[X]+2*g+k
            out.append(f"v_lshlrev_b32_sdwa v{TMP+2*k}, 3, v{rr} dst_sel:DWORD dst_unused:UNUSED_PAD src0_sel:DWORD src1_sel:WORD_0")
            if 'halfsdwa' not in EXP: out.append(f"v_lshlrev_b32_sdwa v{TMP+2*k+1}, 3, v{rr} dst_sel:DWORD dst_unused:UNUSED_PAD src0_sel:DWORD src1_sel:WORD_1")
        for k in range(2):
            d=DAT+8*s+4*k
            out.append(f"ds_read_b64 v[{d}:{d+1}], v{TMP+2*k}")
            out.append(f"ds_read_b64 v[{d+2}:{d+3}], v{TMP+2*k+1}")
        return out
    def dma1(k,goff,ldsbase,nins=None):
        return [f"s_add_u32 m0, s56, {ldsbase+k*16384}",f"s_add_u32 s3, s56, {goff+k*16384}",f"buffer_load_dwordx4 v{v16}, s[8:11], s3 offen{DS} lds"]
    def phase(X):
        RX=RXS[X]; NG=RX//2
        nd={0:(TH1*8,BUF1,NB),1:(TH2*8,BUF0,NC)}.get(X)
        e(f"s_mov_b32 s54, s{35+X}")
        if 'prio' in EXP: e("s_setprio 3")
        for g in range(PD): e("\n".join(issue(X,g)))
        if nd:
            rem=nd[2]-64
            lab=e.lab('DR'); e(f"s_cmp_ge_u32 s22, {rem}\ns_cbranch_scc1 {lab}\n"+"\n".join(dma1(4,*nd))+f"\n{lab}:")
        def mfma(b,r):
            d=DAT+8*((r//2)%(PD+1))+4*(r%2)
            return f"v_mfma_f32_16x16x32_bf16 v[{ACC+4*b}:{ACC+4*b+3}], v[{AC}:{AC+3}], v[{d}:{d+3}], v[{ACC+4*b}:{ACC+4*b+3}]"
        def body(b):
            out=[]; tail=[]
            for r in range(RX):
                g=r//2
                out.append(f"E_{X}_{b}_{r}:")
                if 'prio' in EXP and r in (4,8,12): out.append(f"s_setprio {2-(r//4-1)}")
                if r%2==0:
                    if g+PD<NG:
                        if b==3 and GATE:
                            out.append(f"s_cmp_le_u32 s{32+X}, {2*(g+PD)}")
                            out.append(f"s_cbranch_scc1 T_{X}_{r}")
                            tl=[f"T_{X}_{r}:"]
                            if nd and g<4: tl+=dma1(g,*nd)
                            tl+= ["s_waitcnt lgkmcnt(0)",f"s_branch M_{X}_{r}"]
                            tail+=tl
                        out+=issue(X,g+PD)
                        if nd and g<4: out+=dma1(g,*nd)
                        out.append(f"s_waitcnt lgkmcnt({4*PD})")
                        if b==3 and GATE: out.append(f"M_{X}_{r}:")
                    else:
                        if nd and g<4: out+=dma1(g,*nd)
                        out.append(f"s_waitcnt lgkmcnt({0 if (b==3 and GATE) else 4*(NG-1-g)})")
                out.append(mfma(b,r))
                if r<RX-1 and not ('nochk' in EXP and r%2==0):
                    out.append(f"s_bitcmp1_b32 s54, {r}")
                    out.append(f"s_cbranch_scc1 E_{X}_{b+1}_{r+1}" if b<3 else f"s_cbranch_scc1 PE_{X}")
            out.append(f"s_branch PE_{X}")
            return "\n".join(out+tail)+"\n"
        for b in range(1,4): e(f"s_cmp_eq_u32 s38, {b}"); e(f"s_cbranch_scc1 E_{X}_{b}_0")
        e(body(0))
        for b in range(1,4): ool.append(body(b))
        e(f"PE_{X}:")
        if 'prio' in EXP: e("s_setprio 0")
        if nd:
            for k in range(1,4):
                lab=e.lab('DR')
                e(f"s_cmp_gt_u32 s{32+X}, {2*k}\ns_cbranch_scc1 {lab}\n"+"\n".join(dma1(k,*nd))+f"\n{lab}:")
        e("s_waitcnt lgkmcnt(0)")
    e("s_waitcnt vmcnt(0)"); hstamp(1)
    e("s_barrier"); hstamp(2)
    phase(0); hstamp(3)
    e("s_waitcnt vmcnt(0)\ns_barrier"); hstamp(4)
    phase(1); hstamp(5)
    if 'ttouch' in EXP:
        e(f"buffer_load_dword v{TMP+7}, v{TMP+6}, s[24:27], 0 offen\ns_waitcnt vmcnt(1)\ns_barrier")
    else: e("s_waitcnt vmcnt(0)\ns_barrier")
    hstamp(6)
    phase(2); hstamp(7)
    e("K3_EPI:\ns_nop 7\ns_nop 1")
    for b in range(4):
        a=ACC+4*b; t=DAT+2*b
        for r in range(4): e(f"v_mul_f32 v{a+r}, v{a+r}, v{vD+b}")
        e(f"v_cvt_pk_bf16_f32 v{t}, v{a}, v{a+1}\nv_cvt_pk_bf16_f32 v{t+1}, v{a+2}, v{a+3}")
        e(f"ds_write_b64 v{vL+b}, v[{t}:{t+1}]")
    e("s_waitcnt lgkmcnt(0)\ns_barrier"); hstamp(8)
    e(f"ds_read_b128 v[{DAT}:{DAT+3}], v{vC}\nds_read_b128 v[{DAT+4}:{DAT+7}], v{vC} offset:16384")
    def tstores():
        for t in range(2):
            d=DAT+4*t
            e(f"buffer_store_dwordx4 v[{d}:{d+3}], v{CO+t}, s[24:27], 0 offen"+(" nt" if 'tnt' in EXP else " sc1" if 'tsc1' in EXP else " sc0 sc1" if 'tsc01' in EXP else ""))
    e(f"s_add_u32 s23, s23, 1\ns_cmp_ge_u32 s23, {NH}\ns_cbranch_scc1 K3_FIN")
    for t in range(2):
        d=DAT+4*t; a=ACC+8*t; o=DAT+8+4*t
        e(f"s_waitcnt lgkmcnt({1-t})")
        for r in range(4):
            e(f"v_lshlrev_b32 v{a+2*r}, 16, v{d+r}\nv_and_b32 v{a+2*r+1}, s51, v{d+r}")
        for r in range(8): e(f"v_mul_f32 v{a+r}, v{a+r}, v{CD+2*t+(r//4)}")
        for r in range(4): e(f"v_cvt_pk_bf16_f32 v{o+r}, v{a+2*r}, v{a+2*r+1}")
    e(f"""s_cmp_lg_u32 s50, 2
    s_cbranch_scc1 K3_XD
    K3_XP:
    v_cmp_eq_u32 vcc, 0, v71
    s_cbranch_vccz K3_XE
    global_load_dword v71, v70, s[4:5] sc1
    s_waitcnt vmcnt(0)
    s_branch K3_XP
    K3_XE:
    v_cmp_ne_u32 vcc, s44, v71
    s_cmp_lg_u64 vcc, 0
    s_cselect_b32 s50, 1, 0""")
    if FORCE_SLOWSYNC: e("s_mov_b32 s50, 1")
    e("K3_XD:")
    e("s_cmp_lg_u32 s50, 0\ns_cbranch_scc1 K3_GS1")
    for t in range(2):
        o=DAT+8+4*t; e(f"buffer_store_dwordx4 v[{o}:{o+3}], v{CO+t}, s[12:15], 0 offen")
    e("s_branch K3_GS2\nK3_GS1:")
    for t in range(2):
        o=DAT+8+4*t; e(f"buffer_store_dwordx4 v[{o}:{o+3}], v{CO+t}, s[12:15], 0 offen sc1")
    e("K3_GS2:\ns_waitcnt vmcnt(0) lgkmcnt(0)"); hstamp(9); e("s_barrier")
    if 'allpoll' in EXP:
        e(f"""
        s_cmp_lg_u32 s22, 0
        s_cbranch_scc1 K3_NF
        v_mov_b32 v{TMP}, s67
        v_mov_b32 v{TMP+1}, s23
        v_cmp_eq_u32 vcc, 0, v1
        s_and_saveexec_b64 s[30:31], vcc
        s_cmp_lg_u32 s50, 0
        s_cbranch_scc1 K3_FS1
        global_store_dword v{TMP}, v{TMP+1}, s[4:5]
        s_branch K3_FS2
        K3_FS1:
        global_store_dword v{TMP}, v{TMP+1}, s[4:5] sc1
        K3_FS2:
        s_mov_b64 exec, s[30:31]
        K3_NF:
        v_and_b32 v{TMP}, 7, v1
        v_lshlrev_b32 v{TMP}, 5, v{TMP}
        v_add_u32 v{TMP}, s66, v{TMP}
        K3_POLL:
        global_load_dword v{TMP+1}, v{TMP}, s[4:5] sc1
        s_waitcnt vmcnt(0)
        v_cmp_gt_u32 vcc, s23, v{TMP+1}
        s_cbranch_vccnz K3_POLL
        """)
        tstores(); hstamp(10)
    else:
        e("s_cmp_eq_u32 s22, 0\ns_cbranch_scc1 K3_W0")
        if TMODE==1: e("s_sleep 6")
        if TMODE in (0,1): tstores()
        e("s_branch K3_WAIT\nK3_W0:")
        e(f"""
        v_mov_b32 v{TMP}, s67
        v_mov_b32 v{TMP+1}, s23
        v_cmp_eq_u32 vcc, 0, v1
        s_and_saveexec_b64 s[30:31], vcc
        s_cmp_lg_u32 s50, 0
        s_cbranch_scc1 K3_FS1
        global_store_dword v{TMP}, v{TMP+1}, s[4:5]
        s_branch K3_FS2
        K3_FS1:
        global_store_dword v{TMP}, v{TMP+1}, s[4:5] sc1
        K3_FS2:
        s_mov_b64 exec, s[30:31]
        v_and_b32 v{TMP}, 7, v1
        v_lshlrev_b32 v{TMP}, 5, v{TMP}
        v_add_u32 v{TMP}, s66, v{TMP}
        K3_POLL:
        global_load_dword v{TMP+1}, v{TMP}, s[4:5] sc1
        s_waitcnt vmcnt(0)
        v_cmp_gt_u32 vcc, s23, v{TMP+1}
        s_cbranch_vccnz K3_POLL
        """)
        if TMODE in (0,1): tstores()
        e("K3_WAIT:\ns_barrier"); hstamp(10)
        if TMODE==2: tstores()
    if TS:
        lab=e.lab('TS')
        e(f"s_cmp_lg_u32 s68, 0\ns_cbranch_scc1 {lab}"); stamp(4); e(f"{lab}:")
    e("s_branch K3_HOP")
    e(f"""
    K3_SLOWHOP:
    s_add_u32 s52, s4, {OFF_NOFF}
    s_addc_u32 s53, s5, 0
    s_mov_b32 s54, {25088*16}
    s_mov_b32 s55, 0x20000
    s_add_u32 s56, s4, {OFF_ENT}
    s_addc_u32 s57, s5, 0
    s_mov_b32 s58, {ENT_BYTES}
    s_mov_b32 s59, 0x20000
    """)
    for s in range(4):
        L=e.lab('SL'); Lx=e.lab('SX')
        a=ACC+4*s
        e(f"""
        v_mov_b32 v{a}, 0
        v_mov_b32 v{a+1}, 0
        v_mov_b32 v{a+2}, 0
        v_mov_b32 v{a+3}, 0
        s_add_u32 s3, s22, {16*s}
        s_lshl_b32 s3, s3, 6
        v_add_u32 v{DAT}, s3, v1              ; local
        v_cmp_gt_u32 vcc, {PN}, v{DAT}
        s_and_saveexec_b64 s[30:31], vcc
        s_cbranch_execz {Lx}
        v_add_u32 v{DAT}, s41, v{DAT}
        v_lshlrev_b32 v{DAT}, 4, v{DAT}
        buffer_load_dwordx4 v[{DAT+4}:{DAT+7}], v{DAT}, s[52:55], 0 offen
        s_waitcnt vmcnt(0)
        v_mov_b32 v{DAT+1}, v{DAT+4}          ; pos
        {L}:
        v_cmp_lt_u32 vcc, v{DAT+1}, v{DAT+7}
        s_and_b64 exec, exec, vcc
        s_cbranch_execz {Lx}
        v_lshlrev_b32 v{DAT+2}, 1, v{DAT+1}
        buffer_load_ushort v{DAT+3}, v{DAT+2}, s[56:59], 0 offen
        s_waitcnt vmcnt(0)
        v_cmp_le_u32 vcc, v{DAT+5}, v{DAT+1}           ; pos>=offB
        v_subrev_u32 v{DAT+8}, {BADD}, v{DAT+3}
        s_nop 0
        v_cndmask_b32 v{DAT+9}, v{DAT+3}, v{DAT+8}, vcc
        v_cmp_le_u32 vcc, v{DAT+6}, v{DAT+1}           ; pos>=offC
        v_add_u32 v{DAT+8}, {TH2}, v{DAT+3}
        s_nop 0
        v_cndmask_b32 v{DAT+9}, v{DAT+9}, v{DAT+8}, vcc
        v_cmp_eq_u32 vcc, {ZSI}, v{DAT+3}
        v_lshlrev_b32 v{DAT+9}, 3, v{DAT+9}
        v_mov_b32 v{DAT+8}, 0x7ffffff0
        s_nop 0
        v_cndmask_b32 v{DAT+9}, v{DAT+9}, v{DAT+8}, vcc
        s_mov_b32 s10, {N*8}
        buffer_load_dwordx2 v[{DAT+10}:{DAT+11}], v{DAT+9}, s[8:11], 0 offen sc1
        s_waitcnt vmcnt(0)
        v_lshlrev_b32 v{DAT+12}, 16, v{DAT+10}
        v_and_b32 v{DAT+13}, s51, v{DAT+10}
        v_lshlrev_b32 v{DAT+14}, 16, v{DAT+11}
        v_and_b32 v{DAT+15}, s51, v{DAT+11}
        v_add_f32 v{a}, v{a}, v{DAT+12}
        v_add_f32 v{a+1}, v{a+1}, v{DAT+13}
        v_add_f32 v{a+2}, v{a+2}, v{DAT+14}
        v_add_f32 v{a+3}, v{a+3}, v{DAT+15}
        v_add_u32 v{DAT+1}, 1, v{DAT+1}
        s_branch {L}
        {Lx}:
        s_mov_b64 exec, s[30:31]
        """)
    e(f"s_mov_b32 s10, {TS_STRIDE}\ns_branch K3_EPI")
    for o in ool: e(o)
    e("K3_FIN:\ns_waitcnt lgkmcnt(0)")
    tstores()
    if TS:
        e(f"s_cmp_lg_u32 s2, 41\ns_cbranch_scc1 K3_END\ns_memtime s[62:63]\ns_waitcnt lgkmcnt(0)\ns_sub_u32 s81, s62, s60")
        for k in range(17): e(f"v_writelane_b32 v{TMP+7}, s{76+k}, {k}")
        e(f"s_lshl_b32 s3, s22, 7\ns_add_u32 s3, s3, {OFF_DBG}\nv_lshlrev_b32 v{TMP+6}, 2, v1\nv_add_u32 v{TMP+6}, s3, v{TMP+6}\nv_cmp_gt_u32 vcc, 17, v1\ns_and_saveexec_b64 s[30:31], vcc\nglobal_store_dword v{TMP+6}, v{TMP+7}, s[4:5]")
    e("K3_END:")
    return e.text(),NV,102
```

```python
import sys
sys.path.insert(0,'dev')
from glib import *
import hazard
def K(name,gen,**kw):
    r=gen(**kw); b,vg,sg=r[:3]; ag=r[3] if len(r)>3 else 0
    b,n=hazard.fix(b); return kernel_text(name,b,vg,sg,ag)
if __name__=='__main__':
    from prep import *
    import prep as _p
    _p.XTOUCH=2 if 'xtouch2' in sys.argv else 'xtouch' in sys.argv
    for a in sys.argv:
        if a.startswith('xw'):
            _p.XW,_p.XWC=[int(x) for x in a[2:].split(',')]; _p.XC_TASKS=28*_p.XWC; _p.P_GRID=_p.P_X0+(1563-_p.XC_TASKS+_p.XW-1)//_p.XW
    _p.PPF='ppf' in sys.argv
    what=sys.argv[1]
    if 'sep' in sys.argv:
        L=[('prep1_kernel',K1_GRID,1024,K1_LDS),('prep2_kernel',K2_GRID,1024,K2_LDS)]
        Ks=[K('prep1_kernel',gen_k1),K('prep2_kernel',gen_k2)]
    else:
        L=[('prep_kernel',_p.P_GRID,1024,P_LDS)]
        Ks=[K('prep_kernel',gen_prep)]
    if what in('123','all'):
        from k3 import *
        L.append(('hops_kernel',256,1024,K3_LDS)); Ks.append(K('hops_kernel',gen_k3,TS=(2 if 'tsp' in sys.argv else 1 if 'ts' in sys.argv else 0), DBG='dbg' in sys.argv, FORCE_SLOW='slow' in sys.argv, FORCE_SLOWSYNC='slowsync' in sys.argv, PD=(1 if 'pd1' in sys.argv else 2), GATE='nogate' not in sys.argv, TMODE=(1 if 't1' in sys.argv else 2 if 't2' in sys.argv else 0), EXP=' '.join(x for x in sys.argv if x in('nochk','halfsdwa','prio','touch','touch0','notouch','tnt','tsc1','tsc01','ttouch','dplain','dsc0','dnt','allpoll','pf','skip1','thop7','thop6','thop5','thop4'))))
    if what=='all':
        if 'v3' in sys.argv: from k4v3 import gen_k4,K4_LDS,K4_BLOCK
        elif 'v6' in sys.argv: from k4v6 import gen_k4,K4_LDS,K4_BLOCK
        elif 'v3b' in sys.argv: from k4v3b import gen_k4,K4_LDS,K4_BLOCK
        else: from k4v4 import gen_k4,K4_LDS,K4_BLOCK
        import sched
        if 'dsc8' in sys.argv: sched.DSC=8
        L.append(('final_kernel',256,K4_BLOCK,K4_LDS)); Ks.append(K('final_kernel',gen_k4,TS='ts4' in sys.argv,TSR=next((int(a[3:]) for a in sys.argv if a.startswith('tsr')),9),LDSLAT=(160 if 'dsc8' in sys.argv else 130)))
    open(sys.argv[2],'w').write(file_text(L,Ks))
```

```python
from glib import E
from layout import *
import struct
OFF_NINFO=OFF_FL+1024*1024
def wave_scan(e,v,tmp=None):
    for sh in (1,2,4,8):
        e(f"v_add_u32_dpp v{v}, v{v}, v{v} row_shr:{sh} row_mask:0xf bank_mask:0xf bound_ctrl:0")
    e(f"v_add_u32_dpp v{v}, v{v}, v{v} row_bcast:15 row_mask:0xa bank_mask:0xf")
    e(f"v_add_u32_dpp v{v}, v{v}, v{v} row_bcast:31 row_mask:0xc bank_mask:0xf")
def allred32_f32(e,v,tmp):
    e(f"v_add_f32_dpp v{v}, v{v}, v{v} quad_perm:[1,0,3,2] row_mask:0xf bank_mask:0xf")
    e(f"v_add_f32_dpp v{v}, v{v}, v{v} quad_perm:[2,3,0,1] row_mask:0xf bank_mask:0xf")
    e(f"v_add_f32_dpp v{v}, v{v}, v{v} row_half_mirror row_mask:0xf bank_mask:0xf")
    e(f"v_add_f32_dpp v{v}, v{v}, v{v} row_mirror row_mask:0xf bank_mask:0xf")
    e(f"v_mov_b32 v{tmp}, v{v}\nv_permlane16_swap_b32 v{v}, v{tmp}\nv_add_f32 v{v}, v{v}, v{tmp}")
def head(e,grid,P):
    e(f"""
    s_cmp_ge_u32 s2, {grid}
    s_cbranch_scc1 {P}_END
    s_load_dwordx2 s[4:5], s[0:1], 88      ; ws
    v_lshrrev_b32 v2, 6, v0
    v_and_b32 v1, 63, v0
    s_nop 0
    v_readfirstlane_b32 s22, v2
    """)
    if PPF:
        e(f"""s_getpc_b64 s[70:71]
        {P}_PC:
        v_lshlrev_b32 v126, 6, v0
        v_min_u32 v126, {P}_END-{P}_PC-4, v126
        v_and_b32 v126, -4, v126
        s_cmp_ge_u32 s22, 4
        s_cbranch_scc1 {P}_PF1
        global_load_dword v127, v126, s[70:71]
        {P}_PF1:""")
PPF=False
TSK=False
def tstamp(e,idx):
    if TSK: e(f"s_memrealtime s[62:63]\ns_waitcnt lgkmcnt(0)\ns_mov_b32 s{70+idx}, s62")
def tdump(e,wg,n):
    if not TSK: return
    lab=e.lab('TD')
    e(f"s_cmp_lg_u32 s2, {wg}\ns_cbranch_scc1 {lab}")
    for k in range(n): e(f"v_writelane_b32 v100, s{70+k}, {k}")
    e(f"s_lshl_b32 s3, s22, 6\ns_add_u32 s3, s3, {OFF_DBG}\nv_lshlrev_b32 v101, 2, v1\nv_add_u32 v101, s3, v101\nv_cmp_gt_u32 vcc, {n}, v1\ns_and_saveexec_b64 s[30:31], vcc\nglobal_store_dword v101, v100, s[4:5]\ns_mov_b64 exec, s[30:31]\n{lab}:")
def role_chunk(e,P,MERGED=False):
    SC=' sc1' if MERGED else ''
    tstamp(e,8)
    e(f"""
    s_load_dwordx4 s[8:11], s[0:1], 8
    s_mul_i32 s3, s2, {CHE*4}
    v_lshlrev_b32 v2, 4, v0
    v_add_u32 v2, s3, v2
    v_mov_b32 v3, 0
    v_lshlrev_b32 v4, 2, v0
    v_cmp_gt_u32 vcc, 128, v0
    s_and_saveexec_b64 s[30:31], vcc
    ds_write_b32 v4, v3
    s_mov_b64 exec, s[30:31]
    s_waitcnt lgkmcnt(0)
    s_mov_b32 s12, s8
    s_mov_b32 s13, s9
    s_mov_b32 s14, {EDG*4}
    s_mov_b32 s15, 0x20000
    s_mov_b32 s16, s10
    s_mov_b32 s17, s11
    s_mov_b32 s18, {EDG*4}
    s_mov_b32 s19, 0x20000
    v_cmp_gt_u32 vcc, {CHE//4}, v0
    s_and_saveexec_b64 s[30:31], vcc
    s_cbranch_execz {P}_C1
    buffer_load_dwordx4 v[8:11], v2, s[16:19], 0 offen     ; dst
    buffer_load_dwordx4 v[12:15], v2, s[12:15], 0 offen    ; src
    {P}_C1:
    s_mov_b64 exec, s[30:31]
    s_barrier
    s_mov_b32 s20, 21913099
    s_movk_i32 s21, 196
    s_and_saveexec_b64 s[30:31], vcc
    s_cbranch_execz {P}_C2
    s_waitcnt vmcnt(1)
    v_mov_b32 v3, 1
    """)
    for i in range(4):
        e(f"""v_mul_hi_u32 v{16+i}, v{8+i}, s20
        v_mul_lo_u32 v{20+i}, v{16+i}, s21
        v_sub_u32 v{20+i}, v{8+i}, v{20+i}
        v_lshlrev_b32 v{16+i}, 2, v{16+i}
        ds_add_rtn_u32 v{24+i}, v{16+i}, v3""")
    e(f"""
    {P}_C2:
    s_mov_b64 exec, s[30:31]
    s_waitcnt lgkmcnt(0)
    s_barrier
    s_cmp_lg_u32 s22, 0
    s_cbranch_scc1 {P}_C3
    v_lshlrev_b32 v4, 3, v1
    ds_read_b64 v[6:7], v4
    s_waitcnt lgkmcnt(0)
    v_add_u32 v5, v6, v7
    v_mov_b32 v28, v5
    """)
    wave_scan(e,28)
    e(f"""
    v_sub_u32 v28, v28, v5
    v_add_u32 v29, v28, v6
    ds_write_b64 v4, v[28:29] offset:1024
    v_mul_u32_u24 v5, {2*NCH*4}, v1
    s_lshl_b32 s3, s2, 2
    s_add_u32 s3, s3, {OFF_OFFS}
    v_add_u32 v5, s3, v5
    global_store_dword v5, v28, s[4:5]{SC}
    global_store_dword v5, v29, s[4:5] offset:{NCH*4}{SC}
    v_mov_b32 v6, {CHE}
    v_mov_b32 v5, s3
    v_add_u32 v5, {128*NCH*4}, v5
    v_cmp_eq_u32 vcc, 0, v1
    s_and_saveexec_b64 s[32:33], vcc
    global_store_dword v5, v6, s[4:5]{SC}
    s_mov_b64 exec, s[32:33]
    {P}_C3:
    s_waitcnt lgkmcnt(0)
    s_barrier
    v_cmp_gt_u32 vcc, {CHE//4}, v0
    s_and_saveexec_b64 s[30:31], vcc
    """)
    for i in range(4): e(f"ds_read_b32 v{28+i}, v{16+i} offset:1024")
    e("s_waitcnt vmcnt(0) lgkmcnt(0)")
    for i in range(4):
        e(f"""v_add_u32 v{28+i}, v{28+i}, v{24+i}
        v_lshlrev_b32 v{28+i}, 2, v{28+i}
        v_lshl_or_b32 v{12+i}, v{20+i}, 16, v{12+i}
        ds_write_b32 v{28+i}, v{12+i} offset:2048""")
    e(f"""s_mov_b64 exec, s[30:31]
    s_waitcnt lgkmcnt(0)
    s_barrier
    s_and_saveexec_b64 s[30:31], vcc
    s_cbranch_execz {P}_C4
    v_lshlrev_b32 v4, 4, v0
    ds_read_b128 v[8:11], v4 offset:2048
    s_mul_i32 s3, s2, {CHE*4}
    s_add_u32 s3, s3, {OFF_CH}
    v_add_u32 v4, s3, v4
    s_waitcnt lgkmcnt(0)
    global_store_dwordx4 v4, v[8:11], s[4:5]{SC}
    {P}_C4:
    s_mov_b64 exec, s[30:31]""")
    if not MERGED: e("s_endpgm"); return
    tstamp(e,9)
    e("s_waitcnt vmcnt(0)")
    tstamp(e,10)
    e(f"""s_barrier
    s_load_dwordx2 s[6:7], s[0:1], 80
    s_and_b32 s3, s2, 3
    s_lshl_b32 s3, s3, 5
    v_mov_b32 v4, s3
    v_mov_b32 v5, 1
    s_waitcnt lgkmcnt(0)
    v_cmp_eq_u32 vcc, 0, v0
    s_and_saveexec_b64 s[30:31], vcc
    s_cbranch_execz {P}_C5
    global_atomic_add v4, v5, s[6:7] sc1
    {P}_C5:
    s_mov_b64 exec, s[30:31]""")
def role_x(e,P,wg0,task0,task1,wpw,doG=True,doT=True,stride=0,nxt=None,tag='X'):
    EX=nxt or (P+'_END')
    e(f"""
    s_load_dwordx2 s[8:9], s[0:1], 0        ; x
    s_load_dwordx2 s[12:13], s[0:1], 24     ; dis
    s_cmp_ge_u32 s22, {wpw}
    s_cbranch_scc1 {EX}
    s_sub_u32 s3, s2, {wg0}
    s_mul_i32 s3, s3, {wpw}
    s_add_u32 s3, s3, s22
    s_add_u32 s40, s3, {task0}
    s_waitcnt lgkmcnt(0)
    {P}_{tag}L:
    s_cmp_ge_u32 s40, {task1}
    s_cbranch_scc1 {EX}
    s_lshl_b32 s20, s40, 4                   ; n0
    v_and_b32 v2, 15, v1
    v_add_u32 v2, s20, v2                   ; node
    v_lshrrev_b32 v3, 4, v1                 ; c4
    v_lshlrev_b32 v4, 8, v2
    v_lshl_add_u32 v4, v3, 4, v4
    v_lshlrev_b32 v5, 1, v2
    s_waitcnt lgkmcnt(0)
    s_mov_b32 s10, {N*256}
    s_mov_b32 s11, 0x20000
    s_mov_b32 s14, {N*2}
    s_mov_b32 s15, 0x20000
    """)
    e("buffer_load_ushort v6, v5, s[12:15], 0 offen")
    for i in range(4): e(f"buffer_load_dwordx4 v[{8+4*i}:{11+4*i}], v4, s[8:11], 0 offen offset:{64*i}")
    if XTOUCH and doG:
        e(f"""s_add_u32 s32, s4, {OFF_G+32*TS_STRIDE}
        s_addc_u32 s33, s5, 0
        s_mov_b32 s34, {32*TS_STRIDE}
        s_mov_b32 s35, 0x20000
        s_mov_b32 s21, {TS_STRIDE}
        v_mul_lo_u32 v72, v1, s21
        s_lshl_b32 s3, s20, 3
        v_add_u32 v72, s3, v72""")
        if XTOUCH==2:
            e("s_lshr_b32 s3, s20, 4\ns_and_b32 s3, s3, 63\ns_cmp_eq_u32 s3, 0\ns_cselect_b32 s34, s34, 0")
        e("buffer_load_dword v73, v72, s[32:35], 0 offen")
    e(f"""
    s_add_u32 s16, s4, {OFF_T}
    s_addc_u32 s17, s5, 0
    s_mov_b32 s18, {32*TS_STRIDE}
    s_mov_b32 s19, 0x20000
    s_add_u32 s24, s4, {OFF_G}
    s_addc_u32 s25, s5, 0
    s_mov_b32 s26, {32*TS_STRIDE}
    s_mov_b32 s27, 0x20000
    s_mov_b32 s21, {TS_STRIDE}
    v_and_b32 v7, 1, v1
    v_lshl_add_u32 v7, v3, 1, v7            ; 2*c4+parity
    v_mul_lo_u32 v7, v7, s21
    v_and_b32 v5, -2, v2
    v_lshl_add_u32 v7, v5, 3, v7
    s_mov_b32 s28, 0xffff0000
    s_mov_b32 s30, 0xaaaaaaaa
    s_mov_b32 s31, 0xaaaaaaaa
    s_waitcnt vmcnt({5 if (XTOUCH and doG) else 4})
    v_lshlrev_b32 v6, 16, v6
    """)
    def xch(d,o,t):
        e(f"""v_cndmask_b32 v{t}, v{d+2}, v{d}, s[30:31]
        v_cndmask_b32 v{t+1}, v{d+3}, v{d+1}, s[30:31]
        v_mov_b32_dpp v{t+2}, v{t} quad_perm:[1,0,3,2] row_mask:0xf bank_mask:0xf
        v_mov_b32_dpp v{t+3}, v{t+1} quad_perm:[1,0,3,2] row_mask:0xf bank_mask:0xf
        v_cndmask_b32 v{o}, v{d}, v{t+2}, s[30:31]
        v_cndmask_b32 v{o+1}, v{d+1}, v{t+3}, s[30:31]
        v_cndmask_b32 v{o+2}, v{t+2}, v{d+2}, s[30:31]
        v_cndmask_b32 v{o+3}, v{t+3}, v{d+3}, s[30:31]""")
    nst=int(doG)+int(doT)
    for i in range(4):
        b=8+4*i
        e(f"s_waitcnt vmcnt({(3-i)+nst*i+(1 if (XTOUCH and doG) else 0)})")
        e(f"s_mov_b32 s3, {8*i*TS_STRIDE}")
        if doG:
            for r in range(4):
                e(f"v_lshlrev_b32 v{24+2*r}, 16, v{b+r}\nv_and_b32 v{25+2*r}, s28, v{b+r}\nv_mul_f32 v{24+2*r}, v{24+2*r}, v6\nv_mul_f32 v{25+2*r}, v{25+2*r}, v6\nv_cvt_pk_bf16_f32 v{32+r}, v{24+2*r}, v{25+2*r}")
            xch(32,40+8*i,36)
            e(f"buffer_store_dwordx4 v[{40+8*i}:{43+8*i}], v7, s[24:27], s3 offen")
        if doT:
            xch(b,44+8*i,36)
            e(f"buffer_store_dwordx4 v[{44+8*i}:{47+8*i}], v7, s[16:19], s3 offen")
    if stride: e(f"s_add_u32 s40, s40, {stride}\ns_branch {P}_{tag}L")
    elif nxt: e(f"s_branch {nxt}")
    else: e("s_endpgm")
XTOUCH=False
ACC=64; CS=32768
def w_finish(e,center_right,scale,woff):
    e(f"v_add_f32 v8, v{ACC}, v{ACC+1}")
    for r in range(2,16): e(f"v_add_f32 v8, v8, v{ACC+r}")
    e("v_mov_b32 v12, v8\nv_permlane32_swap_b32 v8, v12\nv_add_f32 v8, v8, v12")
    e(f"v_and_b32 v13, 31, v1\nv_lshlrev_b32 v13, 2, v13\ns_lshl_b32 s3, s22, 7\nv_add_u32 v14, s3, v13\nds_write_b32 v14, v8 offset:{CS}")
    if center_right:
        e("v_add_f32 v9, v40, v41")
        for r in range(2,16): e(f"v_add_f32 v9, v9, v{40+r}")
        e("v_mov_b32 v12, v9\nv_permlane32_swap_b32 v9, v12\nv_add_f32 v9, v9, v12")
        e(f"v_bfe_u32 v14, v1, 2, 1\nv_lshlrev_b32 v14, 4, v14\nv_bfe_u32 v15, v1, 3, 2\nv_lshl_add_u32 v14, v15, 2, v14\nv_and_b32 v15, 3, v1\nv_add_u32 v14, v14, v15\nv_lshlrev_b32 v14, 2, v14\nv_add_u32 v14, s3, v14\nds_write_b32 v14, v9 offset:{CS+2048}")
    e("s_waitcnt lgkmcnt(0)\ns_barrier")
    e("s_and_b32 s3, s22, 3\ns_lshl_b32 s3, s3, 7\nv_add_u32 v14, s3, v13")
    for it in range(4): e(f"ds_read_b32 v{16+it}, v14 offset:{CS+512*it}")
    if center_right:
        e(f"v_lshlrev_b32 v15, 5, v1\nds_read_b128 v[20:23], v15 offset:{CS}\nds_read_b128 v[24:27], v15 offset:{CS+16}")
        e(f"s_lshr_b32 s3, s22, 2\ns_lshl_b32 s3, s3, 9\nv_lshrrev_b32 v15, 5, v1\nv_lshlrev_b32 v15, 6, v15\nv_add_u32 v15, s3, v15")
        for mt in range(4):
            for q in range(4): e(f"ds_read_b128 v[{84+16*(mt%2)+4*q}:{87+16*(mt%2)+4*q}], v15 offset:{CS+2048+128*mt+16*q}")
            if mt%2==1:
                e("s_waitcnt lgkmcnt(0)")
                for r in range(16):
                    if mt==1: e(f"v_add_f32 v{40+r}, v{84+r}, v{100+r}")
                    else: e(f"v_add_f32 v{84+r}, v{84+r}, v{100+r}\nv_add_f32 v{40+r}, v{40+r}, v{84+r}")
    e("s_waitcnt lgkmcnt(0)\ns_mov_b32 s3, 0x3c000000")
    e("v_add_f32 v8, v16, v17\nv_add_f32 v9, v18, v19\nv_add_f32 v8, v8, v9\nv_mul_f32 v8, s3, v8")
    if center_right:
        e("v_add_f32 v12, v20, v21")
        for k in range(2,8): e(f"v_add_f32 v12, v12, v{20+k}")
        allred32_f32(e,12,15)
        e("v_mov_b32 v15, v12\nv_permlane32_swap_b32 v12, v15\nv_add_f32 v12, v12, v15")
        e("v_mul_f32 v12, s3, v12\nv_mul_f32 v12, s3, v12\nv_sub_f32 v8, v8, v12")
        for r in range(16): e(f"v_fma_f32 v{40+r}, s3, v{40+r}, v8")
    e(f"s_mov_b32 s3, {scale:#x}")
    for r in range(16):
        a=ACC+r
        e(f"v_sub_f32 v{a}, v{a}, v{40+r}" if center_right else f"v_sub_f32 v{a}, v{a}, v8")
        if scale!=0x3f800000: e(f"v_mul_f32 v{a}, s3, v{a}")
    e(f"s_and_b32 s3, s22, 3\ns_lshl_b32 s3, s3, 13\ns_lshr_b32 s20, s22, 2\ns_lshl_b32 s20, s20, 11\ns_add_u32 s3, s3, s20\ns_add_u32 s3, s3, {OFF_W+woff}\nv_lshlrev_b32 v13, 4, v1\nv_add_u32 v13, s3, v13")
    for ee in range(2):
        for i in range(4): e(f"v_cvt_pk_bf16_f32 v{32+4*ee+i}, v{ACC+8*ee+2*i}, v{ACC+8*ee+2*i+1}")
        e(f"global_store_dwordx4 v13, v[{32+4*ee}:{35+4*ee}], s[4:5] offset:{ee*1024}")
    e("s_endpgm")
def rowaddr(e):
    e("""v_and_b32 v2, 0x13, v1
    v_bfe_u32 v3, v1, 2, 1
    v_lshl_or_b32 v2, v3, 3, v2
    v_bfe_u32 v3, v1, 3, 1
    v_lshl_or_b32 v2, v3, 2, v2
    v_lshlrev_b32 v3, 8, v2
    v_lshrrev_b32 v4, 5, v1
    v_lshl_add_u32 v3, v4, 4, v3""")
def two_srd(e,off):
    e(f"""s_load_dwordx4 s[8:11], s[0:1], {off}
    s_waitcnt lgkmcnt(0)
    s_mov_b32 s12, s8
    s_mov_b32 s13, s9
    s_mov_b32 s14, 32768
    s_mov_b32 s15, 0x20000
    s_mov_b32 s16, s10
    s_mov_b32 s17, s11
    s_mov_b32 s18, 32768
    s_mov_b32 s19, 0x20000""")
def stage(e,srd,ldsbase,r0):
    e(f"buffer_load_dwordx4 v[{r0}:{r0+3}], v90, {srd}, 0 offen\nbuffer_load_dwordx4 v[{r0+4}:{r0+7}], v91, {srd}, 0 offen")
def stage_addr(e):
    e("""v_lshlrev_b32 v90, 4, v0
    v_add_u32 v91, 16384, v90
    v_lshrrev_b32 v92, 4, v0
    v_and_b32 v93, 15, v92
    v_and_b32 v94, 15, v0
    v_xor_b32 v93, v93, v94
    v_lshlrev_b32 v93, 4, v93
    v_lshl_add_u32 v92, v92, 8, v93""")
def frag_addr(e,reg,tile_sreg):
    e(f"""v_and_b32 v2, 0x13, v1
    v_bfe_u32 v3, v1, 2, 1
    v_lshl_or_b32 v2, v3, 3, v2
    v_bfe_u32 v3, v1, 3, 1
    v_lshl_or_b32 v2, v3, 2, v2
    v_and_b32 v3, 15, v2
    v_lshrrev_b32 v4, 5, v1
    v_xor_b32 v{reg+1}, v3, v4
    v_lshlrev_b32 v{reg}, 8, v2
    v_add_u32 v{reg}, {tile_sreg}, v{reg}""")
def frag_read(e,dst,reg,es,base):
    e(f"v_xor_b32 v7, {2*es}, v{reg+1}\nv_lshl_add_u32 v7, v7, 4, v{reg}\nds_read_b128 v[{dst}:{dst+3}], v7 offset:{base}")
def role_wm(e):
    two_srd(e,32); stage_addr(e)
    stage(e,'s[12:15]',0,8); stage(e,'s[16:19]',32768,16)
    e("s_lshr_b32 s20, s22, 2\ns_lshl_b32 s20, s20, 13\ns_and_b32 s21, s22, 3\ns_lshl_b32 s21, s21, 13")
    frag_addr(e,56,'s20'); frag_addr(e,58,'s21')
    e("""s_waitcnt vmcnt(2)
    ds_write_b128 v92, v[8:11]
    ds_write_b128 v92, v[12:15] offset:16384
    s_waitcnt vmcnt(0)
    ds_write_b128 v92, v[16:19] offset:32768
    ds_write_b128 v92, v[20:23] offset:49152
    s_waitcnt lgkmcnt(0)
    s_barrier""")
    for es in range(8):
        frag_read(e,8+4*es,56,es,0); frag_read(e,84+4*es,58,es,32768)
        if es%4==3: e("s_waitcnt lgkmcnt(0)")
    e("s_barrier")
    for es in range(8):
        c="0" if es==0 else f"v[{ACC}:{ACC+15}]"
        e(f"v_mfma_f32_32x32x16_bf16 v[{ACC}:{ACC+15}], v[{8+4*es}:{11+4*es}], v[{84+4*es}:{87+4*es}], {c}")
        c="0" if es==0 else "v[40:55]"
        e(f"v_mfma_f32_32x32x16_bf16 v[40:55], v[{84+4*es}:{87+4*es}], v[{8+4*es}:{11+4*es}], {c}")
    sc=struct.unpack('<I',struct.pack('<f',1.4426950408889634/128**0.5))[0]
    w_finish(e,True,sc,0)
def role_wu(e):
    two_srd(e,48); stage_addr(e)
    stage(e,'s[12:15]',0,8); stage(e,'s[16:19]',32768,16)
    e("s_lshr_b32 s20, s22, 2\ns_lshl_b32 s20, s20, 13")
    frag_addr(e,56,'s20')
    e("""
    v_lshrrev_b32 v5, 5, v1
    v_lshlrev_b32 v5, 3, v5
    v_bfe_u32 v6, v1, 2, 2
    v_add_u32 v5, v5, v6
    v_lshlrev_b32 v5, 8, v5
    v_bfe_u32 v6, v1, 4, 1
    v_lshlrev_b32 v6, 4, v6
    v_and_b32 v7, 1, v1
    v_lshl_add_u32 v6, v7, 3, v6
    v_bfe_u32 v7, v1, 1, 1
    v_lshl_add_u32 v6, v7, 2, v6
    v_lshl_add_u32 v5, v6, 1, v5
    s_and_b32 s21, s22, 3
    s_lshl_b32 s21, s21, 6
    v_add_u32 v5, s21, v5
    s_waitcnt vmcnt(2)
    ds_write_b128 v92, v[8:11]
    ds_write_b128 v92, v[12:15] offset:16384
    s_waitcnt vmcnt(0)
    ds_write_b128 v90, v[16:19] offset:32768
    ds_write_b128 v91, v[20:23] offset:32768
    s_waitcnt lgkmcnt(0)
    s_barrier
    """)
    for es in range(8):
        frag_read(e,8+4*es,56,es,0)
        for jj in range(2):
            e(f"ds_read_b64_tr_b16 v[{84+4*es+2*jj}:{85+4*es+2*jj}], v5 offset:{32768+(16*es+4*jj)*256}")
        if es%4==3: e("s_waitcnt lgkmcnt(0)")
    e("s_barrier")
    for es in range(8):
        c="0" if es==0 else f"v[{ACC}:{ACC+15}]"
        e(f"v_mfma_f32_32x32x16_bf16 v[{ACC}:{ACC+15}], v[{8+4*es}:{11+4*es}], v[{84+4*es}:{87+4*es}], {c}")
    w_finish(e,False,0x3f800000,32768)
def role_sw(e,P):
    lg=struct.unpack('<I',struct.pack('<f',1.4426950408889634))[0]
    e(f"""
    s_load_dwordx2 s[8:9], s[0:1], 64       ; w_r
    v_mov_b32 v8, 0
    v_mov_b32 v9, 0
    v_mov_b32 v10, 0
    v_mov_b32 v11, 0
    v_lshlrev_b32 v2, 4, v0
    v_add_u32 v2, {OFF_FL}, v2
    s_waitcnt lgkmcnt(0)
    global_store_dwordx4 v2, v[8:11], s[4:5]
    s_cmp_lg_u32 s22, 0
    s_cbranch_scc1 {P}_SW2
    v_lshlrev_b32 v3, 2, v1
    global_load_dword v4, v3, s[8:9]
    s_waitcnt vmcnt(0)
    v_lshlrev_b32 v5, 16, v4
    v_and_b32 v6, 0xffff0000, v4
    v_add_f32 v7, v5, v6
    """)
    allred32_f32(e,7,12)
    e(f"""
    v_mov_b32 v12, v7
    v_permlane32_swap_b32 v7, v12
    v_add_f32 v7, v7, v12
    v_mul_f32 v7, 0x3c000000, v7
    v_sub_f32 v5, v5, v7
    v_sub_f32 v6, v6, v7
    v_mul_f32 v5, {lg:#x}, v5
    v_mul_f32 v6, {lg:#x}, v6
    v_cvt_pk_bf16_f32 v12, v5, v6
    v_lshlrev_b32 v13, 16, v12
    v_and_b32 v14, 0xffff0000, v12
    v_sub_f32 v5, v5, v13
    v_sub_f32 v6, v6, v14
    v_cvt_pk_bf16_f32 v13, v5, v6
    ds_write_b32 v3, v12 offset:256
    ds_write_b32 v3, v13 offset:512
    v_mov_b32 v12, 0x3f803f80
    v_mov_b32 v13, 0
    ds_write_b32 v3, v12
    ds_write_b32 v3, v13 offset:768
    {P}_SW2:
    s_waitcnt lgkmcnt(0)
    s_barrier
    s_cmp_ge_u32 s22, 8
    s_cbranch_scc1 {P}_END
    v_and_b32 v2, 3, v1
    v_lshlrev_b32 v2, 8, v2
    v_lshrrev_b32 v3, 5, v1
    v_lshl_add_u32 v2, v3, 4, v2
    s_lshl_b32 s3, s22, 5
    v_add_u32 v2, s3, v2
    ds_read_b128 v[8:11], v2
    v_bfe_u32 v3, v1, 4, 1
    v_bfe_u32 v4, v1, 2, 1
    v_cmp_eq_u32 vcc, v3, v4
    s_waitcnt lgkmcnt(0)
    v_cndmask_b32 v8, 0, v8, vcc
    v_cndmask_b32 v9, 0, v9, vcc
    v_cndmask_b32 v10, 0, v10, vcc
    v_cndmask_b32 v11, 0, v11, vcc
    s_lshl_b32 s3, s22, 10
    s_add_u32 s3, s3, {OFF_W+65536}
    v_lshlrev_b32 v2, 4, v1
    v_add_u32 v2, s3, v2
    global_store_dwordx4 v2, v[8:11], s[4:5]
    s_endpgm
    """)
def role_csr(e,P,MERGED=False):
    SC=' sc1' if MERGED else ''
    tstamp(e,0)
    if MERGED:
        e(f"""s_load_dwordx2 s[6:7], s[0:1], 80
        s_waitcnt lgkmcnt(0)
        s_cmp_lg_u32 s22, 0
        s_cbranch_scc1 {P}_W1
        s_cmp_lg_u32 s2, {NCH}
        s_cbranch_scc1 {P}_W2
        v_and_b32 v4, 3, v1
        v_lshlrev_b32 v4, 5, v4
        {P}_W0:
        global_load_dword v5, v4, s[6:7] sc1
        s_waitcnt vmcnt(0)
        v_cmp_gt_u32 vcc, {NCH//4}, v5
        s_cbranch_vccnz {P}_W0
        v_mov_b32 v4, 128
        v_mov_b32 v5, 1
        v_cmp_eq_u32 vcc, 0, v1
        s_and_saveexec_b64 s[30:31], vcc
        global_store_dword v4, v5, s[6:7] sc1
        s_mov_b64 exec, s[30:31]
        s_branch {P}_W1
        {P}_W2:
        v_mov_b32 v4, 128
        {P}_W3:
        global_load_dword v5, v4, s[6:7] sc1
        s_waitcnt vmcnt(0)
        v_cmp_eq_u32 vcc, 0, v5
        s_cbranch_vccnz {P}_W3
        {P}_W1:
        s_barrier""")
    tstamp(e,11)
    C1=0; C2=2560; CU=5120; OX=7680; WT=10240; ES=10496; ECAPB=16384
    e(f"""
    v_mov_b32 v3, 0
    v_lshlrev_b32 v4, 2, v0
    v_cmp_gt_u32 vcc, 640, v0
    s_and_saveexec_b64 s[30:31], vcc
    ds_write_b32 v4, v3 offset:{C1}
    ds_write_b32 v4, v3 offset:{C2}
    ds_write_b32 v4, v3 offset:{CU}
    s_mov_b64 exec, s[30:31]
    s_waitcnt lgkmcnt(0)
    s_add_u32 s8, s4, {OFF_OFFS}
    s_addc_u32 s9, s5, 0
    s_mov_b32 s10, {129*NCH*4}
    s_mov_b32 s11, 0x20000
    s_add_u32 s12, s4, {OFF_CH}
    s_addc_u32 s13, s5, 0
    s_mov_b32 s14, {EDG*4}
    s_mov_b32 s15, 0x20000
    s_add_u32 s16, s4, {OFF_ENT}
    s_addc_u32 s17, s5, 0
    s_mov_b32 s18, {ENT_BYTES}
    s_mov_b32 s19, 0x20000
    s_mul_i32 s3, s2, {NCH*4}
    v_lshlrev_b32 v5, 4, v1
    v_add_u32 v5, s22, v5                 ; seg
    v_cmp_gt_u32 vcc, {NCH}, v5
    v_cmp_gt_u32 s[32:33], 7, v1
    s_and_b64 vcc, vcc, s[32:33]
    v_lshlrev_b32 v6, 2, v5
    v_add_u32 v6, s3, v6
    v_mov_b32 v7, 0x7ffffff0
    s_nop 0
    v_cndmask_b32 v6, v7, v6, vcc
    buffer_load_dword v8, v6, s[8:11], 0 offen{SC}
    buffer_load_dword v9, v6, s[8:11], 0 offen offset:{NCH*4}{SC}
    v_lshlrev_b32 v10, 2, v1
    v_add_u32 v10, s3, v10
    buffer_load_dword v11, v10, s[8:11], 0 offen{SC}
    v_cmp_gt_u32 s[34:35], {NCH-64}, v1
    v_add_u32 v12, 256, v10
    v_cndmask_b32 v12, v7, v12, s[34:35]
    buffer_load_dword v12, v12, s[8:11], 0 offen{SC}
    s_waitcnt vmcnt(2)
    v_sub_u32 v9, v9, v8
    v_mul_u32_u24 v5, {CHE}, v5
    v_add_u32 v8, v8, v5
    """)
    tstamp(e,1)
    for i in range(7): e(f"v_readlane_b32 s{40+i}, v8, {i}\nv_readlane_b32 s{48+i}, v9, {i}")
    R=16
    for i in range(7):
        e(f"""v_add_u32 v13, s{40+i}, v1
        v_lshlrev_b32 v13, 2, v13
        v_cmp_gt_u32 vcc, s{48+i}, v1
        s_nop 1
        v_cndmask_b32 v13, v7, v13, vcc
        buffer_load_dword v{R+i}, v13, s[12:15], 0 offen{SC}""")
    e("s_waitcnt vmcnt(7)\nv_add_u32 v11, v11, v12")
    wave_scan(e,11)
    e("s_nop 1\nv_readlane_b32 s24, v11, 63\ns_barrier")
    tstamp(e,2)
    CI=24; RK=32; VL=40
    def decode(rec,ci,vl,t):
        e(f"""v_lshrrev_b32 v{ci}, 16, v{rec}
        v_and_b32 v{vl}, 0xffff, v{rec}
        v_cmp_le_u32 vcc, s28, v{vl}
        v_cmp_le_u32 s[36:37], s27, v{vl}
        v_mul_u32_u24 v{ci}, 3, v{ci}
        v_add_u32 v{t}, {BADD}, v{vl}
        v_subrev_u32 v{t+1}, {TH2}, v{vl}
        v_cndmask_b32 v{vl}, v{vl}, v{t}, vcc
        v_cndmask_b32 v{vl}, v{vl}, v{t+1}, s[36:37]
        v_addc_co_u32 v{ci}, vcc, 0, v{ci}, vcc
        v_addc_co_u32 v{ci}, vcc, 0, v{ci}, s[36:37]
        v_lshlrev_b32 v{ci}, 2, v{ci}""")
    e(f"v_mov_b32 v3, 1\ns_movk_i32 s27, {TH2}\ns_movk_i32 s28, {TH1}")
    for i in range(7):
        e(f"s_waitcnt vmcnt({6-i})")
        decode(R+i,CI+i,VL+i,14)
        e(f"""v_cmp_gt_u32 vcc, s{48+i}, v1
        s_and_saveexec_b64 s[30:31], vcc
        ds_add_rtn_u32 v{RK+i}, v{CI+i}, v3 offset:{C1}
        s_mov_b64 exec, s[30:31]""")
    def remainder(final):
        for i in range(7):
            L=e.lab(P+'RM'); Lx=e.lab(P+'RX')
            e(f"""s_cmp_le_u32 s{48+i}, 64
            s_cbranch_scc1 {Lx}
            s_mov_b32 s25, 64
            {L}:
            v_add_u32 v13, s25, v1
            v_cmp_gt_u32 vcc, s{48+i}, v13
            s_and_saveexec_b64 s[30:31], vcc
            s_cbranch_execz {L}_s
            v_add_u32 v13, s{40+i}, v13
            v_lshlrev_b32 v13, 2, v13
            buffer_load_dword v48, v13, s[12:15], 0 offen{SC}
            s_waitcnt vmcnt(0)""")
            decode(48,49,50,14)
            if not final: e(f"ds_add_u32 v49, v3 offset:{C2}")
            else:
                e(f"""ds_add_rtn_u32 v51, v49, v3 offset:{CU}
                ds_read_b32 v52, v49 offset:{OX}
                ds_read_b32 v53, v49 offset:{C1}
                s_waitcnt lgkmcnt(0)
                v_add3_u32 v51, v51, v52, v53
                v_lshlrev_b32 v51, 1, v51""")
                if final==2: e("v_add_u32 v51, s39, v51\nds_write_b16 v51, v50")
                else: e("buffer_store_short v50, v51, s[16:19], 0 offen")
            e(f"""{L}_s:
            s_mov_b64 exec, s[30:31]
            s_add_u32 s25, s25, 64
            s_cmp_lt_u32 s25, s{48+i}
            s_cbranch_scc1 {L}
            {Lx}:""")
    remainder(False)
    tstamp(e,3)
    e("s_waitcnt lgkmcnt(0)\ns_barrier")
    tstamp(e,4)
    e(f"""
    s_cmp_ge_u32 s22, 4
    s_cbranch_scc1 {P}_N1
    v_mul_u32_u24 v4, 12, v0
    ds_read_b32 v48, v4 offset:{C1}
    ds_read_b32 v49, v4 offset:{C1+4}
    ds_read_b32 v50, v4 offset:{C1+8}
    ds_read_b32 v51, v4 offset:{C2}
    ds_read_b32 v52, v4 offset:{C2+4}
    ds_read_b32 v53, v4 offset:{C2+8}
    v_cmp_gt_u32 vcc, 196, v0
    s_waitcnt lgkmcnt(0)
    """)
    for k in range(3):
        e(f"v_add_u32 v{48+k}, v{48+k}, v{51+k}\nv_cndmask_b32 v{48+k}, 0, v{48+k}, vcc\nv_add_u32 v{54+k}, 1, v{48+k}\nv_and_b32 v{54+k}, -2, v{54+k}")
    e("v_add3_u32 v57, v54, v55, v56\nv_mov_b32 v58, v57")
    wave_scan(e,58)
    e(f"""
    s_nop 1
    v_readlane_b32 s3, v58, 63
    s_lshl_b32 s25, s22, 2
    v_mov_b32 v59, s25
    v_mov_b32 v60, s3
    ds_write_b32 v59, v60 offset:{WT}
    {P}_N1:
    s_waitcnt lgkmcnt(0)
    s_barrier
    s_cmp_ge_u32 s22, 4
    s_cbranch_scc1 {P}_P2
    v_mov_b32 v59, 0
    ds_read_b128 v[60:63], v59 offset:{WT}
    v_sub_u32 v58, v58, v57
    s_mul_i32 s3, s2, 590
    s_add_u32 s3, s3, s24
    s_add_u32 s3, s3, 1
    s_and_b32 s26, s3, -2
    s_waitcnt lgkmcnt(0)
    v_readfirstlane_b32 s56, v60
    v_readfirstlane_b32 s57, v61
    v_readfirstlane_b32 s58, v62
    s_cmp_ge_u32 s22, 1
    s_cselect_b32 s56, s56, 0
    s_cmp_ge_u32 s22, 2
    s_cselect_b32 s57, s57, 0
    s_cmp_ge_u32 s22, 3
    s_cselect_b32 s58, s58, 0
    s_add_u32 s26, s26, s56
    s_add_u32 s26, s26, s57
    s_add_u32 s26, s26, s58
    v_add_u32 v64, s26, v58               ; offA
    v_add_u32 v65, v64, v54               ; offB
    v_add_u32 v66, v65, v55               ; offC
    v_add_u32 v67, v66, v56               ; end
    v_cmp_eq_u32 vcc, 0, v0
    s_and_saveexec_b64 s[30:31], vcc
    ds_write_b32 v59, v64 offset:{WT+16}
    s_mov_b64 exec, s[30:31]
    v_cmp_eq_u32 vcc, 195, v0
    s_and_saveexec_b64 s[30:31], vcc
    ds_write_b32 v59, v67 offset:{WT+20}
    s_mov_b64 exec, s[30:31]
    v_cmp_gt_u32 vcc, 196, v0
    s_and_saveexec_b64 s[30:31], vcc
    s_cbranch_execz {P}_N2
    ds_write_b32 v4, v64 offset:{OX}
    ds_write_b32 v4, v65 offset:{OX+4}
    ds_write_b32 v4, v66 offset:{OX+8}
    s_mul_i32 s3, s2, {196*16}
    v_lshlrev_b32 v5, 4, v0
    v_add_u32 v5, s3, v5
    v_add_u32 v6, {OFF_NOFF}, v5
    global_store_dwordx4 v6, v[64:67], s[4:5]
    v_lshrrev_b32 v54, 1, v54
    v_lshrrev_b32 v55, 1, v55
    v_lshrrev_b32 v56, 1, v56
    v_or3_b32 v71, v54, v55, v56
    v_lshrrev_b32 v71, 10, v71
    v_mov_b32 v68, v64
    v_lshl_or_b32 v69, v55, 10, v54
    v_lshl_or_b32 v69, v56, 20, v69
    v_min_u32 v55, 7, v55
    v_min_u32 v56, 7, v56
    v_min_u32 v54, 15, v54
    v_and_b32 v72, 1, v55
    v_sub_u32 v73, 7, v56
    v_cmp_eq_u32 vcc, 1, v72
    v_cndmask_b32 v56, v56, v73, vcc
    v_lshl_or_b32 v56, v55, 3, v56
    v_and_b32 v72, 1, v56
    v_sub_u32 v73, 15, v54
    v_cmp_eq_u32 vcc, 1, v72
    v_cndmask_b32 v54, v54, v73, vcc
    v_lshl_or_b32 v54, v56, 4, v54
    v_lshlrev_b32 v70, 2, v54
    v_add_u32 v6, {OFF_NINFO}, v5
    global_store_dwordx4 v6, v[68:71], s[4:5]
    """)
    e(f"""
    {P}_N2:
    s_mov_b64 exec, s[30:31]
    {P}_P2:
    s_waitcnt lgkmcnt(0)
    s_barrier
    """)
    tstamp(e,5)
    e(f"""
    v_mov_b32 v59, 0
    ds_read_b64 v[60:61], v59 offset:{WT+16}
    s_waitcnt lgkmcnt(0)
    v_readfirstlane_b32 s26, v60        ; EB
    v_readfirstlane_b32 s29, v61        ; end
    s_sub_u32 s38, s29, s26
    s_lshl_b32 s38, s38, 1              ; bytes
    s_cmp_gt_u32 s38, {ECAPB}
    s_cbranch_scc1 {P}_DIRECT
    """)
    e(f"s_lshl_b32 s39, s26, 1\ns_sub_u32 s39, {ES}, s39")
    for i in range(7):
        e(f"""v_cmp_gt_u32 vcc, s{48+i}, v1
        s_and_saveexec_b64 s[30:31], vcc
        ds_read_b32 v{R+i}, v{CI+i} offset:{OX}
        s_mov_b64 exec, s[30:31]""")
    e(f"""s_cmp_ge_u32 s22, 4
    s_cbranch_scc1 {P}_NP1
    v_cmp_gt_u32 vcc, 196, v0
    s_and_saveexec_b64 s[32:33], vcc
    s_cbranch_execz {P}_NP0
    v_mov_b32 v72, {ZSI}""")
    for k in range(3):
        e(f"""v_and_b32 v73, 1, v{48+k}
        v_cmp_eq_u32 vcc, 1, v73
        v_add_u32 v73, v{64+k}, v{48+k}
        v_lshlrev_b32 v73, 1, v73
        v_add_u32 v73, s39, v73
        s_and_saveexec_b64 s[30:31], vcc
        ds_write_b16 v73, v72
        s_mov_b64 exec, s[30:31]""")
    e(f"{P}_NP0:\ns_mov_b64 exec, s[32:33]\n{P}_NP1:\ns_waitcnt lgkmcnt(0)")
    for i in range(7):
        e(f"""v_add_u32 v13, v{R+i}, v{RK+i}
        v_lshlrev_b32 v13, 1, v13
        v_add_u32 v13, s39, v13
        v_cmp_gt_u32 vcc, s{48+i}, v1
        s_and_saveexec_b64 s[30:31], vcc
        ds_write_b16 v13, v{VL+i}
        s_mov_b64 exec, s[30:31]""")
    remainder(2)
    e(f"""s_waitcnt lgkmcnt(0)
    s_barrier
    v_lshlrev_b32 v4, 4, v0
    v_cmp_gt_u32 vcc, s38, v4
    s_and_saveexec_b64 s[30:31], vcc
    s_cbranch_execz {P}_END
    ds_read_b128 v[8:11], v4 offset:{ES}
    s_lshl_b32 s18, s29, 1
    s_lshl_b32 s3, s26, 1
    s_waitcnt lgkmcnt(0)
    buffer_store_dwordx4 v[8:11], v4, s[16:19], s3 offen
    """)
    tstamp(e,6)
    if TSK: e("s_waitcnt vmcnt(0)")
    tstamp(e,7)
    tdump(e,5,12)
    e(f"s_endpgm\n{P}_DIRECT:")
    e(f"""s_cmp_ge_u32 s22, 4
    s_cbranch_scc1 {P}_NQ1
    v_cmp_gt_u32 vcc, 196, v0
    s_and_saveexec_b64 s[32:33], vcc
    s_cbranch_execz {P}_NQ0
    v_mov_b32 v72, {ZSI}
    v_mov_b32 v74, 0x7ffffff0""")
    for k in range(3):
        e(f"""v_and_b32 v73, 1, v{48+k}
        v_cmp_eq_u32 vcc, 1, v73
        v_add_u32 v73, v{64+k}, v{48+k}
        v_lshlrev_b32 v73, 1, v73
        v_cndmask_b32 v73, v74, v73, vcc
        buffer_store_short v72, v73, s[16:19], 0 offen""")
    e(f"{P}_NQ0:\ns_mov_b64 exec, s[32:33]\n{P}_NQ1:")
    for i in range(7):
        e(f"""v_cmp_gt_u32 vcc, s{48+i}, v1
        s_and_saveexec_b64 s[30:31], vcc
        ds_read_b32 v{R+i}, v{CI+i} offset:{OX}
        s_mov_b64 exec, s[30:31]""")
    e("s_waitcnt lgkmcnt(0)\nv_mov_b32 v94, 0x7ffffff0")
    for i in range(7):
        e(f"""v_add_u32 v13, v{R+i}, v{RK+i}
        v_lshlrev_b32 v13, 1, v13
        v_cmp_gt_u32 vcc, s{48+i}, v1
        s_nop 1
        v_cndmask_b32 v13, v94, v13, vcc
        buffer_store_short v{VL+i}, v13, s[16:19], 0 offen""")
    remainder(True)
    e("s_endpgm")
XW=16; XWC=0
P_WM=128; P_WU=129; P_SW=130; P_X0=131
XC_TASKS=28*XWC
P_GRID=P_X0+(1563-XC_TASKS+XW-1)//XW
P_LDS=64*1024
def gen_prep():
    e=E(); head(e,P_GRID,'KP')
    e(f"""s_cmp_ge_u32 s2, {P_X0}
    s_cbranch_scc1 KP_X
    s_cmp_eq_u32 s2, {P_WM}
    s_cbranch_scc1 KP_WM
    s_cmp_eq_u32 s2, {P_WU}
    s_cbranch_scc1 KP_WU
    s_cmp_eq_u32 s2, {P_SW}
    s_cbranch_scc1 KP_SW
    s_cmp_ge_u32 s2, {NCH}
    s_cbranch_scc1 {'KP_XC' if XWC else 'KP_CSR'}""")
    role_chunk(e,'KC',True)
    e("KP_CSR:"); role_csr(e,'KP',True)
    if XWC: e("KP_XC:"); role_x(e,'KP',NCH,0,XC_TASKS,XWC,True,True,nxt='KP_CSR',tag='Y')
    e("KP_X:"); role_x(e,'KP',P_X0,XC_TASKS,1563,XW,True,True)
    e("KP_SW:"); role_sw(e,'KP')
    e("KP_WM:"); role_wm(e)
    e("KP_WU:"); role_wu(e)
    e("KP_END:")
    return e.text(),128,88
XW16=16
K1_XWG0=103; K1_GRID=K1_XWG0+(1563+15)//16
K2_GRID=128
K1_LDS=64*1024; K2_LDS=28*1024
def gen_k1():
    e=E(); head(e,K1_GRID,'K1')
    e(f"s_cmp_ge_u32 s2, {K1_XWG0}\ns_cbranch_scc1 K1_X\ns_cmp_eq_u32 s2, 100\ns_cbranch_scc1 K1_WM\ns_cmp_eq_u32 s2, 101\ns_cbranch_scc1 K1_WU\ns_cmp_eq_u32 s2, 102\ns_cbranch_scc1 K1_SW")
    role_chunk(e,'K1')
    e("K1_X:"); role_x(e,'K1',K1_XWG0,0,1563,16,True,True)
    e("K1_SW:"); role_sw(e,'K1')
    e("K1_WM:"); role_wm(e)
    e("K1_WU:"); role_wu(e)
    e("K1_END:")
    return e.text(),128,40
def gen_k2():
    e=E(); head(e,K2_GRID,'K2')
    role_csr(e,'K2')
    e("K2_END:")
    return e.text(),104,88
```

```python
import sys
sys.path.insert(0,'dev')
from glib import *
from mkall import K
import prep as _p
def build(dst, k4='k4v6', exp='prio notouch pf', ppf=True, xtouch=True):
    import importlib
    _p.XTOUCH=xtouch; _p.PPF=ppf
    from k3 import gen_k3,K3_LDS
    m=importlib.import_module(k4)
    L=[('prep_kernel',_p.P_GRID,1024,_p.P_LDS),('hops_kernel',256,1024,K3_LDS),('final_kernel',256,m.K4_BLOCK,m.K4_LDS)]
    Ks=[K('prep_kernel',_p.gen_prep),K('hops_kernel',gen_k3,PD=1,TMODE=0,EXP=exp),K('final_kernel',m.gen_k4)]
    hdr=open('gather_scatter__hybrid_graph_tf_nagphormer__graph.s.ref').read().split('; Override launch')[0]
    open(dst,'w').write(hdr+file_text(L,Ks))
if __name__=='__main__':
    build('gather_scatter__hybrid_graph_tf_nagphormer__graph.s')
    build('f_v3.s',k4='k4v3',exp='prio notouch',ppf=False)
    build('f_v6nopf.s',exp='prio notouch',ppf=False)
```

```python
from glib import E
from layout import *
from prep import wave_scan, OFF_NINFO
RXS=[18,18,20]; RB=[0,18,36]; RT=56
ASG=[2, 15, 14, 0, 0, 1, 14, 6, 11, 4, 7, 9, 5, 3, 10, 10, 0, 3, 0, 12, 7, 13, 5, 12, 8, 9, 2, 5, 8, 3, 4, 13, 2, 15, 4, 1, 11, 6, 12, 8, 13, 11, 10, 7, 15, 9, 6, 1, 14]
BUF0=0; ZS=ZSA; STG=BUF1; DUMP=STG+25088
ECAP=131072; SA=131072; SB=SA+12544; HIST=SB+12544; MISC=HIST+4096
DP=MISC+128
SLOWF=MISC+132
BMAX=MISC+256
K3_LDS=BMAX+1024
FL_XC=OFF_FL+8192
def gen_k3(NH=7, TS=False, PD=2, FORCE_SLOW=False, FORCE_SLOWSYNC=False, DBG=False, GATE=True, TMODE=0, EXP=''):
    e=E()
    DS='' if 'dplain' in EXP else ' sc0' if 'dsc0' in EXP else ' nt' if 'dnt' in EXP else ' sc1'
    vL=2; vD=6; v16=10; vC=11; ACC=12; AC=28; DAT=32; TMP=56; CD=64; CO=68; IDX=72; NV=128
    ool=[]
    def stamp(idx):
        if not TS: return
        e(f"s_memtime s[62:63]\ns_waitcnt lgkmcnt(0)\ns_sub_u32 s{76+idx}, s62, s60")
    def pstamp(idx):
        if TS!=2: return
        e(f"s_memtime s[62:63]\ns_waitcnt lgkmcnt(0)\ns_sub_u32 s{82+idx}, s62, s60")
    def entdma(ks):
        for k in ks:
            e(f"s_add_u32 m0, s56, {k*16384}\ns_add_u32 s3, s50, {k*16384}\nbuffer_load_dwordx4 v{v16}, s[12:15], s3 offen lds")
    def hstamp(idx):
        if TS!=1: return
        lab=e.lab('HS')
        e(f"s_cmp_lg_u32 s68, 3\ns_cbranch_scc1 {lab}\ns_memtime s[62:63]\ns_waitcnt lgkmcnt(0)\ns_sub_u32 s{82+idx}, s62, s60\n{lab}:")
    e(f"""
    s_cmp_ge_u32 s2, 256
    s_cbranch_scc1 K3_END
    s_load_dwordx2 s[4:5], s[0:1], 88
    s_load_dwordx2 s[6:7], s[0:1], 24
    s_memtime s[60:61]
    s_and_b32 s20, s2, 7
    s_lshl_b32 s20, s20, 2
    s_lshr_b32 s3, s2, 3
    s_and_b32 s3, s3, 3
    s_add_u32 s20, s20, s3          ; g
    s_lshr_b32 s21, s2, 5           ; p
    v_lshrrev_b32 v{TMP}, 6, v0
    v_and_b32 v1, 63, v0
    s_getreg_b32 s44, hwreg(HW_REG_XCC_ID, 0, 4)
    v_readfirstlane_b32 s22, v{TMP}   ; wave
    s_mul_i32 s41, s21, {PN}
    s_waitcnt lgkmcnt(0)
    s_lshl_b32 s3, s20, 6
    s_add_u32 s45, s3, {FL_XC}
    s_lshl_b32 s3, s21, 2
    s_add_u32 s3, s3, s45
    s_add_u32 s44, s44, 1
    v_mov_b32 v2, s3
    v_mov_b32 v3, s44
    v_cmp_eq_u32 vcc, 0, v0
    s_and_saveexec_b64 s[30:31], vcc
    s_cbranch_execz K3_X1
    global_store_dword v2, v3, s[4:5] sc1
    K3_X1:
    s_mov_b64 exec, s[30:31]
    s_add_u32 s8, s4, {OFF_NOFF}
    s_addc_u32 s9, s5, 0
    s_mov_b32 s10, {25088*16}
    s_mov_b32 s11, 0x20000
    s_mov_b32 s16, s6
    s_mov_b32 s17, s7
    s_mov_b32 s18, {N*2}
    s_mov_b32 s19, 0x20000
    v_mov_b32 v2, s41
    v_lshlrev_b32 v2, 4, v2
    buffer_load_dword v4, v2, s[8:11], 0 offen
    v_add_u32 v3, {3135*16+12}, v2
    buffer_load_dword v5, v3, s[8:11], 0 offen
    v_add_u32 v2, s41, v0
    v_lshlrev_b32 v2, 4, v2
    v_add_u32 v3, 16384, v2
    v_add_u32 v6, 32768, v2
    v_add_u32 v7, 49152, v2
    s_add_u32 s12, s4, {OFF_NINFO}
    s_addc_u32 s13, s5, 0
    s_mov_b32 s14, {25088*16}
    s_mov_b32 s15, 0x20000
    buffer_load_dwordx4 v[12:15], v2, s[12:15], 0 offen
    buffer_load_dwordx4 v[16:19], v3, s[12:15], 0 offen
    buffer_load_dwordx4 v[20:23], v6, s[12:15], 0 offen
    buffer_load_dwordx4 v[24:27], v7, s[12:15], 0 offen
    s_mov_b32 s42, {PN}
    s_cmp_eq_u32 s21, 7
    s_cselect_b32 s42, {N-7*PN}, s42
    v_lshlrev_b32 v{TMP}, 1, v0
    v_add_u32 v{TMP+1}, 2048, v{TMP}
    """)
    for t in range(2):
        e(f"""
        v_add_u32 v{TMP+2}, s41, v{TMP+t}
        v_lshlrev_b32 v{CO+t}, 3, v{TMP+2}
        v_lshlrev_b32 v{TMP+2}, 1, v{TMP+2}
        v_cmp_gt_u32 vcc, s42, v{TMP+t}
        v_mov_b32 v{TMP+3}, 0x7ffffff0
        s_nop 0
        v_cndmask_b32 v{CO+t}, v{TMP+3}, v{CO+t}, vcc
        v_cndmask_b32 v{TMP+2}, v{TMP+3}, v{TMP+2}, vcc
        buffer_load_dword v{CD+2*t}, v{TMP+2}, s[16:19], 0 offen
        """)
    e(f"""
    """)
    if 'pf' in EXP:
        e(f"""s_getpc_b64 s[52:53]
        K3_PC:
        v_lshlrev_b32 v{TMP+2}, 6, v0
        v_min_u32 v{TMP+2}, K3_END-K3_PC-4, v{TMP+2}
        v_and_b32 v{TMP+2}, -4, v{TMP+2}
        global_load_dword v{TMP+3}, v{TMP+2}, s[52:53]""")
    if 'notouch' not in EXP: e(f"""
    s_add_u32 s3, s20, 32
    s_mul_i32 s3, s3, {TS_STRIDE}
    s_lshl_b32 s28, s41, 3
    s_add_u32 s3, s3, s28
    v_lshlrev_b32 v{TMP+2}, 7, v0
    v_add_u32 v{TMP+2}, s3, v{TMP+2}
    v_cmp_gt_u32 vcc, 196, v0
    v_mov_b32 v{TMP+3}, 0x7ffffff0
    s_add_u32 s52, s4, {OFF_G}
    s_addc_u32 s53, s5, 0
    s_mov_b32 s54, {2*32*TS_STRIDE}
    s_mov_b32 s55, 0x20000
    v_cndmask_b32 v{TMP+2}, v{TMP+3}, v{TMP+2}, vcc
    buffer_load_dword v{TMP+3}, v{TMP+2}, s[52:55], 0 offen
    """)
    e(f"""
    """)
    if 'touch0' in EXP:
        e(f"v_subrev_u32 v{TMP+2}, {32*TS_STRIDE}, v{TMP+2}\nbuffer_load_dword v{TMP+3}, v{TMP+2}, s[52:55], 0 offen")
    e(f"""
    v_lshlrev_b32 v6, 2, v0
    v_mov_b32 v7, 0
    v_add_u32 v6, {HIST}, v6
    ds_write_b32 v6, v7
    v_mov_b32 v8, {SLOWF}
    ds_write_b32 v8, v7
    v_mov_b32 v7, {ZSI|(ZSI<<16)}
    v_mov_b32 v8, {DP}
    ds_write_b32 v8, v7
    v_lshlrev_b32 v{v16}, 4, v1
    s_waitcnt lgkmcnt(0)
    s_barrier
    s_waitcnt vmcnt({6+(0 if 'notouch' in EXP else 1)+(1 if 'touch0' in EXP else 0)+(1 if 'pf' in EXP else 0)})
    v_readfirstlane_b32 s46, v4
    v_readfirstlane_b32 s47, v5
    s_add_u32 s12, s4, {OFF_ENT}
    s_addc_u32 s13, s5, 0
    s_mov_b32 s15, 0x20000
    s_sub_u32 s48, s47, s46
    s_lshl_b32 s48, s48, 1            ; bytes
    s_lshl_b32 s14, s47, 1
    s_cmp_gt_u32 s48, {ECAP}
    s_cselect_b32 s49, 1, 0
    s_cselect_b32 s14, 0, s14
    s_lshl_b32 s50, s46, 1
    s_lshl_b32 s56, s22, 10
    s_add_u32 s50, s50, s56
    """)
    stamp(0)
    KEY=28; RNK=32; PKA=36; PKB=40
    e(f"v_mov_b32 v44, 0\nv_mov_b32 v45, 1\ns_mov_b32 s51, {HIST}\nv_cmp_gt_u32 s[52:53], 64, v0")
    for r in range(4):
        e(f"s_waitcnt vmcnt({(3-r)+2+(0 if 'notouch' in EXP else 1)+(1 if 'touch0' in EXP else 0)+(1 if 'pf' in EXP else 0)})")
        b=12+4*r
        if r==3: e(f"v_cndmask_b32 v{b+3}, 0, v{b+3}, s[52:53]")
        e(f"""v_or_b32 v44, v44, v{b+3}
        v_subrev_u32 v49, s46, v{b}
        v_lshlrev_b32 v49, 12, v49
        v_add_u32 v50, {1024*r}, v0
        v_or_b32 v{PKA+r}, v49, v50
        v_mov_b32 v{PKB+r}, v{b+1}
        v_add_u32 v{KEY+r}, s51, v{b+2}""")
        if r==3: e("s_mov_b64 s[30:31], exec\ns_mov_b64 exec, s[52:53]\ns_cbranch_execz K3_H3")
        e(f"ds_add_rtn_u32 v{RNK+r}, v{KEY+r}, v45")
        if r==3: e("K3_H3:\ns_mov_b64 exec, s[30:31]")
    entdma((0,1,2))
    pstamp(0)
    e(f"""
    v_cmp_ne_u32 vcc, 0, v44
    s_cmp_lg_u64 vcc, 0
    s_cselect_b32 s3, 1, 0
    s_or_b32 s49, s49, s3
    s_waitcnt lgkmcnt(0)
    s_barrier
    """)
    pstamp(1)
    entdma((3,4,5))
    e(f"""
    v_lshlrev_b32 v6, 2, v0
    v_add_u32 v6, {HIST}, v6
    ds_read_b32 v7, v6
    s_waitcnt lgkmcnt(0)
    v_mov_b32 v8, v7
    """)
    wave_scan(e,8,9)
    e(f"""
    s_nop 1
    v_readlane_b32 s3, v8, 63
    s_lshl_b32 s28, s22, 2
    s_add_u32 s28, s28, {MISC}
    v_mov_b32 v9, s28
    v_mov_b32 v46, s3
    ds_write_b32 v9, v46
    s_waitcnt lgkmcnt(0)
    s_barrier
    """)
    entdma((6,7))
    e(f"""
    v_lshlrev_b32 v9, 2, v1
    v_add_u32 v9, {MISC}, v9
    v_cmp_gt_u32 vcc, 16, v1
    v_mov_b32 v46, 0
    s_and_saveexec_b64 s[30:31], vcc
    ds_read_b32 v46, v9
    s_mov_b64 exec, s[30:31]
    s_waitcnt lgkmcnt(0)
    v_cmp_gt_u32 vcc, s22, v1
    s_nop 1
    v_cndmask_b32 v46, 0, v46, vcc
    """)
    wave_scan(e,46,47)
    e(f"""
    s_nop 1
    v_readlane_b32 s3, v46, 63
    v_sub_u32 v8, v8, v7
    v_add_u32 v8, s3, v8
    ds_write_b32 v6, v8
    s_waitcnt lgkmcnt(0)
    s_barrier
    """)
    pstamp(2)
    for r in range(3): e(f"ds_read_b32 v{12+r}, v{KEY+r}")
    e("s_mov_b64 s[30:31], exec\ns_mov_b64 exec, s[52:53]\ns_cbranch_execz K3_H4a\nds_read_b32 v15, v31\nK3_H4a:\ns_mov_b64 exec, s[30:31]\ns_waitcnt lgkmcnt(0)")
    for r in range(4):
        if r==3: e("s_mov_b64 s[30:31], exec\ns_mov_b64 exec, s[52:53]\ns_cbranch_execz K3_H4")
        e(f"""v_add_u32 v46, v{12+r}, v{RNK+r}
        v_lshlrev_b32 v47, 2, v46
        v_add_u32 v47, {SA}, v47
        ds_write_b32 v47, v{PKA+r}
        ds_write_b32 v47, v{PKB+r} offset:12544
""")
        if r==3: e("K3_H4:\ns_mov_b64 exec, s[30:31]")
    pstamp(3)
    e(f"""
    s_cmp_eq_u32 s49, 0
    s_cbranch_scc1 K3_NOSF
    v_mov_b32 v46, {SLOWF}
    v_mov_b32 v47, 1
    ds_write_b32 v46, v47
    K3_NOSF:
    s_waitcnt vmcnt(0) lgkmcnt(0)
    s_barrier
    """)
    stamp(1)
    wb=[[] for _ in range(16)]
    for bi,w in enumerate(ASG): wb[w].append(bi)
    e("s_mov_b32 s3, 0")
    for w in range(16):
        nb=len(wb[w]); lst=[0]*(4-nb)+wb[w]
        val=nb|(lst[0]<<4)|(lst[1]<<10)|(lst[2]<<16)|(lst[3]<<22)
        e(f"s_cmp_eq_u32 s22, {w}\ns_cselect_b32 s3, {val:#x}, s3")
    e("""s_and_b32 s39, s3, 15
    s_sub_u32 s38, 4, s39
    s_bfe_u32 s28, s3, 0x60004
    s_bfe_u32 s29, s3, 0x6000a
    s_bfe_u32 s30, s3, 0x60010
    s_bfe_u32 s31, s3, 0x60016""")
    QA=32; QP=36
    BM=12
    for s in range(4):
        e(f"s_lshl_b32 s3, s{28+s}, 8\ns_add_u32 s3, s3, {SA}\nv_lshl_add_u32 v46, v1, 2, s3\nds_read_b32 v{QA+s}, v46\nds_read_b32 v{QP+s}, v46 offset:12544")
        pass
    e("s_waitcnt lgkmcnt(0)")
    for s in range(3):
        lab=e.lab('IV')
        e(f"s_cmp_le_u32 s38, {s}\ns_cbranch_scc1 {lab}\nv_mov_b32 v{QP+s}, 0\nv_mov_b32 v{QA+s}, 0xfff\n{lab}:")
    CNT=40
    for s in range(4):
        e(f"v_and_b32 v{CNT+s}, 0x3ff, v{QP+s}\nv_bfe_u32 v{CNT+4+s}, v{QP+s}, 10, 10\nv_bfe_u32 v{CNT+8+s}, v{QP+s}, 20, 10")
    for s_ in range(4): e(f"v_lshl_or_b32 v{BM+s_}, v{CNT+4+s_}, 16, v{CNT+s_}")
    e(f"v_lshl_or_b32 v{BM+4}, v{CNT+9}, 16, v{CNT+8}\nv_lshl_or_b32 v{BM+5}, v{CNT+11}, 16, v{CNT+10}")
    for s_ in range(4):
        if s_<3: e(f"s_cmp_le_u32 s38, {s_}\ns_cselect_b32 s{52+s_}, 0x00010001, 0")
        else: e("s_mov_b32 s55, 0x00010001")
    e("s_pack_ll_b32_b16 s56, s52, s53\ns_pack_ll_b32_b16 s57, s54, s55")
    for w in range(6): e(f"v_pk_max_u16 v{BM+w}, v{BM+w}, s{52+w}")
    for ctl in ("row_shr:1 row_mask:0xf bank_mask:0xf bound_ctrl:0","row_shr:2 row_mask:0xf bank_mask:0xf bound_ctrl:0","row_shr:4 row_mask:0xf bank_mask:0xf bound_ctrl:0","row_shr:8 row_mask:0xf bank_mask:0xf bound_ctrl:0","row_bcast:15 row_mask:0xa bank_mask:0xf","row_bcast:31 row_mask:0xc bank_mask:0xf"):
        for w in range(6): e(f"v_mov_b32 v{BM+6+w}, 0" if 'bcast' in ctl else "")
        for w in range(6): e(f"v_mov_b32_dpp v{BM+6+w}, v{BM+w} {ctl}")
        for w in range(6): e(f"v_pk_max_u16 v{BM+w}, v{BM+w}, v{BM+6+w}")
    for w in range(6): e(f"v_readlane_b32 s{52+w}, v{BM+w}, 63")
    pstamp(4)
    e("s_or_b32 s3, s52, s53\ns_or_b32 s3, s3, s54\ns_or_b32 s3, s3, s55\ns_or_b32 s3, s3, s56\ns_or_b32 s3, s3, s57\ns_and_b32 s3, s3, 0xffe0ffe0\ns_cselect_b32 s3, 1, 0\ns_or_b32 s49, s49, s3")
    packs=[("s_pack_ll_b32_b16 s64, s52, s54","s_pack_ll_b32_b16 s65, s53, s55"),
           ("s_pack_hh_b32_b16 s64, s52, s54","s_pack_hh_b32_b16 s65, s53, s55"),
           ("s_pack_ll_b32_b16 s64, s56, s57","s_pack_hh_b32_b16 s65, s56, s57")]
    for X in range(3):
        e(packs[X][0]); e(packs[X][1])
        e(f"""s_lshl_b32 s65, s65, 8
        s_or_b32 s64, s64, s65
        s_mul_i32 s64, s64, 0x01010101
        s_lshr_b32 s{32+X}, s64, 24
        s_add_u32 s64, s64, 0x1f1f1f1f
        s_mov_b32 s{35+X}, 0
        s_bitset1_b32 s{35+X}, s64
        s_lshr_b32 s65, s64, 8
        s_bitset1_b32 s{35+X}, s65
        s_lshr_b32 s65, s64, 16
        s_bitset1_b32 s{35+X}, s65
        s_lshr_b32 s65, s64, 24
        s_bitset1_b32 s{35+X}, s65
        s_cmp_gt_u32 s{32+X}, {RXS[X]}
        s_cselect_b32 s3, 1, 0
        s_or_b32 s49, s49, s3""")
    e("s_lshl_b32 s56, s22, 10")
    if FORCE_SLOW: e("s_mov_b32 s49, 1")
    e(f"""
    s_cmp_eq_u32 s49, 0
    s_cbranch_scc1 K3_NOSF2
    v_mov_b32 v52, {SLOWF}
    v_mov_b32 v53, 1
    ds_write_b32 v52, v53
    K3_NOSF2:
    """)
    pstamp(5)
    for b in range(4):
        e(f"""v_and_b32 v{vL+b}, 0xfff, v{QA+b}
        v_add_u32 v{vD+b}, s41, v{vL+b}
        v_lshlrev_b32 v{vD+b}, 1, v{vD+b}
        v_cmp_eq_u32 vcc, 0xfff, v{vL+b}
        v_mov_b32 v52, 0x7ffffff0
        s_nop 0
        v_cndmask_b32 v{vD+b}, v{vD+b}, v52, vcc
        buffer_load_ushort v{vD+b}, v{vD+b}, s[16:19], 0 offen""")
    for s_ in range(4): e(f"v_lshrrev_b32 v{28+s_}, 12, v{QA+s_}\nv_lshlrev_b32 v{28+s_}, 1, v{28+s_}")
    e(f"v_mov_b32 v60, {DP}\nv_mov_b32 v61, {ZSI|(ZSI<<16):#x}")
    pstamp(6)
    QAd=[54,55,56,57]; QEn=[62,63,64,65]
    QEn=[12,13,14,15]; QAd=[16,17,18,19]; CAa=[20,21]; CE=22; TT=23
    for X in range(3):
        for s_ in range(4):
            e(f"v_mov_b32 v{QAd[s_]}, v{28+s_}\nv_lshl_add_u32 v{28+s_}, v{CNT+4*X+s_}, 2, v{28+s_}\nv_mov_b32 v{QEn[s_]}, v{28+s_}")
        def shift():
            t=""
            for s_ in range(3): t+=f"v_mov_b32 v{QAd[s_]}, v{QAd[s_+1]}\nv_mov_b32 v{QEn[s_]}, v{QEn[s_+1]}\n"
            return t
        for s_ in range(3):
            lab=e.lab('IS'); e(f"s_cmp_le_u32 s38, {s_}\ns_cbranch_scc1 {lab}\n"+shift()+f"{lab}:")
        e(f"v_mov_b32 v{CAa[0]}, v{QAd[0]}\nv_mov_b32 v{CE}, v{QEn[0]}")
        for r in range(RXS[X]):
            ca=CAa[r%2]; cn=CAa[(r+1)%2]
            up=f"BU_{X}_{r}"; bk=f"BB_{X}_{r}"
            e(f"""v_cmp_lt_u32 vcc, v{ca}, v{CE}
            s_bitcmp1_b32 s{35+X}, {r}
            v_add_u32 v{cn}, 4, v{ca}
            v_cndmask_b32 v{TT}, v60, v{ca}, vcc
            ds_read_b32 v{IDX+RB[X]+r}, v{TT}
            s_cbranch_scc1 {up}
            {bk}:""")
            nxt=f"BF_{X}_{r+1}"
            ool.append(f"{up}:\ns_cmp_le_u32 s{32+X}, {r+1}\ns_cbranch_scc1 {nxt}\n"+shift()+f"v_mov_b32 v{cn}, v{QAd[0]}\nv_mov_b32 v{CE}, v{QEn[0]}\ns_branch {bk}\n")
            if r%8==7: e("s_waitcnt lgkmcnt(4)")
        e(f"s_branch BF_{X}_{RXS[X]}")
        fill=""
        for r in range(1,RXS[X]): fill+=f"BF_{X}_{r}:\nv_mov_b32 v{IDX+RB[X]+r}, v61\n"
        e(fill+f"BF_{X}_{RXS[X]}:")
        pstamp(7+X)
    e(f"""s_waitcnt lgkmcnt(0)
    s_barrier
    v_mov_b32 v52, {SLOWF}
    ds_read_b32 v53, v52
    s_waitcnt lgkmcnt(0)
    v_readfirstlane_b32 s49, v53
    s_cmp_eq_u32 s49, 0
    s_cbranch_scc1 K3_SETUP2
    s_waitcnt vmcnt(0)""")
    e("K3_SLOWSETUP:")
    for s in range(4):
        e(f"s_add_u32 s3, s22, {16*s}\ns_lshl_b32 s3, s3, 6\nv_add_u32 v{vL+s}, s3, v1\nv_cmp_gt_u32 vcc, {PN}, v{vL+s}\nv_mov_b32 v46, 0xfff\ns_nop 0\nv_cndmask_b32 v{vL+s}, v46, v{vL+s}, vcc")
    for b in range(4):
        e(f"""v_add_u32 v{vD+b}, s41, v{vL+b}
        v_lshlrev_b32 v{vD+b}, 1, v{vD+b}
        v_cmp_eq_u32 vcc, 0xfff, v{vL+b}
        v_mov_b32 v52, 0x7ffffff0
        s_nop 0
        v_cndmask_b32 v{vD+b}, v{vD+b}, v52, vcc
        buffer_load_ushort v{vD+b}, v{vD+b}, s[16:19], 0 offen""")
    e("K3_SETUP2:")
    if DBG:
        lab=e.lab('DG')
        e(f"s_cmp_lg_u32 s2, 0\ns_cbranch_scc1 {lab}\ns_mul_i32 s3, s22, {64*256}\ns_add_u32 s3, s3, {OFF_DBG+4096}\nv_lshlrev_b32 v58, 2, v1\nv_add_u32 v58, s3, v58")
        for r in range(RT): e(f"global_store_dword v58, v{IDX+r}, s[4:5] offset:0\nv_add_u32 v58, 256, v58")
        for s_ in range(4): e(f"global_store_dword v58, v{vL+s_}, s[4:5]\nv_add_u32 v58, 256, v58")
        for k in range(8): e(f"v_writelane_b32 v60, s{32+k}, {k}")
        e(f"v_writelane_b32 v60, s49, 8\nv_writelane_b32 v60, s46, 9\nv_writelane_b32 v60, s48, 10")
        e(f"global_store_dword v58, v60, s[4:5]\ns_waitcnt vmcnt(0)\n{lab}:")
    stamp(2)
    for b in range(4):
        e(f"""v_cmp_eq_u32 vcc, 0xfff, v{vL+b}
        v_lshlrev_b32 v{vL+b}, 3, v{vL+b}
        v_add_u32 v{vL+b}, {STG}, v{vL+b}
        v_mov_b32 v{TMP+1}, {DUMP}
        v_cndmask_b32 v{vL+b}, v{vL+b}, v{TMP+1}, vcc""")
    e(f"""
    v_and_b32 v70, 7, v1
    v_lshlrev_b32 v70, 2, v70
    v_add_u32 v70, s45, v70
    global_load_dword v71, v70, s[4:5] sc1
    s_mov_b32 s50, 2
    s_waitcnt vmcnt(1)
    """)
    for b in range(4): e(f"v_lshlrev_b32 v{vD+b}, 16, v{vD+b}")
    for t in range(2): e(f"v_and_b32 v{CD+2*t+1}, 0xffff0000, v{CD+2*t}\nv_lshlrev_b32 v{CD+2*t}, 16, v{CD+2*t}")
    e(f"""
    v_lshrrev_b32 v{TMP}, 4, v1
    v_bfe_u32 v{TMP+1}, v1, 2, 2
    v_and_b32 v{TMP+2}, 1, v1
    v_lshlrev_b32 v{TMP+2}, 4, v{TMP+2}
    v_mov_b32 v{TMP+3}, 0x3f80
    v_lshlrev_b32 v{TMP+3}, v{TMP+2}, v{TMP+3}
    v_cmp_eq_u32 vcc, v{TMP}, v{TMP+1}
    s_nop 1
    v_cndmask_b32 v{TMP+3}, 0, v{TMP+3}, vcc
    v_bfe_u32 v{TMP+2}, v1, 1, 1
    v_cmp_eq_u32 vcc, 0, v{TMP+2}
    v_mov_b32 v{TMP+4}, 0
    s_nop 0
    v_cndmask_b32 v{AC}, 0, v{TMP+3}, vcc
    v_cndmask_b32 v{AC+1}, v{TMP+3}, v{TMP+4}, vcc
    v_mov_b32 v{AC+2}, v{AC}
    v_mov_b32 v{AC+3}, v{AC+1}
    v_lshlrev_b32 v{vC}, 4, v0
    v_add_u32 v{vC}, {STG}, v{vC}
    v_lshlrev_b32 v{TMP+6}, 7, v0
    s_lshl_b32 s3, s41, 3
    v_add_u32 v{TMP+6}, s3, v{TMP+6}
    v_cmp_gt_u32 vcc, 196, v0
    v_mov_b32 v{TMP+5}, 0x7ffffff0
    s_nop 0
    v_cndmask_b32 v{TMP+6}, v{TMP+5}, v{TMP+6}, vcc
    s_lshl_b32 s3, s20, 8
    s_add_u32 s66, s3, {OFF_FL}
    s_lshl_b32 s3, s21, 5
    s_add_u32 s67, s66, s3
    s_mov_b32 s11, 0x20000
    s_mov_b32 s15, 0x20000
    s_mov_b32 s27, 0x20000
    s_mov_b32 s10, {TS_STRIDE}
    s_mov_b32 s14, {N*8}
    s_mov_b32 s26, {N*8}
    s_mov_b32 s23, 0
    s_lshl_b32 s56, s22, 10
    s_mov_b32 s51, 0xffff0000
    v_mov_b32 v{TMP}, {ZS}
    v_mov_b32 v{TMP+2}, 0
    v_mov_b32 v{TMP+3}, 0
    ds_write_b64 v{TMP}, v[{TMP+2}:{TMP+3}]
    s_waitcnt lgkmcnt(0)
    """)
    stamp(3)
    e("K3_HOP:")
    if TS: e("s_mov_b32 s68, s23")
    e(f"""
    s_and_b32 s69, s23, 1
    s_lshl_b32 s3, s69, 5
    s_add_u32 s3, s3, s20
    s_mul_i32 s3, s3, {TS_STRIDE}
    s_add_u32 s8, s4, s3
    s_addc_u32 s9, s5, 0
    s_xor_b32 s69, s69, 1
    s_lshl_b32 s3, s69, 5
    s_add_u32 s3, s3, s20
    s_mul_i32 s3, s3, {TS_STRIDE}
    s_add_u32 s12, s4, s3
    s_addc_u32 s13, s5, 0
    s_add_u32 s3, s23, 1
    s_lshl_b32 s3, s3, 5
    s_add_u32 s3, s3, s20
    s_mul_i32 s3, s3, {TS_STRIDE}
    s_add_u32 s3, s3, {OFF_T}
    s_add_u32 s24, s4, s3
    s_addc_u32 s25, s5, 0
    s_cmp_lg_u32 s49, 0
    s_cbranch_scc1 K3_SLOWHOP
    """)
    def dma(goff, nins, ldsbase):
        rounds=(nins+15)//16
        for r in range(rounds):
            lab=None
            if (r+1)*16>nins:
                lab=e.lab('DS'); e(f"s_cmp_ge_u32 s22, {nins-r*16}\ns_cbranch_scc1 {lab}")
            e(f"s_lshl_b32 s3, s22, 10\ns_add_u32 m0, s3, {ldsbase+r*16384}\ns_add_u32 s3, s3, {goff+r*16384}\nbuffer_load_dwordx4 v{v16}, s[8:11], s3 offen{DS} lds")
            if lab: e(f"{lab}:")
    hstamp(0)
    dma(0,NA,BUF0)
    for i in range(16): e(f"v_mov_b32 v{ACC+i}, 0")
    def issue(X,g):
        s=g%(PD+1); out=[]
        for k in range(2):
            rr=IDX+RB[X]+2*g+k
            out.append(f"v_lshlrev_b32_sdwa v{TMP+2*k}, 3, v{rr} dst_sel:DWORD dst_unused:UNUSED_PAD src0_sel:DWORD src1_sel:WORD_0")
            if 'halfsdwa' not in EXP: out.append(f"v_lshlrev_b32_sdwa v{TMP+2*k+1}, 3, v{rr} dst_sel:DWORD dst_unused:UNUSED_PAD src0_sel:DWORD src1_sel:WORD_1")
        for k in range(2):
            d=DAT+8*s+4*k
            out.append(f"ds_read_b64 v[{d}:{d+1}], v{TMP+2*k}")
            out.append(f"ds_read_b64 v[{d+2}:{d+3}], v{TMP+2*k+1}")
        return out
    def dma1(k,goff,ldsbase,nins=None):
        return [f"s_add_u32 m0, s56, {ldsbase+k*16384}",f"s_add_u32 s3, s56, {goff+k*16384}",f"buffer_load_dwordx4 v{v16}, s[8:11], s3 offen{DS} lds"]
    def phase(X):
        RX=RXS[X]; NG=RX//2
        nd={0:(TH1*8,BUF1,NB),1:(TH2*8,BUF0,NC)}.get(X)
        e(f"s_mov_b32 s54, s{35+X}")
        if 'prio' in EXP: e("s_setprio 3")
        for g in range(PD): e("\n".join(issue(X,g)))
        if nd:
            rem=nd[2]-64
            lab=e.lab('DR'); e(f"s_cmp_ge_u32 s22, {rem}\ns_cbranch_scc1 {lab}\n"+"\n".join(dma1(4,*nd))+f"\n{lab}:")
        def mfma(b,r):
            d=DAT+8*((r//2)%(PD+1))+4*(r%2)
            return f"v_mfma_f32_16x16x32_bf16 v[{ACC+4*b}:{ACC+4*b+3}], v[{AC}:{AC+3}], v[{d}:{d+3}], v[{ACC+4*b}:{ACC+4*b+3}]"
        def body(b):
            out=[]; tail=[]
            for r in range(RX):
                g=r//2
                out.append(f"E_{X}_{b}_{r}:")
                if 'prio' in EXP and r in (4,8,12): out.append(f"s_setprio {2-(r//4-1)}")
                if r%2==0:
                    if g+PD<NG:
                        if b==3 and GATE:
                            out.append(f"s_cmp_le_u32 s{32+X}, {2*(g+PD)}")
                            out.append(f"s_cbranch_scc1 T_{X}_{r}")
                            tl=[f"T_{X}_{r}:"]
                            if nd and g<4: tl+=dma1(g,*nd)
                            tl+= ["s_waitcnt lgkmcnt(0)",f"s_branch M_{X}_{r}"]
                            tail+=tl
                        out+=issue(X,g+PD)
                        if nd and g<4: out+=dma1(g,*nd)
                        out.append(f"s_waitcnt lgkmcnt({4*PD})")
                        if b==3 and GATE: out.append(f"M_{X}_{r}:")
                    else:
                        if nd and g<4: out+=dma1(g,*nd)
                        out.append(f"s_waitcnt lgkmcnt({0 if (b==3 and GATE) else 4*(NG-1-g)})")
                out.append(mfma(b,r))
                if r<RX-1 and not ('nochk' in EXP and r%2==0):
                    out.append(f"s_bitcmp1_b32 s54, {r}")
                    out.append(f"s_cbranch_scc1 E_{X}_{b+1}_{r+1}" if b<3 else f"s_cbranch_scc1 PE_{X}")
            out.append(f"s_branch PE_{X}")
            return "\n".join(out+tail)+"\n"
        for b in range(1,4): e(f"s_cmp_eq_u32 s38, {b}"); e(f"s_cbranch_scc1 E_{X}_{b}_0")
        e(body(0))
        for b in range(1,4): ool.append(body(b))
        e(f"PE_{X}:")
        if 'prio' in EXP: e("s_setprio 0")
        if nd:
            for k in range(1,4):
                lab=e.lab('DR')
                e(f"s_cmp_gt_u32 s{32+X}, {2*k}\ns_cbranch_scc1 {lab}\n"+"\n".join(dma1(k,*nd))+f"\n{lab}:")
        e("s_waitcnt lgkmcnt(0)")
    e("s_waitcnt vmcnt(0)"); hstamp(1)
    e("s_barrier"); hstamp(2)
    phase(0); hstamp(3)
    e("s_waitcnt vmcnt(0)\ns_barrier"); hstamp(4)
    phase(1); hstamp(5)
    if 'ttouch' in EXP:
        e(f"buffer_load_dword v{TMP+7}, v{TMP+6}, s[24:27], 0 offen\ns_waitcnt vmcnt(1)\ns_barrier")
    else: e("s_waitcnt vmcnt(0)\ns_barrier")
    hstamp(6)
    phase(2); hstamp(7)
    e("K3_EPI:\ns_nop 7\ns_nop 1")
    for b in range(4):
        a=ACC+4*b; t=DAT+2*b
        for r in range(4): e(f"v_mul_f32 v{a+r}, v{a+r}, v{vD+b}")
        e(f"v_cvt_pk_bf16_f32 v{t}, v{a}, v{a+1}\nv_cvt_pk_bf16_f32 v{t+1}, v{a+2}, v{a+3}")
        e(f"ds_write_b64 v{vL+b}, v[{t}:{t+1}]")
    e("s_waitcnt lgkmcnt(0)\ns_barrier"); hstamp(8)
    e(f"ds_read_b128 v[{DAT}:{DAT+3}], v{vC}\nds_read_b128 v[{DAT+4}:{DAT+7}], v{vC} offset:16384")
    def tstores():
        thr=next((int(x[4:]) for x in EXP.split() if x.startswith('thop')),None)
        mod=(" nt" if 'tnt' in EXP else " sc1" if 'tsc1' in EXP else " sc0 sc1" if 'tsc01' in EXP else "")
        if thr is None:
            for t in range(2):
                d=DAT+4*t
                e(f"buffer_store_dwordx4 v[{d}:{d+3}], v{CO+t}, s[24:27], 0 offen"+mod)
        else:
            a=e.lab('TA'); b=e.lab('TB')
            e(f"s_cmp_ge_u32 s23, {thr}\ns_cbranch_scc1 {a}")
            for t in range(2):
                d=DAT+4*t
                e(f"buffer_store_dwordx4 v[{d}:{d+3}], v{CO+t}, s[24:27], 0 offen")
            e(f"s_branch {b}\n{a}:")
            for t in range(2):
                d=DAT+4*t
                e(f"buffer_store_dwordx4 v[{d}:{d+3}], v{CO+t}, s[24:27], 0 offen sc1")
            e(f"{b}:")
    e(f"s_add_u32 s23, s23, 1\ns_cmp_ge_u32 s23, {NH}\ns_cbranch_scc1 K3_FIN")
    for t in range(2):
        d=DAT+4*t; a=ACC+8*t; o=DAT+8+4*t
        if t==1 and 'skip1' in EXP: e("s_cmp_ge_u32 s22, 9\ns_cbranch_scc1 K3_SK1")
        e(f"s_waitcnt lgkmcnt({1-t})")
        for r in range(4):
            e(f"v_lshlrev_b32 v{a+2*r}, 16, v{d+r}\nv_and_b32 v{a+2*r+1}, s51, v{d+r}")
        for r in range(8): e(f"v_mul_f32 v{a+r}, v{a+r}, v{CD+2*t+(r//4)}")
        for r in range(4): e(f"v_cvt_pk_bf16_f32 v{o+r}, v{a+2*r}, v{a+2*r+1}")
        if t==1 and 'skip1' in EXP: e("K3_SK1:")
    e(f"""s_cmp_lg_u32 s50, 2
    s_cbranch_scc1 K3_XD
    K3_XP:
    v_cmp_eq_u32 vcc, 0, v71
    s_cbranch_vccz K3_XE
    global_load_dword v71, v70, s[4:5] sc1
    s_waitcnt vmcnt(0)
    s_branch K3_XP
    K3_XE:
    v_cmp_ne_u32 vcc, s44, v71
    s_cmp_lg_u64 vcc, 0
    s_cselect_b32 s50, 1, 0""")
    if FORCE_SLOWSYNC: e("s_mov_b32 s50, 1")
    e("K3_XD:")
    e("s_cmp_lg_u32 s50, 0\ns_cbranch_scc1 K3_GS1")
    for t in range(2):
        o=DAT+8+4*t; e(f"buffer_store_dwordx4 v[{o}:{o+3}], v{CO+t}, s[12:15], 0 offen")
    e("s_branch K3_GS2\nK3_GS1:")
    for t in range(2):
        o=DAT+8+4*t; e(f"buffer_store_dwordx4 v[{o}:{o+3}], v{CO+t}, s[12:15], 0 offen sc1")
    e("K3_GS2:\ns_waitcnt vmcnt(0) lgkmcnt(0)"); hstamp(9); e("s_barrier")
    if 'allpoll' in EXP:
        e(f"""
        s_cmp_lg_u32 s22, 0
        s_cbranch_scc1 K3_NF
        v_mov_b32 v{TMP}, s67
        v_mov_b32 v{TMP+1}, s23
        v_cmp_eq_u32 vcc, 0, v1
        s_and_saveexec_b64 s[30:31], vcc
        s_cmp_lg_u32 s50, 0
        s_cbranch_scc1 K3_FS1
        global_store_dword v{TMP}, v{TMP+1}, s[4:5]
        s_branch K3_FS2
        K3_FS1:
        global_store_dword v{TMP}, v{TMP+1}, s[4:5] sc1
        K3_FS2:
        s_mov_b64 exec, s[30:31]
        K3_NF:
        v_and_b32 v{TMP}, 7, v1
        v_lshlrev_b32 v{TMP}, 5, v{TMP}
        v_add_u32 v{TMP}, s66, v{TMP}
        K3_POLL:
        global_load_dword v{TMP+1}, v{TMP}, s[4:5] sc1
        s_waitcnt vmcnt(0)
        v_cmp_gt_u32 vcc, s23, v{TMP+1}
        s_cbranch_vccnz K3_POLL
        """)
        tstores(); hstamp(10)
    else:
        e("s_cmp_eq_u32 s22, 0\ns_cbranch_scc1 K3_W0")
        if TMODE==1: e("s_sleep 6")
        if TMODE in (0,1): tstores()
        e("s_branch K3_WAIT\nK3_W0:")
        e(f"""
        v_mov_b32 v{TMP}, s67
        v_mov_b32 v{TMP+1}, s23
        v_cmp_eq_u32 vcc, 0, v1
        s_and_saveexec_b64 s[30:31], vcc
        s_cmp_lg_u32 s50, 0
        s_cbranch_scc1 K3_FS1
        global_store_dword v{TMP}, v{TMP+1}, s[4:5]
        s_branch K3_FS2
        K3_FS1:
        global_store_dword v{TMP}, v{TMP+1}, s[4:5] sc1
        K3_FS2:
        s_mov_b64 exec, s[30:31]
        v_and_b32 v{TMP}, 7, v1
        v_lshlrev_b32 v{TMP}, 5, v{TMP}
        v_add_u32 v{TMP}, s66, v{TMP}
        K3_POLL:
        global_load_dword v{TMP+1}, v{TMP}, s[4:5] sc1
        s_waitcnt vmcnt(0)
        v_cmp_gt_u32 vcc, s23, v{TMP+1}
        s_cbranch_vccnz K3_POLL
        """)
        if TMODE in (0,1): tstores()
        e("K3_WAIT:\ns_barrier"); hstamp(10)
        if TMODE==2: tstores()
    if TS:
        lab=e.lab('TS')
        e(f"s_cmp_lg_u32 s68, 0\ns_cbranch_scc1 {lab}"); stamp(4); e(f"{lab}:")
    e("s_branch K3_HOP")
    e(f"""
    K3_SLOWHOP:
    s_add_u32 s52, s4, {OFF_NOFF}
    s_addc_u32 s53, s5, 0
    s_mov_b32 s54, {25088*16}
    s_mov_b32 s55, 0x20000
    s_add_u32 s56, s4, {OFF_ENT}
    s_addc_u32 s57, s5, 0
    s_mov_b32 s58, {ENT_BYTES}
    s_mov_b32 s59, 0x20000
    """)
    for s in range(4):
        L=e.lab('SL'); Lx=e.lab('SX')
        a=ACC+4*s
        e(f"""
        v_mov_b32 v{a}, 0
        v_mov_b32 v{a+1}, 0
        v_mov_b32 v{a+2}, 0
        v_mov_b32 v{a+3}, 0
        s_add_u32 s3, s22, {16*s}
        s_lshl_b32 s3, s3, 6
        v_add_u32 v{DAT}, s3, v1              ; local
        v_cmp_gt_u32 vcc, {PN}, v{DAT}
        s_and_saveexec_b64 s[30:31], vcc
        s_cbranch_execz {Lx}
        v_add_u32 v{DAT}, s41, v{DAT}
        v_lshlrev_b32 v{DAT}, 4, v{DAT}
        buffer_load_dwordx4 v[{DAT+4}:{DAT+7}], v{DAT}, s[52:55], 0 offen
        s_waitcnt vmcnt(0)
        v_mov_b32 v{DAT+1}, v{DAT+4}          ; pos
        {L}:
        v_cmp_lt_u32 vcc, v{DAT+1}, v{DAT+7}
        s_and_b64 exec, exec, vcc
        s_cbranch_execz {Lx}
        v_lshlrev_b32 v{DAT+2}, 1, v{DAT+1}
        buffer_load_ushort v{DAT+3}, v{DAT+2}, s[56:59], 0 offen
        s_waitcnt vmcnt(0)
        v_cmp_le_u32 vcc, v{DAT+5}, v{DAT+1}           ; pos>=offB
        v_subrev_u32 v{DAT+8}, {BADD}, v{DAT+3}
        s_nop 0
        v_cndmask_b32 v{DAT+9}, v{DAT+3}, v{DAT+8}, vcc
        v_cmp_le_u32 vcc, v{DAT+6}, v{DAT+1}           ; pos>=offC
        v_add_u32 v{DAT+8}, {TH2}, v{DAT+3}
        s_nop 0
        v_cndmask_b32 v{DAT+9}, v{DAT+9}, v{DAT+8}, vcc
        v_cmp_eq_u32 vcc, {ZSI}, v{DAT+3}
        v_lshlrev_b32 v{DAT+9}, 3, v{DAT+9}
        v_mov_b32 v{DAT+8}, 0x7ffffff0
        s_nop 0
        v_cndmask_b32 v{DAT+9}, v{DAT+9}, v{DAT+8}, vcc
        s_mov_b32 s10, {N*8}
        buffer_load_dwordx2 v[{DAT+10}:{DAT+11}], v{DAT+9}, s[8:11], 0 offen sc1
        s_waitcnt vmcnt(0)
        v_lshlrev_b32 v{DAT+12}, 16, v{DAT+10}
        v_and_b32 v{DAT+13}, s51, v{DAT+10}
        v_lshlrev_b32 v{DAT+14}, 16, v{DAT+11}
        v_and_b32 v{DAT+15}, s51, v{DAT+11}
        v_add_f32 v{a}, v{a}, v{DAT+12}
        v_add_f32 v{a+1}, v{a+1}, v{DAT+13}
        v_add_f32 v{a+2}, v{a+2}, v{DAT+14}
        v_add_f32 v{a+3}, v{a+3}, v{DAT+15}
        v_add_u32 v{DAT+1}, 1, v{DAT+1}
        s_branch {L}
        {Lx}:
        s_mov_b64 exec, s[30:31]
        """)
    e(f"s_mov_b32 s10, {TS_STRIDE}\ns_branch K3_EPI")
    for o in ool: e(o)
    e("K3_FIN:\ns_waitcnt lgkmcnt(0)")
    tstores()
    if TS:
        e(f"s_cmp_lg_u32 s2, 41\ns_cbranch_scc1 K3_END\ns_memtime s[62:63]\ns_waitcnt lgkmcnt(0)\ns_sub_u32 s81, s62, s60")
        for k in range(17): e(f"v_writelane_b32 v{TMP+7}, s{76+k}, {k}")
        e(f"s_lshl_b32 s3, s22, 7\ns_add_u32 s3, s3, {OFF_DBG}\nv_lshlrev_b32 v{TMP+6}, 2, v1\nv_add_u32 v{TMP+6}, s3, v{TMP+6}\nv_cmp_gt_u32 vcc, 17, v1\ns_and_saveexec_b64 s[30:31], vcc\nglobal_store_dword v{TMP+6}, v{TMP+7}, s[4:5]")
    e("K3_END:")
    return e.text(),NV,102
```

```python
import sys
sys.path.insert(0,'dev')
from glib import *
from mkall import K
import prep as _p, sched, importlib
from k3 import gen_k3,K3_LDS
hdr=open('gather_scatter__hybrid_graph_tf_nagphormer__graph.s.ref').read().split('; Override launch')[0]
def build(dst, k4='k4v6', exp='prio notouch', ppf=False, xtouch=True, PD=1, TMODE=0, dsc=4, k4kw={}):
    _p.XTOUCH=xtouch; _p.PPF=ppf; sched.DSC=dsc
    m=importlib.import_module(k4)
    L=[('prep_kernel',_p.P_GRID,1024,_p.P_LDS),('hops_kernel',256,1024,K3_LDS),('final_kernel',256,m.K4_BLOCK,m.K4_LDS)]
    Ks=[K('prep_kernel',_p.gen_prep),K('hops_kernel',gen_k3,PD=PD,TMODE=TMODE,EXP=exp),K('final_kernel',m.gen_k4,**k4kw)]
    open('dev/'+dst,'w').write(hdr+file_text(L,Ks))
if __name__=='__main__':
    build('o_a.s')
    build('o_b.s',xtouch=False)
    build('o_c.s',k4='k4v4',dsc=8,k4kw=dict(LDSLAT=160))
    build('o_d.s',exp='prio notouch skip1')
    build('o_e.s',exp='notouch')
    build('o_f.s',k4kw=dict(CPF=False))
```

```python
import sys
sys.path.insert(0,'dev')
from glib import *
from layout import *
from mkall import K
import prep as _p, sched, importlib
from k3 import gen_k3,K3_LDS
hdr=open('gather_scatter__hybrid_graph_tf_nagphormer__graph.s.ref').read().split('; Override launch')[0]
_p.XTOUCH=True; _p.PPF=False
m=importlib.import_module('k4v6')
k3=K('hops_kernel',gen_k3,PD=1,TMODE=0,EXP='prio notouch',TS=1)
k4=K('final_kernel',m.gen_k4)
ins=f"""  s_cmp_lg_u32 s2, 200
  s_cbranch_scc1 DG_SKIP
  s_load_dwordx2 s[20:21], s[0:1], 80
  s_load_dwordx2 s[22:23], s[0:1], 88
  v_and_b32 v10, 15, v0
  v_lshlrev_b32 v10, 2, v10
  v_add_u32 v11, {OFF_DBG}, v10
  s_waitcnt lgkmcnt(0)
  global_load_dword v12, v11, s[22:23]
  s_waitcnt vmcnt(0)
  global_store_dword v10, v12, s[20:21]
  s_waitcnt vmcnt(0)
DG_SKIP:
"""
i=k4.index('final_kernel:\n')+len('final_kernel:\n')
k4=k4[:i]+ins+k4[i:]
L=[('prep_kernel',_p.P_GRID,1024,_p.P_LDS),('hops_kernel',256,1024,K3_LDS),('final_kernel',256,m.K4_BLOCK,m.K4_LDS)]
open('o_diag.s','w').write(hdr+file_text(L,[K('prep_kernel',_p.gen_prep),k3,k4]))
```

```python
from variants2 import *
build('o_1.s',k4='k4v6',k4kw=dict(CPF=False))
build('o_2.s',k4='k4v4',dsc=8,k4kw=dict(LDSLAT=160))
build('o_3.s',k4='k4v3',dsc=8,k4kw=dict(LDSLAT=160))
build('o_4.s',k4='k4v5',dsc=8,k4kw=dict(LDSLAT=160))
build('o_5.s',k4='k4v6',dsc=8,k4kw=dict(CPF=False,LDSLAT=160))
build('o_6.s',k4='k4v3')
```
